```python
import torch

def _softmax(x, axis=-1):
    return torch.softmax(x, dim=axis)

def _gelu(x):
    return torch.nn.functional.gelu(x, approximate='tanh')

def _silu(x):
    return torch.nn.functional.silu(x)

def _sigmoid(x):
    return torch.sigmoid(x)

def _layernorm(x, axis=-1, eps=1e-05):
    m = x.mean(dim=axis, keepdim=True)
    v = x.var(dim=axis, keepdim=True, unbiased=False)
    return (x - m) / torch.sqrt(v + eps)

def _scatter_add(tgt, idx, src, axis=0):
    return tgt.clone().index_add_(axis, idx, src)

def _segment_sum(src, seg, n):
    out = torch.zeros((n,) + src.shape[1:], dtype=src.dtype)
    return out.index_add_(0, seg, src)

def _pad(x, pw):
    flat = tuple((v for pair in reversed(pw) for v in pair))
    return torch.nn.functional.pad(x, flat)
kernel_name = 'adaLN_cond__mha_block__glu_gated_glu__prompt'

def setup_inputs():

    _w = lambda a: (lambda t: t.to(torch.bfloat16) if t.is_floating_point() else t)(torch.as_tensor(a))

    def _A_setup():
        B, S, D, H = (1, 2048, 640, 32)
        return {'x': _w((lambda *s: torch.randn(*s, dtype=torch.bfloat16) * 0.05)(B, S, D)), 'wqkv': _w((lambda *s: torch.randn(*s, dtype=torch.bfloat16) * 0.05)(D, 3 * D)), 'wo': _w((lambda *s: torch.randn(*s, dtype=torch.bfloat16) * 0.05)(D, D))}
    _A_in = _A_setup()

    def _B_setup():
        B, S, D, F = (1, 2048, 640, 1728)
        return {'x': _w((lambda *s: torch.randn(*s, dtype=torch.bfloat16) * 0.05)(B, S, D)), 'w_gate': _w((lambda *s: torch.randn(*s, dtype=torch.bfloat16) * 0.05)(D, F)), 'w_up': _w((lambda *s: torch.randn(*s, dtype=torch.bfloat16) * 0.05)(D, F)), 'w_down': _w((lambda *s: torch.randn(*s, dtype=torch.bfloat16) * 0.05)(F, D))}
    _B_in = _B_setup()
    return {'A_x': _A_in['x'], 'A_wqkv': _A_in['wqkv'], 'A_wo': _A_in['wo'], 'B_x': _B_in['x'], 'B_w_gate': _B_in['w_gate'], 'B_w_up': _B_in['w_up'], 'B_w_down': _B_in['w_down'], 'c': _w((lambda *s: torch.randn(*s, dtype=torch.bfloat16) * 0.2)(1, 640) * 8.0), 'w_mod': _w((lambda *s: torch.randn(*s, dtype=torch.bfloat16) * 0.2)(640, 6 * 640) * 640 ** (-0.5) * 8.0)}

def reference(A_x, A_wqkv, A_wo, B_x, B_w_gate, B_w_up, B_w_down, c, w_mod):

    def _A_ref(x, wqkv, wo):
        B, S, D = x.shape
        H = 32
        Dh = D // H
        qkv = (lambda x, *d: x.permute(*d))((x @ wqkv).reshape(B, S, 3, H, Dh), 2, 0, 3, 1, 4)
        q, k, v = (qkv[0], qkv[1], qkv[2])
        scores = torch.einsum('bhqd,bhkd->bhqk', q, k) * Dh ** (-0.5)
        p = _softmax(scores, axis=-1)
        o = torch.einsum('bhqk,bhkd->bhqd', p, v)
        return (lambda x, *d: x.permute(*d))(o, 0, 2, 1, 3).reshape(B, S, D) @ wo

    def _B_ref(x, w_gate, w_up, w_down):
        g = torch.einsum('bsd,df->bsf', x, w_gate)
        u = torch.einsum('bsd,df->bsf', x, w_up)
        h = _sigmoid(g) * u
        return torch.einsum('bsf,fd->bsd', h, w_down)
    x = A_x
    mod = (_silu(c) @ w_mod).reshape(c.shape[0], 6, 1, -1)
    sa, ca, ga, sb, cb, gb = (mod[:, 0].clone(), mod[:, 1].clone(), mod[:, 2].clone(), mod[:, 3].clone(), mod[:, 4].clone(), mod[:, 5].clone())
    h = _layernorm(x, axis=-1) * (1 + ca) + sa
    x = x + ga * _A_ref(h, A_wqkv, A_wo)
    h = _layernorm(x, axis=-1) * (1 + cb) + sb
    x = x + gb * _B_ref(h, B_w_gate, B_w_up, B_w_down)
    return x
```

```python
class Asm:
    def __init__(self):
        self.lines = []
        self._lab = 0
    def __call__(self, s=''):
        for l in s.split('\n'):
            l = l.strip()
            if l:
                self.lines.append(l if l.endswith(':') else '    ' + l)
    def label(self, base):
        self._lab += 1
        return f'L_{base}_{self._lab}'
    def text(self):
        return '\n'.join(self.lines) + '\n'

class Regs:
    def __init__(self, prefix, start, limit):
        self.p, self.n, self.limit, self.hi = prefix, start, limit, start
    def __call__(self, n=1, align=None):
        if align is None:
            align = 1 if n == 1 else (2 if self.p == 'v' else (4 if n >= 4 else 2))
        self.n = (self.n + align - 1) // align * align
        r = self.n
        self.n += n
        assert self.n <= self.limit, f'out of {self.p} regs'
        self.hi = max(self.hi, self.n)
        return r
    def mark(self): return self.n
    def release(self, m): self.n = m

def vr(a, n=1): return f'v{a}' if n == 1 else f'v[{a}:{a+n-1}]'
def sr(a, n=1): return f's{a}' if n == 1 else f's[{a}:{a+n-1}]'

class Cnt:
    def __init__(self, a, name, maxv):
        self.a, self.name, self.maxv, self.q = a, name, maxv, []
    def issue(self, tag, text=None):
        if text: self.a(text)
        self.q.append(tag)
    def need(self, *tags):
        idx = [i for i, t in enumerate(self.q) if t in tags]
        if not idx: return None
        n = len(self.q) - 1 - max(idx)
        self.q = self.q[max(idx) + 1:]
        return min(n, self.maxv)
    def wait(self, *tags):
        n = self.need(*tags)
        if n is not None: self.a(f's_waitcnt {self.name}({n})')
    def drain(self):
        self.q = []
def wait2(a, vm, vt, lg, lt):
    n, m = vm.need(*vt), lg.need(*lt)
    s = ' '.join(x for x in ((f'vmcnt({n})' if n is not None else ''), (f'lgkmcnt({m})' if m is not None else '')) if x)
    if s: a('s_waitcnt ' + s)
```

```python
from asm import *
from layout import *
import struct
def f2u(x): return struct.unpack('<I', struct.pack('<f', x))[0]

ATTN_LDS = 4 * 6144
OOB = 0x40000000

def gen_attn(a, V, Sg, ctx, opt=None):
    opt = opt or {}
    ws, sWG, sWave, vLane = ctx['sWS'], ctx['sWG'], ctx['sWave'], ctx['vLane']
    lds0 = ctx.get('lds_base', 0)
    st, ld = ctx.get('st_flags', ''), ctx.get('ld_flags', '')
    stamp = ctx.get('stamp', lambda: None)
    WS = sr(ws, 4)
    mv, ms = V.mark(), Sg.mark()
    sHead, sQb, sKV, sKV0, sKVe, sC, sT, sT2, sQ, sKh, sG, sO1, sO2 = [Sg() for _ in range(13)]
    sMHi = Sg(2)
    vL16, vAK2, vAV0, vAV1, vIdx, vT, vT2, vT3, vO1, vO2 = [V() for _ in range(10)]
    NQ, NB = 4, 4
    Q1, Q2 = [V(4) for _ in range(NQ)], [V(2) for _ in range(NQ)]
    K1, K2, V0, V1 = [V(4) for _ in range(NB)], [V(2) for _ in range(NB)], [V(4) for _ in range(NB)], [V(4) for _ in range(NB)]
    Sb = [V(16, 4), V(16, 4)]
    O = [V(16, 4) for _ in range(NQ)]
    E = lambda r: a(f'v_exp_f32 v{r}, v{r}' if not opt.get('noexp') else '')
    def QKa(q, b, d): a(f'v_mfma_f32_32x32x16_bf16 {vr(d,16)}, {vr(K1[b],4)}, {vr(Q1[q],4)}, 0')
    def QKb(q, b, d): a(f'v_mfma_f32_32x32x8bf16_1k {vr(d,16)}, {vr(K2[b],2)}, {vr(Q2[q],2)}, {vr(d,16)}')
    def SM(q, vv, p): a(f'v_smfmac_f32_32x32x32_bf16 {vr(O[q],16)}, {vr(vv,4)}, {vr(p,8)}, v{vIdx}')
    def ldK1(b, s=sKV): a(f'buffer_load_dwordx4 {vr(K1[b],4)}, v{vL16}, {WS}, s{s} offen {ld}')
    def ldK2(b, s=sKV): a(f'buffer_load_dwordx2 {vr(K2[b],2)}, v{vAK2}, {WS}, s{s} offen {ld}')
    def ldV0(b, s=sKV): a(f'buffer_load_dwordx4 {vr(V0[b],4)}, v{vAV0}, {WS}, s{s} offen {ld}')
    def ldV1(b, s=sKV): a(f'buffer_load_dwordx4 {vr(V1[b],4)}, v{vAV1}, {WS}, s{s} offen {ld}')
    def adv(): a(f's_add_u32 s{sKV}, s{sKV}, {KVT}')

    a(f'''
    s_and_b32 s{sHead}, s{sWG}, 7
    s_lshl_b32 s{sHead}, s{sHead}, 2
    s_lshr_b32 s{sT}, s{sWG}, 3
    s_and_b32 s{sT2}, s{sT}, 3
    s_add_u32 s{sHead}, s{sHead}, s{sT2}
    s_lshr_b32 s{sQb}, s{sT}, 2
    s_lshr_b32 s{sKh}, s{sWave}, 1
    s_and_b32 s{sG}, s{sWave}, 1
    s_mul_i32 s{sKV0}, s{sHead}, {64*KVT}
    s_add_u32 s{sKV0}, s{sKV0}, {WS_KV}
    s_mul_i32 s{sT}, s{sKh}, {32*KVT}
    s_add_u32 s{sKV}, s{sKV0}, s{sT}
    s_add_u32 s{sKVe}, s{sKV}, {31*KVT}
    s_lshl_b32 s{sT}, s{sHead}, 6
    s_lshl_b32 s{sT2}, s{sQb}, 3
    s_add_u32 s{sT}, s{sT}, s{sT2}
    s_lshl_b32 s{sT2}, s{sG}, 2
    s_add_u32 s{sT}, s{sT}, s{sT2}
    s_lshl_b32 s{sT2}, s{sKh}, 1
    s_add_u32 s{sQ}, s{sT}, s{sT2}
    s_xor_b32 s{sC}, s{sQ}, 2
    s_mul_i32 s{sQ}, s{sQ}, {QT}
    s_add_u32 s{sQ}, s{sQ}, {WS_Q}
    s_mul_i32 s{sC}, s{sC}, {QT}
    s_add_u32 s{sC}, s{sC}, {WS_Q}
    s_mov_b32 s{sMHi}, 0
    s_mov_b32 s{sMHi+1}, -1
    v_lshlrev_b32 v{vL16}, 4, v{vLane}
    v_and_b32 v{vT}, 31, v{vLane}
    v_lshrrev_b32 v{vT2}, 5, v{vLane}
    v_lshlrev_b32 v{vT3}, 3, v{vT}
    v_lshl_add_u32 v{vIdx}, v{vT2}, 30, v{vT3}
    ''')
    if 'wait_inputs' in ctx: ctx['wait_inputs']()
    for q in range(NQ):
        sq = sQ if q < 2 else sC
        a(f'buffer_load_dwordx4 {vr(Q1[q],4)}, v{vL16}, {WS}, s{sq} offen offset:{(q&1)*QT} {ld}')
        a(f'buffer_load_dwordx2 {vr(Q2[q],2)}, v{vIdx}, {WS}, s{sq} offen offset:{(q&1)*QT+1024} {ld}')
    a(f'''
    v_add_u32 v{vT3}, {KV_K2}, v{vT3}
    v_mov_b32 v{vAK2}, {KV_ONE}
    v_cmp_gt_u32 vcc, 32, v{vLane}
    v_mul_u32_u24 v{vAV0}, 20, v{vT2}
    v_add_u32 v{vAV0}, v{vAV0}, v{vT}
    v_cndmask_b32 v{vAK2}, v{vAK2}, v{vT3}, vcc
    v_lshlrev_b32 v{vAV0}, 4, v{vAV0}
    v_add_u32 v{vAV0}, {KV_V}, v{vAV0}
    v_add_u32 v{vAV1}, 640, v{vAV0}
    ''')
    ldK1(3, sKV0); ldK2(3, sKV0)
    a(f'''
    v_mov_b32 v{vT3}, {KV_ONE}
    v_mov_b32 v{vT2}, {OOB}
    v_cmp_eq_u32 vcc, 20, v{vT}
    v_mov_b32 v{vIdx}, 0xdddd
    s_nop 0
    v_cndmask_b32 v{vT3}, v{vT2}, v{vT3}, vcc
    v_cmp_gt_u32 vcc, 20, v{vT}
    s_mov_b32 s{sC}, 0
    s_nop 0
    v_cndmask_b32 v{vAV0}, v{vT3}, v{vAV0}, vcc
    v_cndmask_b32 v{vAV1}, v{vT3}, v{vAV1}, vcc
    ''')
    for b in range(3):
        ldK1(b); ldV1(b); ldK2(b); ldV0(b); adv()
    for r in range(8, 16): a(f'v_mov_b32 v{Sb[1]+r}, 0')
    for r in range(4): a(f'v_mov_b32 v{V1[3]+r}, 0')
    a('s_waitcnt vmcnt(12)')
    stamp()
    for q in range(NQ):
        QKa(q, 3, O[q]); QKb(q, 3, O[q])
    def rowmax(dst, src, first):
        if first:
            a(f'v_max3_f32 v{dst}, v{src}, v{src+1}, v{src+2}')
            a(f'v_max_f32 v{dst}, v{dst}, v{src+3}')
            rest = range(4, 16, 2)
        else:
            rest = range(0, 16, 2)
        for r in rest: a(f'v_max3_f32 v{dst}, v{dst}, v{src+r}, v{src+r+1}')
    for q in range(NQ):
        if q == NQ - 1: a('s_nop 3')
        rowmax(vT, O[q], True)
        a(f'''
        v_mov_b32 v{vT2}, v{vT}
        v_mov_b32 v{O[q]}, 0
        v_mov_b32 v{O[q]+1}, 0
        v_permlane32_swap_b32 v{vT}, v{vT2}
        ''')
        for r in range(2, 16): a(f'v_mov_b32 v{O[q]+r}, 0')
        a(f'''
        v_max_f32 v{vT}, v{vT}, v{vT2}
        v_sub_f32 v{vT}, {hex(f2u(-MBIAS))}, v{vT}
        v_cvt_pk_bf16_f32 v{vT}, v{vT}, 0
        s_mov_b64 exec, {sr(sMHi,2)}
        v_mov_b32 v{Q2[q]}, v{vT}
        s_mov_b64 exec, -1
        ''')
    a('s_waitcnt vmcnt(8)')
    QKa(0, 0, Sb[0]); QKb(0, 0, Sb[0])
    a('s_nop 10')
    loop = a.label('attn_loop')
    stamp()
    a('.p2align 6')
    a(f'{loop}:')
    for i in range(NB):
        b, nb, pb = i, (i + 1) % NB, (i - 1) % NB
        for q in range(NQ):
            c, n = Sb[q & 1], Sb[(q + 1) & 1]
            E(c); E(c + 1)
            SM((q - 1) % NQ, V1[b if q else pb], n + 8)
            if q == 0: ldK1(pb)
            if q == 1: ldK2(pb)
            if q == 2: adv(); a(f's_min_u32 s{sKV}, s{sKV}, s{sKVe}')
            if q == 3: a('s_waitcnt vmcnt(8)')
            for r in range(2, 6): E(c + r)
            nq, kb = (q + 1) % NQ, (b if q < NQ - 1 else nb)
            QKa(nq, kb, n)
            if i == NB - 1 and q == 2: a(f's_add_u32 s{sC}, s{sC}, 1')
            if i == NB - 1 and q == 3: a(f's_cmp_lt_u32 s{sC}, {32 // NB}')
            for r in range(6, 10): E(c + r)
            QKb(nq, kb, n)
            for r in range(10, 14): E(c + r)
            SM(q, V0[b], c)
            if q == 0: ldV1(pb)
            if q == 1: ldV0(pb)
            if q == 2 and i == NB - 1 and 'progress' in ctx: a(f'ds_add_u32 v{ctx["progress"]}, v{ctx["progress"]+1}')
            E(c + 14); E(c + 15)
    if opt.get('trace'):
        tr = ctx['trace']
        a(f's_memrealtime s[{tr}:{tr+1}]\ns_memtime s[{tr+2}:{tr+3}]\ns_waitcnt lgkmcnt(0)\ns_mov_b32 m0, s{sC}\ns_nop 0\nv_writelane_b32 v{ctx["vtr"]}, s{tr}, m0\nv_writelane_b32 v{ctx["vtr"]+1}, s{tr+2}, m0')
    a(f's_cbranch_scc1 {loop}')
    if opt.get('trace'):
        a(f's_lshl_b32 s{sT}, s2, 3\ns_add_u32 s{sT}, s{sT}, s{sWave}\ns_lshl_b32 s{sT}, s{sT}, 7\ns_add_u32 s{sT}, s{sT}, {WS_STAMP + 262144}')
        a(f'v_lshlrev_b32 v{vT}, 3, v{vLane}\ns_mov_b64 exec, 0xffff\nbuffer_store_dwordx2 {vr(ctx["vtr"],2)}, v{vT}, {WS}, s{sT} offen\ns_mov_b64 exec, -1')
    stamp()
    a('s_nop 1')
    SM(NQ - 1, V1[NB - 1], Sb[1] + 8)
    a(f'''
    s_lshl_b32 s{sT}, s{sQb}, 3
    s_lshl_b32 s{sT2}, s{sG}, 2
    s_add_u32 s{sT}, s{sT}, s{sT2}
    s_lshl_b32 s{sT2}, s{sKh}, 1
    s_add_u32 s{sT}, s{sT}, s{sT2}
    s_mul_i32 s{sT}, s{sT}, 40960
    s_add_u32 s{sT}, s{sT}, {WS_O}
    s_lshr_b32 s{sT2}, s{sHead}, 1
    s_lshl_b32 s{sO1}, s{sT2}, 10
    s_and_b32 s{sC}, s{sHead}, 1
    s_lshl_b32 s{sQ}, s{sC}, 9
    s_add_u32 s{sO1}, s{sO1}, s{sQ}
    s_add_u32 s{sO1}, s{sO1}, s{sT}
    s_and_b32 s{sT2}, s{sT2}, 3
    s_lshl_b32 s{sT2}, s{sT2}, 8
    s_lshl_b32 s{sC}, s{sC}, 3
    s_add_u32 s{sT2}, s{sT2}, s{sC}
    s_lshr_b32 s{sC}, s{sHead}, 3
    s_add_u32 s{sC}, s{sC}, 16
    s_lshl_b32 s{sC}, s{sC}, 10
    s_add_u32 s{sT2}, s{sT2}, s{sC}
    s_add_u32 s{sO2}, s{sT2}, s{sT}
    s_mul_i32 s{sT}, s{sWave}, 6144
    s_add_u32 s{sT}, s{sT}, {lds0}
    s_xor_b32 s{sT2}, s{sWave}, 2
    s_mul_i32 s{sT2}, s{sT2}, 6144
    s_add_u32 s{sT2}, s{sT2}, {lds0}
    v_add_u32 v{vT}, s{sT}, v{vL16}
    v_add_u32 v{vT2}, s{sT2}, v{vL16}
    ''')
    if ctx.get('pre_combine_barrier'): a('s_barrier')
    for j in range(2):
        for r in range(3): a(f'ds_write_b128 v{vT}, {vr(O[2+j]+4*r,4)} offset:{3072*j + 1024*r}')
    a(f'''
    v_bfe_u32 v{vT}, v{vLane}, 4, 1
    v_mul_u32_u24 v{vT}, 20480, v{vT}
    v_and_b32 v{vT3}, 15, v{vLane}
    v_lshl_add_u32 v{vO2}, v{vT3}, 4, v{vT}
    v_lshrrev_b32 v{vT}, 5, v{vLane}
    v_lshl_add_u32 v{vO1}, v{vT}, 8, v{vO2}
    v_lshl_add_u32 v{vO2}, v{vT}, 30, v{vO2}
    s_waitcnt lgkmcnt(0)
    s_barrier
    ''')
    for j in range(2):
        for r in range(3): a(f'ds_read_b128 {vr(O[2+j]+4*r,4)}, v{vT2} offset:{3072*j + 1024*r}')
    tmp = ctx['sTmp2']
    slows = []
    for j in range(2):
        Oq = O[j]
        fin, slow = a.label('attn_fin'), a.label('attn_slow')
        slows.append((j, fin, slow))
        a(f's_waitcnt lgkmcnt({3 - 3*j})')
        for r in range(12): a(f'v_add_f32 v{Oq+r}, v{Oq+r}, v{O[2+j]+r}')
        a(f'''
        v_mov_b32 v{vT}, v{Oq+8}
        v_mov_b32 v{vT2}, v{Oq+8}
        v_max3_f32 v{vT3}, abs(v{Oq}), abs(v{Oq+1}), abs(v{Oq+2})
        s_nop 0
        v_permlane32_swap_b32 v{vT}, v{vT2}
        ''')
        for r in range(3, 11, 2): a(f'v_max3_f32 v{vT3}, v{vT3}, abs(v{Oq+r}), abs(v{Oq+r+1})')
        a(f'''
        v_max_f32_e64 v{vT3}, v{vT3}, abs(v{Oq+11})
        s_mov_b32 s{sT}, {hex(f2u(2.0**120))}
        s_mov_b32 s{sC}, 0x7f800000
        v_cmp_nlt_f32_e64 {sr(tmp,2)}, v{vT2}, s{sT}
        v_cmp_nlt_f32_e64 vcc, v{vT3}, s{sC}
        s_or_b64 vcc, vcc, {sr(tmp,2)}
        ''')
        if opt.get('force_slow'): a(f's_branch {slow}')
        a(f's_cbranch_vccnz {slow}')
        a(f'{fin}:')
        a(f'v_rcp_f32 v{vT2}, v{vT2}\ns_nop 0')
        for r in range(12): a(f'v_mul_f32 v{Oq+r}, v{Oq+r}, v{vT2}')
        for r in range(6): a(f'v_cvt_pk_bf16_f32 v{Oq+r}, v{Oq+2*r}, v{Oq+2*r+1}')
        a(f'buffer_store_dwordx4 {vr(Oq,4)}, v{vO1}, {WS}, s{sO1} offen {st}')
        a(f'buffer_store_dwordx2 {vr(Oq+4,2)}, v{vO2}, {WS}, s{sO2} offen {st}')
        if j == 0: a(f's_add_u32 s{sO1}, s{sO1}, 40960\ns_add_u32 s{sO2}, s{sO2}, 40960')
    def cold():
        for j, fin, slow in slows:
            Oq = O[j]
            l1, l2 = a.label('slow1'), a.label('slow2')
            a(f'''
            {slow}:
            s_waitcnt vmcnt(0) lgkmcnt(0)
            s_mov_b64 exec, {sr(sMHi,2)}
            v_mov_b32 v{Q2[j]}, 0
            s_mov_b64 exec, -1
            v_mov_b32 v{vT}, 0xff800000
            s_mov_b32 s{sKV}, s{sKV0}
            s_mov_b32 s{sC}, 0
            {l1}:
            ''')
            ldK1(0); ldK2(0); a('s_waitcnt vmcnt(0)')
            QKa(j, 0, Sb[0]); QKb(j, 0, Sb[0])
            a('s_nop 15')
            rowmax(vT, Sb[0], False)
            adv()
            a(f'''
            s_add_u32 s{sC}, s{sC}, 1
            s_cmp_lt_u32 s{sC}, 64
            s_cbranch_scc1 {l1}
            v_mov_b32 v{vT2}, v{vT}
            s_nop 1
            v_permlane32_swap_b32 v{vT}, v{vT2}
            s_nop 1
            v_max_f32 v{vT3}, v{vT}, v{vT2}
            ''')
            for r in range(16): a(f'v_mov_b32 v{Oq+r}, 0')
            a(f's_mov_b32 s{sKV}, s{sKV0}\ns_mov_b32 s{sC}, 0\n{l2}:')
            ldK1(0); ldK2(0); ldV0(0); ldV1(0); a('s_waitcnt vmcnt(0)')
            QKa(j, 0, Sb[0]); QKb(j, 0, Sb[0])
            a('s_nop 15')
            for r in range(16): a(f'v_sub_f32 v{Sb[0]+r}, v{Sb[0]+r}, v{vT3}')
            for r in range(16): a(f'v_exp_f32 v{Sb[0]+r}, v{Sb[0]+r}')
            a('s_nop 1')
            SM(j, V0[0], Sb[0]); SM(j, V1[0], Sb[0] + 8)
            adv()
            a(f'''
            s_add_u32 s{sC}, s{sC}, 1
            s_cmp_lt_u32 s{sC}, 64
            s_cbranch_scc1 {l2}
            s_nop 15
            v_mov_b32 v{vT}, v{Oq+8}
            v_mov_b32 v{vT2}, v{Oq+8}
            s_nop 1
            v_permlane32_swap_b32 v{vT}, v{vT2}
            s_nop 1
            s_branch {fin}
            ''')
    V.release(mv); Sg.release(ms)
    return cold
```

```python
import sys
from asm import *
from layout import *
NAME = 'adaLN_cond__mha_block__glu_gated_glu__prompt'
HEADER = open('cdna_kernels/' + NAME + '.s.ref').read().split('; Override launch geometry')[0]

def kd(name, vgpr, sgpr):
    vg = (vgpr + 7) // 8 * 8
    return f'''.amdhsa_kernel {name}
  .amdhsa_next_free_vgpr {vg}
  .amdhsa_next_free_sgpr {sgpr}
  .amdhsa_accum_offset {vg}
  .amdhsa_group_segment_fixed_size 0
  .amdhsa_kernarg_size 96
  .amdhsa_user_sgpr_count 2
  .amdhsa_user_sgpr_kernarg_segment_ptr 1
  .amdhsa_system_sgpr_workgroup_id_x 1
.end_amdhsa_kernel
'''

class Kernel:
    def __init__(self, name, grid, block, lds):
        self.name, self.grid, self.block, self.lds = name, grid, block, lds
        self.a = Asm(); self.a._lab = hash(name) % 1000 * 1000
        self.V = Regs('v', 1, 256); self.S = Regs('s', 4, 100)

def assemble(kernels):
    out = HEADER
    for k in kernels:
        out += f'; @launch kernel={k.name} grid=({k.grid},1,1) block=({k.block},1,1) lds={k.lds}\n'
    out += '.amdgcn_target "amdgcn-amd-amdhsa--gfx950"\n.text\n'
    seen = []
    for k in kernels:
        if k.name in seen: continue
        seen.append(k.name)
        out += f'.globl {k.name}\n.p2align 8\n.type {k.name},@function\n{k.name}:\n' + k.a.text() + '    s_endpgm\n'
    out += '.section .rodata,"a"\n'
    seen = []
    for k in kernels:
        if k.name in seen: continue
        seen.append(k.name)
        out += '.p2align 6\n' + kd(k.name, k.V.hi, min(102, k.S.hi + 2))
    return out

def srd(a, s, ptr, size):
    if s != ptr:
        a(f's_mov_b32 s{s}, s{ptr}\ns_mov_b32 s{s+1}, s{ptr+1}')
    a(f's_mov_b32 s{s+2}, {size}\ns_mov_b32 s{s+3}, 0x20000')

def prologue(k, nwg):
    a = k.a
    end = f'L_end_{k.name}'
    ctx = dict(sWG=2, end=end)
    ws = k.S(4); ctx['sWS'] = ws
    ctx['sTmp2'] = k.S(2)
    ctx['sWave'] = k.S(); ctx['vLane'] = k.V()
    a(f'''
    s_cmp_ge_u32 s2, {nwg}
    s_cbranch_scc1 {end}
    s_load_dwordx2 s[{ws}:{ws+1}], s[0:1], {ARG_WS}
    v_lshrrev_b32 v{ctx['vLane']}, 6, v0
    s_nop 0
    v_readfirstlane_b32 s{ctx['sWave']}, v{ctx['vLane']}
    v_and_b32 v{ctx['vLane']}, 63, v0
    ''')
    srd(a, ws, ws, WS_SIZE)
    return ctx
def epilogue(k, ctx):
    k.a(f'{ctx["end"]}:')

class Stamps:
    def __init__(self, k, ctx, kid, n=8):
        self.k, self.ctx, self.kid, self.n = k, ctx, kid, n
        self.rt = k.S(2 * n, 4); self.cy = k.S(2 * n, 4); self.i = 0
    def __call__(self):
        a = self.k.a
        a(f's_memrealtime s[{self.rt+2*self.i}:{self.rt+2*self.i+1}]\ns_memtime s[{self.cy+2*self.i}:{self.cy+2*self.i+1}]\ns_waitcnt lgkmcnt(0)')
        self.i += 1
    def at(self, i):
        save = self.i; self.i = i; self(); self.i = max(save, i + 1)
    def flush(self):
        k, a, c = self.k, self.k.a, self.ctx
        v, t = k.V(2), k.S()
        a(f's_waitcnt vmcnt(0) lgkmcnt(0)')
        self()
        a(f's_lshl_b32 s{t}, s2, 3\ns_add_u32 s{t}, s{t}, s{c["sWave"]}\ns_lshl_b32 s{t}, s{t}, 7\ns_add_u32 s{t}, s{t}, {WS_STAMP + self.kid * 262144}')
        a(f'v_mov_b32 v{v}, 0')
        for i in range(self.i):
            a(f'v_mov_b32 v{v+1}, s{self.rt+2*i}\nbuffer_store_dword v{v+1}, v{v}, {sr(c["sWS"],4)}, s{t} offen offset:{8*i}')
            a(f's_nop 1\nv_mov_b32 v{v+1}, s{self.cy+2*i}\nbuffer_store_dword v{v+1}, v{v}, {sr(c["sWS"],4)}, s{t} offen offset:{8*i+4}\ns_nop 1')
```

```python
from asm import *
from layout import *
from attn import f2u

GU_LDS = 18 * 8192

def gu_ids(a, sWG, sRb, sFb, sT):
    a(f'''
    s_bfe_u32 s{sRb}, s{sWG}, 0x10002
    s_lshl_b32 s{sRb}, s{sRb}, 2
    s_bfe_u32 s{sT}, s{sWG}, 0x20003
    s_add_u32 s{sRb}, s{sRb}, s{sT}
    s_and_b32 s{sFb}, s{sWG}, 3
    s_lshl_b32 s{sFb}, s{sFb}, 3
    s_lshr_b32 s{sT}, s{sWG}, 5
    s_add_u32 s{sFb}, s{sFb}, s{sT}
    ''')

def gen_gateup(a, V, Sg, ctx, opt=None):
    opt = opt or {}
    ws, sWG, sWave, vLane = ctx['sWS'], ctx['sWG'], ctx['sWave'], ctx['vLane']
    st, ld = ctx.get('st_flags', ''), ctx.get('ld_flags', '')
    stamp = ctx.get('stamp', lambda: None)
    WS = sr(ws, 4)
    mv, ms = V.mark(), Sg.mark()
    sRb, sFb, sT, sT2, sW, sM, sA0, sA1, sTile = [Sg() for _ in range(9)]
    vL16, vW, vT, vT2, lI, lG = [V() for _ in range(6)]
    NR = opt.get('gu_ring', 10)
    PRE = opt.get('gu_pre', 4)
    ACT = V(8 * NR, 4); WF = [V(28, 4), V(28, 4)]; ACC = V(56, 4)
    STT = V(16, 4); EXT = V(8, 4); SD = V(4, 2)
    vm, lg = Cnt(a, 'vmcnt', 63), Cnt(a, 'lgkmcnt', 15)
    done = a.label('gu_done')
    gu_ids(a, sWG, sRb, sFb, sT)
    a(f'''
    s_cmp_ge_u32 s{sFb}, 31
    s_cbranch_scc1 {done}
    v_lshlrev_b32 v{vL16}, 4, v{vLane}
    v_and_b32 v{lI}, 15, v{vLane}
    v_lshrrev_b32 v{lG}, 4, v{vLane}
    v_mov_b32 v{vW}, v{vL16}
    s_mul_i32 s{sW}, s{sFb}, {140*1024}
    s_lshl_b32 s{sM}, s{sWave}, 10
    s_add_u32 s{sW}, s{sW}, s{sM}
    s_add_u32 s{sW}, s{sW}, {WS_PGU}
    s_lshl_b32 s{sTile}, s{sRb}, 3
    s_add_u32 s{sTile}, s{sTile}, s{sWave}
    s_lshl_b32 s{sTile}, s{sTile}, 1
    s_mul_i32 s{sA0}, s{sTile}, 20480
    s_add_u32 s{sA0}, s{sA0}, {WS_X1A}
    s_add_u32 s{sA1}, s{sA0}, 20480
    ''')
    if 'wait_inputs' in ctx: ctx['wait_inputs']()
    def dma(r):
        a(f's_mov_b32 m0, s{sM}\ns_add_u32 s{sM}, s{sM}, 8192')
        if r == 17: a(f's_cmp_ge_u32 s{sWave}, 4\ns_cselect_b32 s{sW}, 0x40000000, s{sW}')
        vm.issue(('W', r), f'buffer_load_dwordx4 v{vL16}, {WS}, s{sW} offen {ld} lds')
        a(f's_add_u32 s{sW}, s{sW}, 8192')
    def act(s_):
        for tt, sa in enumerate((sA0, sA1)):
            vm.issue(('A', s_), f'buffer_load_dwordx4 {vr(ACT+8*(s_%NR)+4*tt,4)}, v{vL16}, {WS}, s{sa} offen offset:{1024*(s_&3)} {ld}')
        if s_ & 3 == 3: a(f's_add_u32 s{sA0}, s{sA0}, 4096\ns_add_u32 s{sA1}, s{sA1}, 4096')
    rneed = lambda s_: (7 * s_ + 6) // 8
    nd = [0]; na = [0]
    def feed(upto):
        while na[0] <= min(upto, 19):
            while nd[0] <= rneed(na[0]): dma(nd[0]); nd[0] += 1
            act(na[0]); na[0] += 1
    feed(1)
    a(f'''
    v_lshlrev_b32 v{vT}, 7, v{lI}
    v_lshl_add_u32 v{vT}, v{lG}, 5, v{vT}
    s_lshl_b32 s{sT}, s{sTile}, 11
    s_add_u32 s{sT}, s{sT}, {WS_ST}
    ''')
    for tt in range(2):
        for h in range(2): vm.issue('S', f'buffer_load_dwordx4 {vr(STT+8*tt+4*h,4)}, v{vT}, {WS}, s{sT} offen offset:{2048*tt + 16*h} {ld}')
    feed(PRE - 1)
    cur = [0]
    def rdW(s_):
        off = s_ * 7168
        base = (off // 57344) * 57344
        if base != cur[0]:
            a(f'v_add_u32 v{vW}, {base - cur[0]}, v{vW}'); cur[0] = base
        return [(('R', s_), f'ds_read_b128 {vr(WF[s_&1]+4*t,4)}, v{vW} offset:{off - base + 1024*t}') for t in range(7)]
    BAR = opt.get('gu_bar', 2)
    def stats():
        vm.wait('S')
        for tt in range(2):
            b = STT + 8 * tt
            a(f'''
            v_add_f32 v{b}, v{b}, v{b+2}
            v_add_f32 v{b+1}, v{b+1}, v{b+3}
            v_add_f32 v{b+4}, v{b+4}, v{b+6}
            v_add_f32 v{b+5}, v{b+5}, v{b+7}
            v_add_f32 v{b}, v{b}, v{b+4}
            v_add_f32 v{b+1}, v{b+1}, v{b+5}
            ''')
            for sw in ('32', '16'):
                a(f'''
                v_mov_b32 v{b+2}, v{b}
                v_mov_b32 v{b+3}, v{b+1}
                s_nop 1
                v_permlane{sw}_swap_b32 v{b}, v{b+2}
                v_permlane{sw}_swap_b32 v{b+1}, v{b+3}
                s_nop 0
                v_add_f32 v{b}, v{b}, v{b+2}
                v_add_f32 v{b+1}, v{b+1}, v{b+3}
                ''')
            sd, rl, e = SD + 2 * tt, SD + 2 * tt + 1, EXT + 4 * tt
            a(f'''
            v_mul_f32 v{b}, {hex(f2u(-1/640))}, v{b}
            v_mul_f32 v{b+1}, {hex(f2u(1/640))}, v{b+1}
            v_fma_f32 v{b+1}, -v{b}, v{b}, v{b+1}
            v_max_f32 v{b+1}, 0, v{b+1}
            v_add_f32 v{b+1}, {hex(f2u(1e-5))}, v{b+1}
            v_sqrt_f32 v{sd}, v{b+1}
            v_rsq_f32 v{rl}, v{b+1}
            v_cvt_pk_bf16_f32 v{b+2}, v{b}, v{b}
            v_cvt_pk_bf16_f32 v{b+3}, v{sd}, v{sd}
            v_mul_f32 v{rl}, {hex(f2u(-1.4426950408889634))}, v{rl}
            v_and_b32 v{b+2}, 0xffff0000, v{b+2}
            v_and_b32 v{b+3}, 0xffff0000, v{b+3}
            v_sub_f32 v{b+4}, v{b}, v{b+2}
            v_sub_f32 v{b+5}, v{sd}, v{b+3}
            v_cmp_gt_u32 vcc, 16, v{vLane}
            v_cvt_pk_bf16_f32 v{e}, v{b+2}, v{b+4}
            v_cvt_pk_bf16_f32 v{e+1}, v{b+2}, v{b+3}
            v_cvt_pk_bf16_f32 v{e+2}, v{b+5}, v{b+3}
            v_mov_b32 v{e+3}, 0
            v_cndmask_b32 v{e}, 0, v{e}, vcc
            v_cndmask_b32 v{e+1}, 0, v{e+1}, vcc
            v_cndmask_b32 v{e+2}, 0, v{e+2}, vcc
            ''')
    have = [-1]
    def arrive(s_):
        vm.wait(('W', rneed(s_)))
        a('s_barrier'); have[0] = s_
    arrive(BAR)
    stamp()
    for x in rdW(0): lg.issue(*x)
    for s_ in range(20):
        if s_ + 1 < 20 and have[0] < s_ + 1: arrive(min(19, s_ + BAR))
        nxt = rdW(s_ + 1) if s_ < 19 else []
        wait2(a, vm, [('A', s_)], lg, [('R', s_)])
        for t in range(7):
            for tt in range(2):
                c = vr(ACC + 8 * t + 4 * tt, 4)
                a(f'v_mfma_f32_16x16x32_bf16 {c}, {vr(WF[s_&1]+4*t,4)}, {vr(ACT+8*(s_%NR)+4*tt,4)}, {c if s_ else 0}')
                if tt == 0 and nxt: lg.issue(*nxt[t])
            if t == 3: feed(min(s_ + PRE, s_ + NR - 1))
        if s_ == 2: stats()
        if s_ == 18:
            a(f'''
            v_min_u32 v{vT}, 1, v{lG}
            v_lshlrev_b32 v{vT}, 30, v{vT}
            v_lshl_add_u32 v{vT}, v{lI}, 4, v{vT}
            s_mul_i32 s{sT}, s{sFb}, 1792
            s_add_u32 s{sT}, s{sT}, {WS_U}
            ''')
            for t in range(7): vm.issue('U', f'buffer_load_dwordx4 {vr(WF[0]+4*t,4)}, v{vT}, {WS}, s{sT} offen offset:{256*t} {ld}')
    vm.wait('U')
    for t in range(7):
        for tt in range(2):
            c = vr(ACC + 8 * t + 4 * tt, 4)
            a(f'v_mfma_f32_16x16x32_bf16 {c}, {vr(WF[0]+4*t,4)}, {vr(EXT+4*tt,4)}, {c}')
    stamp()
    a(f'''
    s_mul_i32 s{sT}, s{sFb}, 7
    s_min_u32 s{sT}, s{sT}, 209
    s_lshl_b32 s{sT}, s{sT}, 8
    s_mul_i32 s{sT2}, s{sTile}, {54*1024}
    s_add_u32 s{sT}, s{sT}, s{sT2}
    s_add_u32 s{sT}, s{sT}, {WS_HM}
    s_add_u32 s{sT2}, s{sT}, {54*1024}
    v_lshrrev_b32 v{vT}, 1, v{lG}
    v_lshlrev_b32 v{vT2}, 8, v{vT}
    v_mul_u32_u24 v{vW}, {54*1024}, v{vT}
    v_and_b32 v{vT}, 1, v{lG}
    v_lshlrev_b32 v{vT}, 3, v{vT}
    v_lshl_add_u32 v{vT}, v{lI}, 4, v{vT}
    v_add_u32 v{vT2}, v{vT2}, v{vT}
    v_add_u32 v{vW}, v{vW}, v{vT}
    ''')
    def gate(g, u, n, sd, rl):
        for r in range(n): a(f'v_mul_f32 v{g[r]}, v{g[r]}, v{rl}')
        for r in range(n): a(f'v_exp_f32 v{g[r]}, v{g[r]}')
        for r in range(n): a(f'v_fma_f32 v{g[r]}, v{g[r]}, v{sd}, v{sd}')
        for r in range(n): a(f'v_rcp_f32 v{g[r]}, v{g[r]}')
        for r in range(n): a(f'v_mul_f32 v{g[r]}, v{g[r]}, v{u[r]}')
    P = WF[1]
    for tt in range(2):
        sd, rl = SD + 2 * tt, SD + 2 * tt + 1
        A_ = lambda t: [ACC + 8 * t + 4 * tt + r for r in range(4)]
        g, u = A_(0) + A_(1) + A_(4), A_(2) + A_(3) + A_(5)
        gate(g, u, 12, sd, rl)
        for r in range(6): a(f'v_cvt_pk_bf16_f32 v{P+8*tt+r}, v{g[2*r]}, v{g[2*r+1]}')
        so = sT2 if tt else sT
        a(f'buffer_store_dwordx4 {vr(P+8*tt,4)}, v{vL16}, {WS}, s{so} offen {st}')
        a(f'buffer_store_dwordx2 {vr(P+8*tt+4,2)}, v{vT2}, {WS}, s{so} offen offset:1024 {st}')
    a(f'v_cmp_gt_u32 vcc, 32, v{vLane}')
    for r in range(4): a(f'v_permlane32_swap_b32 v{ACC+48+r}, v{ACC+52+r}')
    a(f'v_cndmask_b32 v{SD}, v{SD+2}, v{SD}, vcc\nv_cndmask_b32 v{SD+1}, v{SD+3}, v{SD+1}, vcc')
    g, u = [ACC + 48 + r for r in range(4)], [ACC + 52 + r for r in range(4)]
    gate(g, u, 4, SD, SD + 1)
    for r in range(2): a(f'v_cvt_pk_bf16_f32 v{P+16+r}, v{g[2*r]}, v{g[2*r+1]}')
    a(f'buffer_store_dwordx2 {vr(P+16,2)}, v{vW}, {WS}, s{sT} offen offset:1536 {st}')
    a(f'{done}:')
    V.release(mv); Sg.release(ms)
```

```python
from asm import *
from layout import *
from build import srd
from pack import *

HLP_A, HLP_B, HLP_P = 10240, PACK5_LDS, 1024
HLP_LDS = 4 * (HLP_A + HLP_B) + HLP_P

def gen_helpers(a, V, Sg, ctx, lds0):
    ws, sWG, sWave, vLane = ctx['sWS'], ctx['sWG'], ctx['sWave'], ctx['vLane']
    st = ctx.get('st_flags', '')
    WS = sr(ws, 4)
    mv, ms = V.mark(), Sg.mark()
    sP = Sg(8, 4)
    sPd = Sg(2)
    sA, sB = Sg(4), Sg(4)
    sHw, sT, sT2, sTile, sFb, sTt, sL, sSrcA, sSrcB, sDst, sC0, sS1, sS2, sJ = [Sg() for _ in range(14)]
    vT, vT2, vD, vL16, vA = [V() for _ in range(5)]
    skipA, skipB, post = a.label('hlp_skipA'), a.label('hlp_skipB'), a.label('hlp_post')
    a(f'''
    s_load_dwordx8 s[{sP}:{sP+7}], s[0:1], {ARG_WO}
    s_load_dwordx2 s[{sPd}:{sPd+1}], s[0:1], {ARG_WD}
    s_sub_u32 s{sHw}, s{sWave}, 4
    s_mul_i32 s{sL}, s{sHw}, {HLP_A + HLP_B}
    s_add_u32 s{sL}, s{sL}, {lds0}
    v_lshlrev_b32 v{vL16}, 4, v{vLane}
    s_and_b32 s{sTile}, s{sWG}, 7
    s_mul_i32 s{sTile}, s{sTile}, 28
    s_lshr_b32 s{sT}, s{sWG}, 3
    s_add_u32 s{sTile}, s{sTile}, s{sT}
    s_cmp_ge_u32 s{sT}, 28
    s_cselect_b32 s{sTile}, 255, s{sTile}
    s_waitcnt lgkmcnt(0)
    s_cmp_ge_u32 s{sTile}, 217
    s_cbranch_scc1 {skipA}
    s_mul_i32 s{sFb}, s{sTile}, 9363
    s_lshr_b32 s{sFb}, s{sFb}, 16
    s_mul_i32 s{sT}, s{sFb}, 7
    s_sub_u32 s{sTt}, s{sTile}, s{sT}
    s_mul_i32 s{sSrcA}, s{sFb}, 112
    s_min_u32 s{sSrcA}, s{sSrcA}, {1672*2}
    s_mul_i32 s{sT}, s{sHw}, {160*3456}
    s_add_u32 s{sSrcA}, s{sSrcA}, s{sT}
    s_lshl_b32 s{sT}, s{sTt}, 2
    s_lshr_b32 s{sT2}, 0x6440000, s{sT}
    s_and_b32 s{sT2}, s{sT2}, 15
    s_lshl_b32 s{sT2}, s{sT2}, 4
    s_add_u32 s{sSrcA}, s{sSrcA}, s{sT2}
    s_add_u32 s{sSrcB}, s{sSrcA}, 32
    s_cmp_eq_u32 s{sTt}, 6
    s_cselect_b32 s{sSrcB}, s{sSrcA}, s{sSrcB}
    s_bitcmp1_b32 0x2c, s{sTt}
    s_cselect_b32 s{sA}, s{sP+6}, s{sP+4}
    s_cselect_b32 s{sA+1}, s{sP+7}, s{sP+5}
    s_bitcmp1_b32 0x6c, s{sTt}
    s_cselect_b32 s{sB}, s{sP+6}, s{sP+4}
    s_cselect_b32 s{sB+1}, s{sP+7}, s{sP+5}
    s_and_b32 s{sC0}, s{sTt}, 1
    s_lshl_b32 s{sC0}, s{sC0}, 3
    s_cmp_ge_u32 s{sTt}, 4
    s_cselect_b32 s{sC0}, 0, s{sC0}
    s_cselect_b32 s{sS1}, 8, 16
    s_bitcmp1_b32 0x30, s{sTt}
    s_cselect_b32 s{sS2}, 16, 5120
    ''')
    srd(a, sA, sA, 640 * 3456); srd(a, sB, sB, 640 * 3456)
    a(f'''
    v_lshrrev_b32 v{vT}, 1, v{vLane}
    v_bfe_u32 v{vD}, v{vT}, 2, 2
    v_lshlrev_b32 v{vD}, 3, v{vD}
    v_and_b32 v{vT2}, 3, v{vT}
    v_add_u32 v{vD}, v{vD}, v{vT2}
    v_lshrrev_b32 v{vT2}, 4, v{vT}
    v_lshl_add_u32 v{vD}, v{vT2}, 2, v{vD}
    v_mul_u32_u24 v{vD}, 3456, v{vD}
    v_and_b32 v{vT2}, 1, v{vLane}
    v_lshl_add_u32 v{vD}, v{vT2}, 4, v{vD}
    ''')
    for i in range(5):
        a(f'''
        s_add_u32 s{sT}, s{sL}, {1024*i}
        s_mov_b32 m0, s{sT}
        s_add_u32 s{sT}, s{sT}, 5120
        buffer_load_dwordx4 v{vD}, {sr(sA,4)}, s{sSrcA} offen lds
        s_mov_b32 m0, s{sT}
        s_add_u32 s{sSrcA}, s{sSrcA}, {32*3456}
        buffer_load_dwordx4 v{vD}, {sr(sB,4)}, s{sSrcB} offen lds
        s_add_u32 s{sSrcB}, s{sSrcB}, {32*3456}
        ''')
    Fr = V(20, 4); Cf = V(20, 4); acc = V(4, 4)
    a(f'''
    v_bfe_u32 v{vT}, v{vLane}, 2, 2
    v_min_u32 v{vT}, 1, v{vT}
    v_lshl_add_u32 v{vT}, v{vT}, 30, v{vL16}
    s_mul_i32 s{sT}, s{sHw}, 5120
    s_add_u32 s{sT}, s{sT}, {WS_MODB}
    ''')
    for i in range(5):
        if i == 4: a(f's_add_u32 s{sT}, s{sT}, 4096')
        a(f'buffer_load_dwordx4 {vr(Cf+4*i,4)}, v{vT}, {WS}, s{sT} offen offset:{1024*(i&3)}')
    a(f'''
    v_lshrrev_b32 v{vA}, 2, v{vLane}
    v_lshlrev_b32 v{vA}, 5, v{vA}
    v_and_b32 v{vT}, 1, v{vLane}
    v_mul_lo_u32 v{vT}, v{vT}, s{sS1}
    v_bfe_u32 v{vT2}, v{vLane}, 1, 1
    v_mul_lo_u32 v{vT2}, v{vT2}, s{sS2}
    v_add3_u32 v{vA}, v{vA}, v{vT}, v{vT2}
    s_add_u32 s{sT}, s{sL}, s{sC0}
    v_add_u32 v{vA}, s{sT}, v{vA}
    s_mul_i32 s{sDst}, s{sFb}, 20
    s_mul_i32 s{sT}, s{sHw}, 5
    s_add_u32 s{sDst}, s{sDst}, s{sT}
    s_mul_i32 s{sDst}, s{sDst}, 7
    s_add_u32 s{sDst}, s{sDst}, s{sTt}
    s_lshl_b32 s{sDst}, s{sDst}, 10
    s_add_u32 s{sDst}, s{sDst}, {WS_PGU}
    s_waitcnt vmcnt(0)
    ''')
    for i in range(5):
        for h in range(2): a(f'ds_read_b64_tr_b16 {vr(Fr+4*i+2*h,2)}, v{vA} offset:{1024*i + 512*h}')
    for i in range(5):
        a(f's_waitcnt lgkmcnt({8-2*i})')
        a(f'buffer_store_dwordx4 {vr(Fr+4*i,4)}, v{vL16}, {WS}, s{sDst} offen {st}')
        a(f'v_mfma_f32_16x16x32_bf16 {vr(acc,4)}, {vr(Fr+4*i,4)}, {vr(Cf+4*i,4)}, {vr(acc,4) if i else 0}')
        if i < 4: a(f's_add_u32 s{sDst}, s{sDst}, 7168')
    a(f'''
    v_and_b32 v{vT}, 15, v{vLane}
    v_lshlrev_b32 v{vT}, 6, v{vT}
    v_lshrrev_b32 v{vT2}, 4, v{vLane}
    v_lshl_add_u32 v{vT}, v{vT2}, 4, v{vT}
    s_lshl_b32 s{sT}, s{sHw}, 8
    s_add_u32 s{sT}, s{sT}, {lds0 + 4*(HLP_A + HLP_B)}
    v_add_u32 v{vT}, s{sT}, v{vT}
    s_mov_b32 exec_lo, 0x000f000f
    s_mov_b32 exec_hi, 0x000f000f
    s_nop 0
    ds_write_b128 v{vT}, {vr(acc,4)}
    s_mov_b64 exec, -1
    {skipA}:
    ''')
    sA1, sA0, sBb = sC0, sS1, sS2
    isd = a.label('hlp_isd'); go = a.label('hlp_go')
    a(f'''
    s_lshl_b32 s{sJ}, s{sHw}, 8
    s_add_u32 s{sJ}, s{sJ}, s{sWG}
    s_cmp_ge_u32 s{sJ}, 592
    s_cbranch_scc1 {skipB}
    s_add_u32 s{sL}, s{sL}, {HLP_A}
    s_cmp_ge_u32 s{sJ}, 160
    s_cbranch_scc1 {isd}
    s_mul_i32 s{sDst}, s{sJ}, 5120
    s_add_u32 s{sDst}, s{sDst}, {WS_PWO}
    s_mul_i32 s{sT}, s{sJ}, 3277
    s_lshr_b32 s{sT}, s{sT}, 16
    s_mul_i32 s{sT2}, s{sT}, 20
    s_sub_u32 s{sJ}, s{sJ}, s{sT2}
    s_mul_i32 s{sSrcA}, s{sT}, 160
    s_mul_i32 s{sT}, s{sJ}, {40*1280}
    s_sub_u32 s{sT2}, s{sJ}, 16
    s_mul_i32 s{sT2}, s{sT2}, {160*1280}
    s_add_u32 s{sT2}, s{sT2}, {16*1280}
    s_cmp_ge_u32 s{sJ}, 16
    s_cselect_b32 s{sT}, s{sT2}, s{sT}
    s_cselect_b32 s{sA1}, 80, 20
    s_cselect_b32 s{sA0}, 40, 4
    s_cselect_b32 s{sBb}, 20, 8
    s_add_u32 s{sSrcA}, s{sSrcA}, s{sT}
    s_mov_b32 s{sA}, s{sP}
    s_mov_b32 s{sA+1}, s{sP+1}
    s_mov_b32 s{sA+2}, {640*1280}
    s_branch {go}
    {isd}:
    s_sub_u32 s{sJ}, s{sJ}, 160
    s_mul_i32 s{sDst}, s{sJ}, 5120
    s_add_u32 s{sDst}, s{sDst}, {WS_PWD}
    s_mul_i32 s{sT}, s{sJ}, 1214
    s_lshr_b32 s{sT}, s{sT}, 16
    s_mul_i32 s{sT2}, s{sT}, 54
    s_sub_u32 s{sJ}, s{sJ}, s{sT2}
    s_mul_i32 s{sSrcA}, s{sT}, 160
    s_mul_i32 s{sT}, s{sJ}, {32*1280}
    s_add_u32 s{sSrcA}, s{sSrcA}, s{sT}
    s_mov_b32 s{sA1}, 16
    s_mov_b32 s{sA0}, 8
    s_mov_b32 s{sBb}, 4
    s_mov_b32 s{sA}, s{sPd}
    s_mov_b32 s{sA+1}, s{sPd+1}
    s_mov_b32 s{sA+2}, {1728*1280}
    {go}:
    s_mov_b32 s{sA+3}, 0x20000
    ''')
    def rowfn(d, g, j, t):
        a(f'''
        v_lshrrev_b32 v{d}, 1, v{g}
        v_mul_lo_u32 v{d}, v{d}, s{sA1}
        v_and_b32 v{g}, 1, v{g}
        v_mul_lo_u32 v{g}, v{g}, s{sA0}
        v_mul_lo_u32 v{t}, v{t}, s{sBb}
        v_and_b32 v{j}, 3, v{j}
        v_add3_u32 v{d}, v{d}, v{g}, v{t}
        v_add_u32 v{d}, v{d}, v{j}
        ''')
    pack5_load(a, V, vLane, sA, sSrcA, 1280, sL, rowfn, sT)
    a('s_waitcnt vmcnt(0)')
    pack5_store(a, V, vLane, ws, sL, None, 'paired', sDst, 1024, st)
    a(f'{skipB}:\ns_waitcnt lgkmcnt(0)')
    def after_barrier():
        fin = a.label('hlp_fin')
        a(f'''
        s_cmp_lg_u32 s{sWave}, 4
        s_cbranch_scc1 {fin}
        s_cmp_ge_u32 s{sTile}, 217
        s_cbranch_scc1 {fin}
        v_and_b32 v{vT}, 15, v{vLane}
        v_lshrrev_b32 v{vT2}, 4, v{vLane}
        v_lshlrev_b32 v{vT2}, 8, v{vT2}
        v_lshl_add_u32 v{vT2}, v{vT}, 2, v{vT2}
        v_add_u32 v{vT2}, {lds0 + 4*(HLP_A + HLP_B)}, v{vT2}
        ''')
        for n in range(4): a(f'ds_read_b32 v{acc+n}, v{vT2} offset:{64*n}')
        u1, u2, t1, t2 = acc, acc + 2, acc + 1, acc + 3
        a(f'''
        s_waitcnt lgkmcnt(0)
        v_add_f32 v{u1}, v{acc}, v{acc+1}
        v_add_f32 v{u2}, v{acc+2}, v{acc+3}
        v_mov_b32 v{t1}, v{u1}
        v_mov_b32 v{t2}, v{u2}
        s_nop 1
        v_permlane32_swap_b32 v{u1}, v{t1}
        v_permlane32_swap_b32 v{u2}, v{t2}
        s_nop 0
        v_add_f32 v{u1}, v{u1}, v{t1}
        v_add_f32 v{u2}, v{u2}, v{t2}
        v_mov_b32 v{t1}, v{u1}
        v_mov_b32 v{t2}, v{u2}
        s_nop 1
        v_permlane16_swap_b32 v{u1}, v{t1}
        v_permlane16_swap_b32 v{u2}, v{t2}
        s_nop 0
        v_add_f32 v{u1}, v{u1}, v{t1}
        v_add_f32 v{u2}, v{u2}, v{t2}
        v_cvt_pk_bf16_f32 v{Fr}, v{u1}, v{u1}
        v_cvt_pk_bf16_f32 v{Fr+4}, v{u2}, v{u2}
        v_and_b32 v{t1}, 0xffff0000, v{Fr}
        v_and_b32 v{t2}, 0xffff0000, v{Fr+4}
        v_sub_f32 v{u1}, v{u1}, v{t1}
        v_sub_f32 v{u2}, v{u2}, v{t2}
        v_cvt_pk_bf16_f32 v{Fr+1}, v{u1}, v{t2}
        v_cvt_pk_bf16_f32 v{Fr+2}, v{t2}, v{u2}
        v_mov_b32 v{Fr+3}, 0
        v_lshlrev_b32 v{vT}, 4, v{vT}
        s_lshl_b32 s{sT}, s{sTile}, 8
        s_add_u32 s{sT}, s{sT}, {WS_U}
        s_mov_b64 exec, 0xffff
        buffer_store_dwordx4 {vr(Fr,4)}, v{vT}, {WS}, s{sT} offen {st}
        s_mov_b64 exec, -1
        {fin}:
        ''')
        V.release(mv); Sg.release(ms)
    return after_barrier
```

```python
S, D, H, DH, F = 2048, 640, 32, 20, 1728
ARG_X, ARG_WQKV, ARG_WO, ARG_BX, ARG_WG, ARG_WU, ARG_WD, ARG_C, ARG_WMOD, ARG_OUT, ARG_DBG, ARG_WS = [8*i for i in range(12)]
WS_SIZE = 268435456
def al(x, a=4096): return (x + a - 1) // a * a
WS_MOD = 0
WS_MODB = 16384
WS_FLAG = 16384 + 32768
WS_U = WS_FLAG + 65536
WS_ST = WS_U + 262144
QT = 1280
KVT = 2688
KV_K1, KV_K2, KV_V = 0, 1024, 1280
KV_ONE = 2560
WS_Q = WS_ST + 262144
WS_KV = al(WS_Q + H * 64 * QT)
WS_O = al(WS_KV + H * 64 * KVT + 1024)
WS_X1A = al(WS_O + 128 * 20 * 1024)
WS_X1R = al(WS_X1A + 64 * 40 * 1024)
WS_HM = al(WS_X1R + 256 * 24576)
WS_PQKV = al(WS_HM + 128 * 54 * 1024)
WS_PWO = WS_PQKV + 8 * 15 * 20 * 1024
WS_PWD = WS_PWO + 8 * 20 * 5 * 1024
WS_PGU = WS_PWD + 8 * 54 * 5 * 1024
WS_LN1 = WS_PGU + 31 * 20 * 7 * 1024
WS_END = al(WS_LN1 + S * 8)
WS_STAMP = WS_END
QSCALE = (DH ** -0.5) * 1.4426950408889634
MBIAS = 24.0
```

```python
from asm import *
from layout import *
from attn import f2u
from build import srd
from pack import *

PREP_LDS = 1024 + 2 * PACK5_LDS

def gen_prep(a, V, Sg, ctx):
    ws, sWG, sWave, vLane = ctx['sWS'], ctx['sWG'], ctx['sWave'], ctx['vLane']
    WS = sr(ws, 4)
    mv, ms = V.mark(), Sg.mark()
    sW, sCc = Sg(4), Sg(4)
    sCb, sT, sT2, sJ, sL = Sg(), Sg(), Sg(), Sg(), Sg()
    vT, vR, vO = V(), V(), V()
    other, lnl, pk, cst, done, nob = [a.label(x) for x in ('prep_other', 'prep_ln', 'prep_pack', 'prep_const', 'prep_done', 'prep_nob')]
    a(f'''
    s_cmp_ge_u32 s{sWave}, 4
    s_cbranch_scc1 {other}
    s_cmp_ge_u32 s{sWG}, 240
    s_cbranch_scc1 {done}
    s_load_dwordx4 s[{sCc}:{sCc+3}], s[0:1], {ARG_C}
    s_and_b32 s{sCb}, s{sWG}, 7
    s_mul_i32 s{sCb}, s{sCb}, 30
    s_lshr_b32 s{sT}, s{sWG}, 3
    s_add_u32 s{sCb}, s{sCb}, s{sT}
    s_lshl_b32 s{sT}, s{sWave}, 5
    v_and_b32 v{vR}, 31, v{vLane}
    v_add_u32 v{vR}, s{sT}, v{vR}
    v_lshrrev_b32 v{vT}, 5, v{vLane}
    v_mul_u32_u24 v{vO}, 7680, v{vR}
    v_lshl_add_u32 v{vO}, v{vT}, 4, v{vO}
    v_lshlrev_b32 v{vR}, 1, v{vR}
    s_lshl_b32 s{sT}, s{sCb}, 5
    s_waitcnt lgkmcnt(0)
    s_mov_b32 s{sW}, s{sCc+2}
    s_mov_b32 s{sW+1}, s{sCc+3}
    ''')
    m2 = V.mark()
    NR = 5
    W = [V(4) for _ in range(NR)]
    C = [V() for _ in range(NR)]
    acc = V(8)
    srd(a, sW, sW, 640 * 7680); srd(a, sCc, sCc, 1280)
    for i in range(NR):
        a(f'buffer_load_ushort v{C[i]}, v{vR}, {sr(sCc,4)}, 0 offen offset:{256*i}')
    for i in range(NR):
        a(f'buffer_load_dwordx4 {vr(W[i],4)}, v{vO}, {sr(sW,4)}, s{sT} offen')
        if i < NR - 1: a(f's_add_u32 s{sT}, s{sT}, {128*7680}')
    a(f's_waitcnt vmcnt({NR})')
    for i in range(NR):
        a(f'v_lshlrev_b32 v{C[i]}, 16, v{C[i]}')
    for i in range(NR): a(f'v_mul_f32 v{acc+i}, {hex(f2u(-1.4426950408889634))}, v{C[i]}')
    for i in range(NR): a(f'v_exp_f32 v{acc+i}, v{acc+i}')
    for i in range(NR): a(f'v_add_f32 v{acc+i}, 1.0, v{acc+i}')
    for i in range(NR): a(f'v_rcp_f32 v{acc+i}, v{acc+i}')
    for i in range(NR): a(f'v_mul_f32 v{C[i]}, v{C[i]}, v{acc+i}')
    for i in range(NR): a(f'v_cvt_pk_bf16_f32 v{C[i]}, v{C[i]}, v{C[i]}')
    for i in range(NR): a(f'v_and_b32 v{C[i]}, 0xffff0000, v{C[i]}')
    for i in range(NR):
        a(f's_waitcnt vmcnt({NR-1-i})')
        for r in range(4):
            a(f'v_lshlrev_b32 v{vT}, 16, v{W[i]+r}\nv_and_b32 v{W[i]+r}, 0xffff0000, v{W[i]+r}')
            if i == 0:
                a(f'v_mul_f32 v{acc+2*r}, v{vT}, v{C[i]}\nv_mul_f32 v{acc+2*r+1}, v{W[i]+r}, v{C[i]}')
            else:
                a(f'v_fmac_f32 v{acc+2*r}, v{vT}, v{C[i]}\nv_fmac_f32 v{acc+2*r+1}, v{W[i]+r}, v{C[i]}')
    for dpp in ('quad_perm:[1,0,3,2]', 'quad_perm:[2,3,0,1]', 'row_half_mirror', 'row_mirror'):
        for e in range(8): a(f'v_add_f32_dpp v{acc+e}, v{acc+e}, v{acc+e} {dpp} row_mask:0xf bank_mask:0xf')
    a(f'''
    v_lshrrev_b32 v{vT}, 5, v{vLane}
    v_bfe_u32 v{vR}, v{vLane}, 4, 1
    v_lshlrev_b32 v{vT}, 8, v{vT}
    v_lshl_add_u32 v{vT}, v{vR}, 5, v{vT}
    s_lshl_b32 s{sT}, s{sWave}, 6
    v_add_u32 v{vT}, s{sT}, v{vT}
    s_mov_b32 exec_lo, 0x00010001
    s_mov_b32 exec_hi, 0x00010001
    ds_write_b128 v{vT}, {vr(acc,4)}
    ds_write_b128 v{vT}, {vr(acc+4,4)} offset:16
    s_mov_b64 exec, -1
    s_waitcnt lgkmcnt(0)
    s_barrier
    s_cmp_lg_u32 s{sWave}, 0
    s_cbranch_scc1 {done}
    v_and_b32 v{vT}, 7, v{vLane}
    v_lshlrev_b32 v{vT}, 2, v{vT}
    v_bfe_u32 v{vR}, v{vLane}, 3, 1
    v_lshl_add_u32 v{vT}, v{vR}, 8, v{vT}
    v_lshrrev_b32 v{vR}, 4, v{vLane}
    v_lshl_add_u32 v{vT}, v{vR}, 6, v{vT}
    ''')
    for i in range(2): a(f'ds_read_b32 v{acc+i}, v{vT} offset:{32*i}')
    a(f'''
    s_mov_b32 s{sT}, 0
    s_cmp_ge_u32 s{sCb}, 40
    s_cselect_b32 s{sT}, 1.0, s{sT}
    s_cmp_ge_u32 s{sCb}, 80
    s_cselect_b32 s{sT}, 0, s{sT}
    s_cmp_ge_u32 s{sCb}, 160
    s_cselect_b32 s{sT}, 1.0, s{sT}
    s_cmp_ge_u32 s{sCb}, 200
    s_cselect_b32 s{sT}, 0, s{sT}
    s_waitcnt lgkmcnt(0)
    v_add_f32 v{acc}, v{acc}, v{acc+1}
    v_mov_b32 v{acc+1}, v{acc}
    s_nop 1
    v_permlane32_swap_b32 v{acc}, v{acc+1}
    v_and_b32 v{vT}, 15, v{vLane}
    v_add_f32 v{acc}, v{acc}, v{acc+1}
    v_mov_b32 v{acc+1}, v{acc}
    v_lshlrev_b32 v{vT}, 2, v{vT}
    s_nop 0
    v_permlane16_swap_b32 v{acc}, v{acc+1}
    s_lshl_b32 s{sCb}, s{sCb}, 6
    v_add_f32 v{acc}, v{acc}, v{acc+1}
    v_add_f32 v{acc}, s{sT}, v{acc}
    s_add_u32 s{sT}, s{sCb}, {WS_MOD}
    s_mov_b64 exec, 0xffff
    buffer_store_dword v{acc}, v{vT}, {WS}, s{sT} offen
    s_sub_u32 s{sCb}, s{sCb}, {120*64}
    s_cmp_ge_u32 s{sCb}, {80*64}
    s_cbranch_scc1 {nob}
    s_cmp_ge_u32 s{sCb}, {40*64}
    s_cselect_b32 s{sT}, {40*64}, 0
    s_cselect_b32 s{sT2}, 0, 32
    s_sub_u32 s{sCb}, s{sCb}, s{sT}
    s_lshl_b32 s{sCb}, s{sCb}, 3
    s_add_u32 s{sCb}, s{sCb}, s{sT2}
    s_add_u32 s{sCb}, s{sCb}, {WS_MODB}
    v_cvt_pk_bf16_f32 v{acc+1}, v{acc}, v{acc}
    v_bfe_u32 v{vT}, v{vLane}, 3, 1
    v_and_b32 v{vR}, 7, v{vLane}
    v_and_b32 v{acc+2}, 0xffff0000, v{acc+1}
    v_lshlrev_b32 v{vT}, 8, v{vT}
    v_sub_f32 v{acc+2}, v{acc}, v{acc+2}
    v_lshl_add_u32 v{vT}, v{vR}, 1, v{vT}
    v_cvt_pk_bf16_f32 v{acc+2}, v{acc+2}, v{acc+2}
    buffer_store_short v{acc+1}, v{vT}, {WS}, s{sCb} offen
    buffer_store_short v{acc+2}, v{vT}, {WS}, s{sCb} offen offset:16
    {nob}:
    s_mov_b64 exec, -1
    s_branch {done}
    {other}:
    s_load_dwordx4 s[{sCc}:{sCc+3}], s[0:1], {ARG_X}
    s_cmp_eq_u32 s{sWave}, 4
    s_cbranch_scc1 {lnl}
    s_cmp_eq_u32 s{sWave}, 7
    s_cbranch_scc1 {cst}
    ''')
    V.release(m2)
    a(f'''
    s_lshr_b32 s{sJ}, s{sWG}, 1
    s_lshl_b32 s{sJ}, s{sJ}, 1
    s_add_u32 s{sJ}, s{sJ}, s{sWave}
    s_sub_u32 s{sJ}, s{sJ}, 5
    s_cmp_ge_u32 s{sJ}, 240
    s_cbranch_scc1 {done}
    s_mul_i32 s{sT}, s{sJ}, 1093
    s_lshr_b32 s{sT}, s{sT}, 16
    s_mul_i32 s{sT2}, s{sT}, 60
    s_sub_u32 s{sJ}, s{sJ}, s{sT2}
    s_and_b32 s{sCb}, s{sWG}, 1
    s_lshl_b32 s{sCb}, s{sCb}, 2
    s_add_u32 s{sCb}, s{sCb}, s{sT}
    s_mul_i32 s{sT}, s{sJ}, 3277
    s_lshr_b32 s{sT}, s{sT}, 16
    s_mul_i32 s{sT2}, s{sT}, 20
    s_sub_u32 s{sJ}, s{sJ}, s{sT2}
    ''')
    sSeg, sSrc, sDst = Sg(), Sg(), Sg()
    a(f'''
    s_mov_b32 s{sSeg}, s{sT}
    s_mul_i32 s{sSrc}, s{sJ}, {32*3840}
    s_mul_i32 s{sT2}, s{sSeg}, 1280
    s_add_u32 s{sSrc}, s{sSrc}, s{sT2}
    s_mul_i32 s{sT2}, s{sCb}, 160
    s_add_u32 s{sSrc}, s{sSrc}, s{sT2}
    s_mul_i32 s{sDst}, s{sCb}, 15
    s_mul_i32 s{sT2}, s{sSeg}, 5
    s_add_u32 s{sDst}, s{sDst}, s{sT2}
    s_mul_i32 s{sDst}, s{sDst}, 20
    s_add_u32 s{sDst}, s{sDst}, s{sJ}
    s_lshl_b32 s{sDst}, s{sDst}, 10
    s_add_u32 s{sDst}, s{sDst}, {WS_PQKV}
    s_sub_u32 s{sL}, s{sWave}, 5
    s_mul_i32 s{sL}, s{sL}, {PACK5_LDS}
    s_add_u32 s{sL}, s{sL}, 1024
    s_waitcnt lgkmcnt(0)
    s_mov_b32 s{sW}, s{sCc+2}
    s_mov_b32 s{sW+1}, s{sCc+3}
    ''')
    srd(a, sW, sW, 640 * 3840)
    pack5_load(a, V, vLane, sW, sSrc, 3840, sL, row_natural(a), sT)
    pv = a.label('prep_pv')
    a(f's_barrier\ns_waitcnt vmcnt(0)\ns_cmp_eq_u32 s{sSeg}, 2\ns_cbranch_scc1 {pv}')
    pack5_store(a, V, vLane, ws, sL, None, 'qk', sDst, 20480)
    a(f's_branch {done}\n{pv}:')
    pack5_store(a, V, vLane, ws, sL, None, 'natural', sDst, 20480)
    a(f's_branch {done}')
    X = V(40, 4); st4 = V(4, 2)
    a(f'''
    {lnl}:
    v_lshrrev_b32 v{vT}, 3, v{vLane}
    v_and_b32 v{vR}, 7, v{vLane}
    v_mul_u32_u24 v{vO}, 1280, v{vT}
    v_lshl_add_u32 v{vO}, v{vR}, 4, v{vO}
    s_mul_i32 s{sT}, s{sWG}, {8*1280}
    s_mov_b32 s{sJ}, 0x3f803f80
    s_waitcnt lgkmcnt(0)
    ''')
    srd(a, sCc, sCc, S * 1280)
    for i in range(10):
        a(f'buffer_load_dwordx4 {vr(X+4*i,4)}, v{vO}, {sr(sCc,4)}, s{sT} offen offset:{128*i}')
    for r in range(4): a(f'v_mov_b32 v{st4+r}, 0')
    a('s_barrier')
    for r in range(40):
        if r % 4 == 0: a(f's_waitcnt vmcnt({9 - r//4})')
        a(f'v_dot2_f32_bf16 v{st4+(r&1)}, v{X+r}, s{sJ}, v{st4+(r&1)}')
        a(f'v_dot2_f32_bf16 v{st4+2+(r&1)}, v{X+r}, v{X+r}, v{st4+2+(r&1)}')
    a(f's_nop 2\nv_add_f32 v{st4}, v{st4}, v{st4+1}\nv_add_f32 v{st4+2}, v{st4+2}, v{st4+3}\ns_nop 0')
    for dpp in ('quad_perm:[1,0,3,2]', 'quad_perm:[2,3,0,1]', 'row_half_mirror'):
        for e in (0, 2): a(f'v_add_f32_dpp v{st4+e}, v{st4+e}, v{st4+e} {dpp} row_mask:0xf bank_mask:0xf')
        a('s_nop 0')
    a(f'''
    v_mul_f32 v{st4+1}, {hex(f2u(1/640))}, v{st4}
    v_mul_f32 v{st4+2}, {hex(f2u(1/640))}, v{st4+2}
    v_fma_f32 v{st4+2}, -v{st4+1}, v{st4+1}, v{st4+2}
    v_max_f32 v{st4+2}, 0, v{st4+2}
    v_add_f32 v{st4+2}, {hex(f2u(1e-5))}, v{st4+2}
    v_rsq_f32 v{st4}, v{st4+2}
    v_lshlrev_b32 v{vT}, 3, v{vT}
    v_mul_f32_e64 v{st4+1}, -v{st4+1}, v{st4}
    s_lshl_b32 s{sT}, s{sWG}, 6
    s_add_u32 s{sT}, s{sT}, {WS_LN1}
    s_mov_b32 exec_lo, 0x01010101
    s_mov_b32 exec_hi, 0x01010101
    buffer_store_dwordx2 {vr(st4,2)}, v{vT}, {WS}, s{sT} offen
    s_mov_b64 exec, -1
    s_branch {done}
    {cst}:
    s_lshl_b32 s{sT}, s{sWG}, 3
    v_add_u32 v{vT}, s{sT}, v{vLane}
    v_mul_u32_u24 v{vT}, {KVT}, v{vT}
    ''')
    for r in range(4): a(f'v_mov_b32 v{X+r}, 0x3f803f80')
    a(f'''
    s_mov_b32 s{sT}, {WS_KV + KV_ONE}
    s_waitcnt lgkmcnt(0)
    s_mov_b64 exec, 0xff
    buffer_store_dwordx4 {vr(X,4)}, v{vT}, {WS}, s{sT} offen
    s_mov_b64 exec, -1
    ''')
    if 'prep_extra' in ctx: ctx['prep_extra']()
    a(f'{done}:')
    V.release(mv); Sg.release(ms)
```

```python
from asm import *
from layout import *

def udiv(a, q, v, d, maxv):
    for sh in range(8, 24):
        m = -(-(1 << sh) // d)
        if all((x * m) >> sh == x // d for x in range(maxv)) and m * maxv < (1 << 32) and m < (1 << 24): break
    else: raise ValueError
    a(f'v_mul_u32_u24 v{q}, {m}, v{v}\nv_lshrrev_b32 v{q}, {sh}, v{q}')

PACK5_LDS = 5120

def pack5_load(a, V, vLane, srcSRD, sSrc, stride, sLds, rowfn, sT):
    m = V.mark()
    n, rho, u, g, j, t = [V() for _ in range(6)]
    for i in range(5):
        a(f'v_add_u32 v{n}, {64*i}, v{vLane}')
        udiv(a, rho, n, 10, 320)
        a(f'''
        v_mul_u32_u24 v{u}, 10, v{rho}
        v_sub_u32 v{u}, v{n}, v{u}
        v_bfe_u32 v{g}, v{rho}, 2, 2
        v_and_b32 v{j}, 3, v{rho}
        v_lshrrev_b32 v{t}, 4, v{rho}
        v_lshl_add_u32 v{j}, v{t}, 2, v{j}
        ''')
        rowfn(n, g, j, t)
        a(f'''
        v_mul_u32_u24 v{n}, {stride}, v{n}
        v_lshl_add_u32 v{n}, v{u}, 4, v{n}
        s_add_u32 s{sT}, s{sLds}, {1024*i}
        s_mov_b32 m0, s{sT}
        s_nop 0
        buffer_load_dwordx4 v{n}, {sr(srcSRD,4)}, s{sSrc} offen lds
        ''')
    V.release(m)

def row_natural(a):
    return lambda d, g, j, t: a(f'v_lshl_add_u32 v{d}, v{g}, 3, v{j}')

def pack5_store(a, V, vLane, ws, sLds, vQ, kind, sDst, dstride, st=''):
    m = V.mark()
    ad, t, l16 = V(), V(), V()
    Fr = V(20, 4)
    a(f'''
    v_lshrrev_b32 v{t}, 2, v{vLane}
    v_mul_u32_u24 v{ad}, 160, v{t}
    v_add_u32 v{ad}, s{sLds}, v{ad}
    v_and_b32 v{t}, 3, v{vLane}
    v_lshlrev_b32 v{l16}, 4, v{vLane}
    ''')
    a1, a2 = V(), V()
    if kind == 'paired':
        a(f'v_lshl_add_u32 v{a1}, v{t}, 4, v{ad}\nv_lshl_add_u32 v{a2}, v{t}, 3, v{ad}')
        offs = [(a1, 0), (a1, 8), (a1, 64), (a1, 72), (a2, 128)]
    elif kind == 'natural':
        a(f'v_lshl_add_u32 v{a1}, v{t}, 3, v{ad}')
        offs = [(a1, 32 * i) for i in range(5)]
    elif kind == 'qk':
        a(f'''
        v_mul_u32_u24 v{a2}, 40, v{t}
        v_add_u32 v{a2}, v{a2}, v{ad}
        v_lshrrev_b32 v{a1}, 1, v{t}
        v_mul_u32_u24 v{a1}, 40, v{a1}
        v_and_b32 v{t}, 1, v{t}
        v_lshl_add_u32 v{a1}, v{t}, 4, v{a1}
        v_add_u32 v{a1}, v{a1}, v{ad}
        ''')
        offs = [(a1, 0), (a1, 8), (a1, 80), (a1, 88), (a2, 32)]
    for i, (r, o) in enumerate(offs):
        for h in range(2):
            a(f'ds_read_b64_tr_b16 {vr(Fr+4*i+2*h,2)}, v{r} offset:{o + h*16*160}')
    for i in range(5):
        a(f's_waitcnt lgkmcnt({8-2*i})')
        a(f'buffer_store_dwordx4 {vr(Fr+4*i,4)}, v{l16}, {sr(ws,4)}, s{sDst} offen {st}')
        if i < 4: a(f's_add_u32 s{sDst}, s{sDst}, {dstride}')
    V.release(m)
```

```python
from asm import *
from layout import *
from attn import f2u
from build import srd
from qkv import qkv_ids

GRP = 40960
PROJ_LDS = 3 * GRP + 4096
X1R_WG = 8 * 3072

def gen_proj(a, V, Sg, ctx, kind, opt=None):
    opt = opt or {}
    ws, sWG, sWave, vLane = ctx['sWS'], ctx['sWG'], ctx['sWave'], ctx['vLane']
    st, ld = ctx.get('st_flags', ''), ctx.get('ld_flags', '')
    stamp = ctx.get('stamp', lambda: None)
    WS = sr(ws, 4)
    NS = 20 if kind == 'o' else 54
    PW = WS_PWO if kind == 'o' else WS_PWD
    ACTB = WS_O if kind == 'o' else WS_HM
    NI = NS // 2
    NG = (NS + 7) // 8
    mv, ms = V.mark(), Sg.mark()
    sX = Sg(4)
    sRb, sCb, sT, sT2, sKh, sTg, sW, sM, sAct, sR = [Sg() for _ in range(10)]
    vL16, vW0, vW1, vW2, vT, vT2, lI, lG = [V() for _ in range(8)]
    ACT = V(4 * NI, 4); WF = [V(20, 4), V(20, 4)]; ACC = V(20, 4)
    RES = V(12, 4); GA = V(12, 4); C1 = V(12, 4) if kind == 'o' else None
    vm, lg = Cnt(a, 'vmcnt', 63), Cnt(a, 'lgkmcnt', 15)
    a(f's_load_dwordx2 s[{sX}:{sX+1}], s[0:1], {ARG_X if kind == "o" else ARG_OUT}')
    qkv_ids(a, sWG, sRb, sCb, sT)
    a(f'''
    s_lshr_b32 s{sKh}, s{sWave}, 2
    s_and_b32 s{sTg}, s{sWave}, 3
    v_lshlrev_b32 v{vL16}, 4, v{vLane}
    v_and_b32 v{lI}, 15, v{vLane}
    v_lshrrev_b32 v{lG}, 4, v{vLane}
    s_mul_i32 s{sW}, s{sCb}, {NS*5120}
    s_lshl_b32 s{sM}, s{sWave}, 10
    s_add_u32 s{sW}, s{sW}, s{sM}
    s_add_u32 s{sW}, s{sW}, {PW}
    s_lshl_b32 s{sAct}, s{sRb}, 2
    s_add_u32 s{sAct}, s{sAct}, s{sTg}
    s_mul_i32 s{sAct}, s{sAct}, {NS}
    s_add_u32 s{sAct}, s{sAct}, s{sKh}
    s_lshl_b32 s{sAct}, s{sAct}, 10
    s_add_u32 s{sAct}, s{sAct}, {ACTB}
    s_mul_i32 s{sT}, s{sKh}, {5120 + 2048}
    v_add_u32 v{vW0}, s{sT}, v{vL16}
    s_mul_i32 s{sT}, s{sKh}, {5120 - 2048}
    s_add_u32 s{sT}, s{sT}, 2048
    v_add_u32 v{vW1}, s{sT}, v{vL16}
    s_mul_i32 s{sT}, s{sKh}, 5120
    s_add_u32 s{sT}, s{sT}, 4096
    v_add_u32 v{vW2}, s{sT}, v{vL16}
    s_waitcnt lgkmcnt(0)
    ''')
    srd(a, sX, sX, S * 1280)
    if 'wait_inputs' in ctx: ctx['wait_inputs']()
    def dma_group(G):
        n_instr = min(40, NS * 5 - 40 * G)
        for r in range((n_instr + 7) // 8):
            a(f's_add_u32 s{sT}, s{sM}, {(G % 3) * GRP + 8192 * r}\ns_mov_b32 m0, s{sT}')
            if 8 * r + 8 > n_instr:
                a(f's_cmp_ge_u32 s{sWave}, {n_instr - 8*r}\ns_cselect_b32 s{sW}, 0x40000000, s{sW}')
            else: a('s_nop 0')
            vm.issue(('W', G), f'buffer_load_dwordx4 v{vL16}, {WS}, s{sW} offen {ld} lds')
            a(f's_add_u32 s{sW}, s{sW}, 8192')
    def act_group(G):
        for i in range(4 * G, min(NI, 4 * G + 4)):
            vm.issue(('A', i), f'buffer_load_dwordx4 {vr(ACT+4*i,4)}, v{vL16}, {WS}, s{sAct} offen offset:{2048*(i&1)} {ld}')
            if i & 1: a(f's_add_u32 s{sAct}, s{sAct}, 4096')
    for G in range(2):
        act_group(G); dma_group(G)
    modoff = (1280 if kind == 'o' else 3200) * 4
    a(f'''
    s_mul_i32 s{sT}, s{sCb}, 320
    s_add_u32 s{sT}, s{sT}, {WS_MOD + modoff}
    s_lshl_b32 s{sT2}, s{sKh}, 7
    s_add_u32 s{sT2}, s{sT2}, s{sT}
    v_lshlrev_b32 v{vT}, 5, v{lG}
    v_lshlrev_b32 v{vT2}, 4, v{lG}
    ''')
    vm.issue('E', f'buffer_load_dwordx4 {vr(GA,4)}, v{vT}, {WS}, s{sT2} offen')
    vm.issue('E', f'buffer_load_dwordx4 {vr(GA+4,4)}, v{vT}, {WS}, s{sT2} offen offset:16')
    vm.issue('E', f'buffer_load_dwordx4 {vr(GA+8,4)}, v{vT2}, {WS}, s{sT} offen offset:256')
    a(f's_mul_i32 s{sR}, s{sWG}, {X1R_WG}')
    a(f's_mul_i32 s{sT2}, s{sWave}, 3072\ns_add_u32 s{sR}, s{sR}, s{sT2}\ns_add_u32 s{sR}, s{sR}, {WS_X1R}')
    vTok, vTok2 = V(), V()
    a(f'''
    s_lshl_b32 s{sT2}, s{sRb}, 2
    s_add_u32 s{sT2}, s{sT2}, s{sTg}
    s_mul_i32 s{sT2}, s{sT2}, {16*1280}
    s_mul_i32 s{sT}, s{sCb}, 160
    s_add_u32 s{sT2}, s{sT2}, s{sT}
    v_mul_u32_u24 v{vTok}, 1280, v{lI}
    v_add_u32 v{vTok}, s{sT2}, v{vTok}
    v_lshl_add_u32 v{vTok2}, v{lG}, 3, v{vTok}
    v_add_u32 v{vTok2}, 128, v{vTok2}
    v_lshl_add_u32 v{vTok}, v{lG}, 4, v{vTok}
    s_lshl_b32 s{sT}, s{sKh}, 6
    v_add_u32 v{vTok}, s{sT}, v{vTok}
    ''')
    if kind == 'o':
        a(f's_mul_i32 s{sT}, s{sCb}, 320\ns_add_u32 s{sT}, s{sT}, {WS_MOD + 2560*4}\ns_lshl_b32 s{sT2}, s{sKh}, 7\ns_add_u32 s{sT2}, s{sT2}, s{sT}')
        vm.issue('E', f'buffer_load_dwordx4 {vr(C1,4)}, v{vT}, {WS}, s{sT2} offen')
        vm.issue('E', f'buffer_load_dwordx4 {vr(C1+4,4)}, v{vT}, {WS}, s{sT2} offen offset:16')
        vm.issue('E', f'buffer_load_dwordx4 {vr(C1+8,4)}, v{vT2}, {WS}, s{sT} offen offset:256')
        vm.issue('E', f'buffer_load_dwordx4 {vr(RES+4,4)}, v{vTok}, {sr(sX,4)}, 0 offen')
        vm.issue('E', f'buffer_load_dwordx2 {vr(RES+10,2)}, v{vTok2}, {sr(sX,4)}, 0 offen')
    else:
        for r in range(3): vm.issue('E', f'buffer_load_dwordx4 {vr(RES+4*r,4)}, v{vL16}, {WS}, s{sR} offen offset:{1024*r} {ld}')
    cur = [0]
    def rdW(i):
        G = i // 4
        off = (G % 3) * GRP + (i % 4) * 10240
        base = 61440 if off >= 61440 else 0
        if base != cur[0]:
            for v_ in (vW0, vW1, vW2): a(f'v_add_u32 v{v_}, {(base - cur[0]) & 0xffffffff}, v{v_}')
            cur[0] = base
        off -= base
        l = []
        for t, (v_, o) in enumerate(((vW0, 0), (vW0, 1024), (vW1, 0), (vW1, 1024), (vW2, 0))):
            l.append((('R', i), f'ds_read_b128 {vr(WF[i&1]+4*t,4)}, v{v_} offset:{off + o}'))
        return l
    for G in range(NG):
        wait2(a, vm, [('W', G)], lg, [('R', 4 * G - 1)])
        a('s_barrier')
        if G == 0: stamp()
        for x in rdW(4 * G): lg.issue(*x)
        if G + 2 < NG:
            act_group(G + 2); dma_group(G + 2)
        for i in range(4 * G, min(NI, 4 * G + 4)):
            nxt = rdW(i + 1) if (i + 1 < NI and (i + 1) // 4 == G) else []
            wait2(a, vm, [('A', i)], lg, [('R', i)])
            for t in range(5):
                c = vr(ACC + 4 * t, 4)
                a(f'v_mfma_f32_16x16x32_bf16 {c}, {vr(WF[i&1]+4*t,4)}, {vr(ACT+4*i,4)}, {c if i else 0}')
                if nxt: lg.issue(*nxt[t])
    stamp()
    k1, k2 = a.label('proj_k1'), a.label('proj_k2')
    a(f'''
    s_barrier
    s_mul_i32 s{sT}, s{sWave}, 3072
    v_add_u32 v{vW0}, s{sT}, v{vL16}
    s_xor_b32 s{sT}, s{sWave}, 4
    s_mul_i32 s{sT}, s{sT}, 3072
    v_add_u32 v{vW1}, s{sT}, v{vL16}
    s_nop 2
    ds_write_b128 v{vW0}, {vr(ACC+8,4)}
    ds_write_b128 v{vW0}, {vr(ACC+12,4)} offset:1024
    ds_write_b128 v{vW0}, {vr(ACC+16,4)} offset:2048
    s_waitcnt lgkmcnt(0)
    s_barrier
    ''')
    for r in range(3): a(f'ds_read_b128 {vr(WF[0]+4*r,4)}, v{vW1} offset:{1024*r}')
    vm.wait('E')
    if kind == 'o':
        for r in range(4): a(f'v_lshlrev_b32 v{RES+2*r}, 16, v{RES+4+r}\nv_and_b32 v{RES+2*r+1}, 0xffff0000, v{RES+4+r}')
        for r in range(2): a(f'v_lshlrev_b32 v{RES+8+2*r}, 16, v{RES+10+r}\nv_and_b32 v{RES+8+2*r+1}, 0xffff0000, v{RES+10+r}')
    a('s_waitcnt lgkmcnt(0)')
    src = [ACC + r for r in range(8)] + [ACC + 16 + r for r in range(4)]
    for r in range(12): a(f'v_add_f32 v{src[r]}, v{src[r]}, v{WF[0]+r}')
    for r in range(12): a(f'v_fma_f32 v{RES+r}, v{src[r]}, v{GA+r}, v{RES+r}')
    P = WF[1]
    if kind == 'o':
        for r in range(3): a(f'buffer_store_dwordx4 {vr(RES+4*r,4)}, v{vL16}, {WS}, s{sR} offen offset:{1024*r} {st}')
        for r in range(12): a(f'v_mul_f32 v{C1+r}, v{C1+r}, v{RES+r}')
        for r in range(6): a(f'v_cvt_pk_bf16_f32 v{P+r}, v{C1+2*r}, v{C1+2*r+1}')
        s1, s2, t1, t2 = GA, GA + 1, GA + 2, GA + 3
        a(f'''
        s_lshl_b32 s{sT}, s{sRb}, 2
        s_add_u32 s{sT}, s{sT}, s{sTg}
        s_lshl_b32 s{sR}, s{sT}, 11
        s_mul_i32 s{sT}, s{sT}, 20480
        s_mul_i32 s{sT2}, s{sCb}, 2560
        s_add_u32 s{sT}, s{sT}, s{sT2}
        s_add_u32 s{sT}, s{sT}, {WS_X1A}
        s_lshl_b32 s{sT2}, s{sKh}, 10
        s_add_u32 s{sT2}, s{sT2}, s{sT}
        buffer_store_dwordx4 {vr(P,4)}, v{vL16}, {WS}, s{sT2} offen {st}
        v_mul_f32 v{s2}, v{RES}, v{RES}
        v_add_f32 v{s1}, v{RES}, v{RES+1}
        v_fmac_f32 v{s2}, v{RES+1}, v{RES+1}
        ''')
        for r in range(2, 8): a(f'v_add_f32 v{s1}, v{s1}, v{RES+r}\nv_fmac_f32 v{s2}, v{RES+r}, v{RES+r}')
        a(f'''
        s_cmp_lg_u32 s{sKh}, 0
        s_cbranch_scc1 {k1}
        v_lshrrev_b32 v{vT}, 1, v{lG}
        v_lshlrev_b32 v{vT}, 8, v{vT}
        v_lshl_add_u32 v{vT}, v{lI}, 4, v{vT}
        v_and_b32 v{vT2}, 1, v{lG}
        v_lshl_add_u32 v{vT}, v{vT2}, 3, v{vT}
        buffer_store_dwordx2 {vr(P+4,2)}, v{vT}, {WS}, s{sT} offen offset:2048 {st}
        ''')
        for r in range(8, 12): a(f'v_add_f32 v{s1}, v{s1}, v{RES+r}\nv_fmac_f32 v{s2}, v{RES+r}, v{RES+r}')
        a(f'{k1}:')
        for sw in ('32', '16'):
            a(f'''
            v_mov_b32 v{t1}, v{s1}
            v_mov_b32 v{t2}, v{s2}
            s_nop 1
            v_permlane{sw}_swap_b32 v{s1}, v{t1}
            v_permlane{sw}_swap_b32 v{s2}, v{t2}
            s_nop 0
            v_add_f32 v{s1}, v{s1}, v{t1}
            v_add_f32 v{s2}, v{s2}, v{t2}
            ''')
        a(f'''
        s_lshl_b32 s{sT}, s{sCb}, 4
        s_lshl_b32 s{sT2}, s{sKh}, 3
        s_add_u32 s{sT}, s{sT}, s{sT2}
        s_add_u32 s{sT}, s{sT}, s{sR}
        s_add_u32 s{sT}, s{sT}, {WS_ST}
        v_lshlrev_b32 v{vT}, 7, v{lI}
        s_mov_b64 exec, 0xffff
        buffer_store_dwordx2 {vr(s1,2)}, v{vT}, {WS}, s{sT} offen {st}
        s_mov_b64 exec, -1
        ''')
    else:
        for r in range(6): a(f'v_cvt_pk_bf16_f32 v{P+r}, v{RES+2*r}, v{RES+2*r+1}')
        a(f'''
        buffer_store_dwordx4 {vr(P,4)}, v{vTok}, {sr(sX,4)}, 0 offen
        s_cmp_lg_u32 s{sKh}, 0
        s_cbranch_scc1 {k1}
        buffer_store_dwordx2 {vr(P+4,2)}, v{vTok2}, {sr(sX,4)}, 0 offen
        {k1}:
        ''')
    V.release(mv); Sg.release(ms)
```

```python
from asm import *
from layout import *
from attn import f2u
from build import srd
from pack import udiv

QKV_H, QKV_C = 0, 81920
QKV_LDS = QKV_C + 6144

def qkv_ids(a, sWG, sRb, sCb, sT):
    a(f'''
    s_bfe_u32 s{sRb}, s{sWG}, 0x20001
    s_lshl_b32 s{sRb}, s{sRb}, 3
    s_lshr_b32 s{sT}, s{sWG}, 5
    s_add_u32 s{sRb}, s{sRb}, s{sT}
    s_and_b32 s{sCb}, s{sWG}, 1
    s_lshl_b32 s{sCb}, s{sCb}, 2
    s_bfe_u32 s{sT}, s{sWG}, 0x20003
    s_add_u32 s{sCb}, s{sCb}, s{sT}
    ''')

def gen_qkv(a, V, Sg, ctx, opt=None):
    opt = opt or {}
    ws, sWG, sWave, vLane = ctx['sWS'], ctx['sWG'], ctx['sWave'], ctx['vLane']
    st = ctx.get('st_flags', '')
    stamp = ctx.get('stamp', lambda: None)
    WS = sr(ws, 4)
    mv, ms = V.mark(), Sg.mark()
    sX = Sg(4)
    sRb, sCb, sT, sT2, sK, sW0, sW1, sA, sB, sI2, sTg = [Sg() for _ in range(11)]
    vT, vT2, vT3, vH0, vH1, vL16 = [V() for _ in range(6)]
    WF = V(160, 4)
    m2 = V.mark()
    X = V(40, 4); CB = [V(16, 4), V(16, 4)]; XF = V(8, 4); PR = V(6, 2)
    vX1, vH2 = XF + 4, XF + 5
    a(f's_load_dwordx2 s[{sX}:{sX+1}], s[0:1], {ARG_X}')
    qkv_ids(a, sWG, sRb, sCb, sT)
    a(f'''
    v_lshrrev_b32 v{vT}, 3, v{vLane}
    v_and_b32 v{vT2}, 7, v{vLane}
    v_mul_u32_u24 v{vH0}, 1280, v{vT}
    v_lshl_add_u32 v{vH0}, v{vT2}, 4, v{vH0}
    v_lshlrev_b32 v{vL16}, 4, v{vLane}
    s_mul_i32 s{sT}, s{sRb}, {64*1280}
    s_lshl_b32 s{sT2}, s{sWave}, 7
    s_add_u32 s{sA}, s{sT}, s{sT2}
    s_lshr_b32 s{sI2}, s{sWave}, 2
    s_add_u32 s{sI2}, s{sI2}, 8
    s_and_b32 s{sTg}, s{sWave}, 3
    s_lshl_b32 s{sTg}, s{sTg}, 1
    s_mul_i32 s{sB}, s{sTg}, {8*1280}
    s_add_u32 s{sB}, s{sB}, s{sT}
    s_lshl_b32 s{sT2}, s{sI2}, 7
    s_add_u32 s{sB}, s{sB}, s{sT2}
    s_lshl_b32 s{sT2}, s{sWave}, 2
    s_lshr_b32 s{sW0}, 0xeca47520, s{sT2}
    s_and_b32 s{sW0}, s{sW0}, 15
    s_lshr_b32 s{sW1}, 0xedb98631, s{sT2}
    s_and_b32 s{sW1}, s{sW1}, 15
    s_mul_i32 s{sT2}, s{sCb}, 15
    s_add_u32 s{sW0}, s{sW0}, s{sT2}
    s_add_u32 s{sW1}, s{sW1}, s{sT2}
    s_mul_i32 s{sW0}, s{sW0}, 20480
    s_mul_i32 s{sW1}, s{sW1}, 20480
    s_add_u32 s{sW0}, s{sW0}, {WS_PQKV}
    s_add_u32 s{sW1}, s{sW1}, {WS_PQKV}
    s_cmp_eq_u32 s{sWave}, 7
    s_cselect_b32 s{sW1}, 0x40000000, s{sW1}
    s_lshl_b32 s{sK}, s{sRb}, 9
    s_add_u32 s{sK}, s{sK}, {WS_LN1 - 1024}
    s_mov_b32 s{sT}, {WS_MOD}
    s_mov_b32 m0, {QKV_C}
    s_cmp_lg_u32 s{sWave}, 0
    s_waitcnt lgkmcnt(0)
    ''')
    srd(a, sX, sX, S * 1280)
    nt_ = a.label('qkv_notab')
    a(f's_cbranch_scc1 {nt_}')
    for i in range(4): a(f'buffer_load_dwordx4 v{vL16}, {WS}, s{sT} offen offset:{1024*i} lds')
    a(f'''
    s_mov_b32 m0, {QKV_C + 4096}
    s_add_u32 s{sT}, s{sT}, 4096
    buffer_load_dwordx4 v{vL16}, {WS}, s{sT} offen lds
    s_mov_b32 exec_hi, 0
    buffer_load_dwordx4 v{vL16}, {WS}, s{sK} offen offset:1024 lds
    s_mov_b64 exec, -1
    {nt_}:
    ''')
    for n in range(10):
        if n == 8: a(f's_mov_b32 s{sA}, s{sB}')
        a(f'buffer_load_dwordx4 {vr(X+4*n,4)}, v{vH0}, {sr(sX,4)}, s{sA} offen')
        if n < 9: a(f's_add_u32 s{sA}, s{sA}, {8*1280}')
    def ldW(s_):
        a(f'buffer_load_dwordx4 {vr(WF+8*s_,4)}, v{vL16}, {WS}, s{sW0} offen offset:{1024*(s_&3)}')
        a(f'buffer_load_dwordx4 {vr(WF+8*s_+4,4)}, v{vL16}, {WS}, s{sW1} offen offset:{1024*(s_&3)}')
        if s_ & 3 == 3 and s_ < 19: a(f's_add_u32 s{sW0}, s{sW0}, 4096\ns_add_u32 s{sW1}, s{sW1}, 4096')
    vA0, vA1 = XF, XF + 1
    a(f'''
    v_and_b32 v{vA0}, 3, v{vT2}
    v_lshrrev_b32 v{vA1}, 2, v{vT2}
    v_mul_u32_u24 v{vT3}, 12, v{vA1}
    v_add_u32 v{vT3}, v{vT3}, v{vA0}
    v_xor_b32 v{vT3}, v{vT3}, v{vT}
    v_lshlrev_b32 v{vT3}, 4, v{vT3}
    v_lshl_add_u32 v{vT3}, v{vA0}, 8, v{vT3}
    v_lshl_add_u32 v{vT3}, v{vA1}, 12, v{vT3}
    s_lshl_b32 s{sT}, s{sWave}, 13
    v_add_u32 v{vH1}, s{sT}, v{vT3}
    s_lshl_b32 s{sT}, s{sI2}, 13
    s_lshl_b32 s{sT2}, s{sTg}, 9
    s_add_u32 s{sT}, s{sT}, s{sT2}
    v_add_u32 v{vT3}, s{sT}, v{vT3}
    v_lshlrev_b32 v{vT2}, 5, v{vT2}
    s_lshl_b32 s{sT}, s{sWave}, 8
    s_add_u32 s{sT}, s{sT}, {QKV_C}
    v_add_u32 v{vX1}, s{sT}, v{vT2}
    s_lshl_b32 s{sT}, s{sI2}, 8
    s_add_u32 s{sT}, s{sT}, {QKV_C}
    v_add_u32 v{vH2}, s{sT}, v{vT2}
    v_lshlrev_b32 v{vT}, 3, v{vT}
    v_add_u32 v{vT}, {QKV_C + 5120}, v{vT}
    s_lshl_b32 s{sT}, s{sTg}, 6
    v_add_u32 v{vT2}, s{sT}, v{vT}
    v_xor_b32 v{vH0}, 128, v{vH1}
    s_waitcnt vmcnt(10)
    s_barrier
    ''')
    for b, ad in ((0, vX1), (1, vH2)):
        for h in range(2):
            a(f'ds_read_b128 {vr(CB[b]+4*h,4)}, v{ad} offset:{2560 + 16*h}')
            a(f'ds_read_b128 {vr(CB[b]+8+4*h,4)}, v{ad} offset:{16*h}')
    def rdS(n):
        a(f'ds_read_b64 {vr(PR+2*(n%3),2)}, v{vT if n < 8 else vT2} offset:{64*(n&7)}')
    rdS(0); rdS(1)
    stamp()
    NPRE = opt.get('npre', 6)
    for n in range(10):
        c = CB[n >> 3]; pr = PR + 2 * (n % 3)
        a(f's_waitcnt vmcnt({9 - n + 2*min(n, NPRE)})')
        for r in range(4):
            a(f'v_lshlrev_b32 v{XF+2*r}, 16, v{X+4*n+r}\nv_and_b32 v{XF+2*r+1}, 0xffff0000, v{X+4*n+r}')
        a(f's_waitcnt lgkmcnt({1 if n == 0 else (2 if n < 9 else 1)})')
        for r in range(4):
            a(f'v_pk_fma_f32 {vr(XF+2*r,2)}, {vr(XF+2*r,2)}, {vr(pr,2)}, {vr(pr,2)} op_sel:[0,0,1] op_sel_hi:[1,0,1]')
        if n < 8: rdS(n + 2)
        if n < NPRE: ldW(n)
        for r in range(4):
            a(f'v_pk_fma_f32 {vr(XF+2*r,2)}, {vr(XF+2*r,2)}, {vr(c+2*r,2)}, {vr(c+8+2*r,2)}')
        for r in range(4):
            a(f'v_cvt_pk_bf16_f32 v{X+4*n+r}, v{XF+2*r}, v{XF+2*r+1}')
        if n == 8: a(f'v_mov_b32 v{vH1}, v{vT3}\nv_xor_b32 v{vH0}, 128, v{vT3}')
        a(f'ds_write_b128 v{vH0 if n & 1 else vH1}, {vr(X+4*n,4)} offset:{1024*((n&7)>>1)}')
    V.release(m2)
    ACT = [V(16, 4), V(16, 4), V(16, 4)]; ACC = V(32, 4)
    lI, lG = V(), V()
    a(f'''
    v_and_b32 v{lI}, 15, v{vLane}
    v_lshrrev_b32 v{lG}, 4, v{vLane}
    v_xor_b32 v{vH0}, v{lI}, v{lG}
    v_lshlrev_b32 v{vH0}, 4, v{vH0}
    v_lshl_add_u32 v{vH0}, v{lG}, 8, v{vH0}
    v_xor_b32 v{vH1}, {12*16}, v{vH0}
    s_waitcnt lgkmcnt(0)
    s_barrier
    ''')
    stamp()
    lv, lv1, fin = [a.label(x) for x in ('qkv_v', 'qkv_v1', 'qkv_fin')]
    def loop(swap, nt):
        def rd(s_):
            vh = vH1 if s_ & 1 else vH0
            return [f'ds_read_b128 {vr(ACT[s_%3]+4*tt,4)}, v{vh} offset:{(s_&15)*4096 + tt*1024}' for tt in range(4)]
        a('\n'.join(rd(0) + rd(1)))
        for s_ in range(20):
            a(f's_waitcnt vmcnt({2*(min(20, s_ + NPRE) - s_ - 1)}) lgkmcnt({4 if s_ < 19 else 0})')
            if s_ == 14: a(f'v_add_u32 v{vH0}, 65536, v{vH0}')
            if s_ == 15: a(f'v_add_u32 v{vH1}, 65536, v{vH1}')
            R_ = rd(s_ + 2) if s_ < 18 else []
            for tt in range(4):
                for t in range(nt):
                    A_, B_ = vr(WF + 8*s_ + 4*t, 4), vr(ACT[s_%3] + 4*tt, 4)
                    if swap: A_, B_ = B_, A_
                    c = vr(ACC + 16*t + 4*tt, 4)
                    a(f'v_mfma_f32_16x16x32_bf16 {c}, {A_}, {B_}, {c if s_ else 0}')
                    if t == 0 and R_: a(R_[tt])
                    if t == nt - 1 and tt == 1 and s_ + NPRE < 20: ldW(s_ + NPRE)
        a('s_nop 6')
        if 'stamp' in ctx: stamp.at(3)
    a(f's_cmp_ge_u32 s{sWave}, 5\ns_cbranch_scc1 {lv}')
    loop(False, 2)
    lk, lleft = a.label('qkv_st_k'), a.label('qkv_st_left')
    a(f'''
    v_bfe_u32 v{vT2}, v{lI}, 2, 2
    v_and_b32 v{vT3}, 3, v{lI}
    v_lshl_add_u32 v{vT2}, v{vT2}, 3, v{vT3}
    s_lshl_b32 s{sT}, s{sCb}, 8
    s_lshl_b32 s{sT2}, s{sRb}, 1
    s_add_u32 s{sT}, s{sT}, s{sT2}
    s_cmp_eq_u32 s{sWave}, 4
    s_cbranch_scc1 {lleft}
    s_and_b32 s{sT2}, s{sWave}, 1
    s_lshl_b32 s{sT2}, s{sT2}, 7
    s_add_u32 s{sT}, s{sT}, s{sT2}
    v_lshrrev_b32 v{vT}, 1, v{lG}
    v_and_b32 v{vT3}, 1, v{lG}
    s_cmp_ge_u32 s{sWave}, 2
    s_cbranch_scc1 {lk}
    s_mul_i32 s{sT}, s{sT}, {QT}
    s_add_u32 s{sT}, s{sT}, {WS_Q}
    v_mul_u32_u24 v{vT}, {64*QT}, v{vT}
    v_lshl_add_u32 v{vT}, v{vT3}, 9, v{vT}
    v_lshl_add_u32 v{vT}, v{lI}, 4, v{vT}
    s_mov_b32 s{sT2}, {hex(f2u(QSCALE))}
    ''')
    for r in range(32): a(f'v_mul_f32 v{ACC+r}, s{sT2}, v{ACC+r}')
    def st_main(stride, tokoff):
        for tt in range(4):
            d = ACT[0] + 4 * tt
            for t in range(2):
                for r in range(2): a(f'v_cvt_pk_bf16_f32 v{d+2*t+r}, v{ACC+16*t+4*tt+2*r}, v{ACC+16*t+4*tt+2*r+1}')
            a(f'buffer_store_dwordx4 {vr(d,4)}, v{vT}, {WS}, s{sT} offen offset:{(tt>>1)*stride + (tt&1)*tokoff} {st}')
    st_main(QT, 256)
    a(f'''
    s_branch {fin}
    {lk}:
    s_mul_i32 s{sT}, s{sT}, {KVT}
    s_add_u32 s{sT}, s{sT}, {WS_KV + KV_K1}
    v_mul_u32_u24 v{vT}, {64*KVT}, v{vT}
    v_lshl_add_u32 v{vT}, v{vT3}, 9, v{vT}
    v_lshl_add_u32 v{vT}, v{vT2}, 4, v{vT}
    ''')
    st_main(KVT, 64)
    a(f'''
    s_branch {fin}
    {lleft}:
    s_mul_i32 s{sK}, s{sT}, {KVT}
    s_add_u32 s{sK}, s{sK}, {WS_KV + KV_K2}
    s_mul_i32 s{sT}, s{sT}, {QT}
    s_add_u32 s{sT}, s{sT}, {WS_Q + 1024}
    v_mul_u32_u24 v{vT}, {64*QT}, v{lG}
    v_lshl_add_u32 v{vT}, v{lI}, 3, v{vT}
    v_mul_u32_u24 v{vT3}, {64*KVT}, v{lG}
    v_lshl_add_u32 v{vT3}, v{vT2}, 3, v{vT3}
    s_mov_b32 s{sT2}, {hex(f2u(QSCALE))}
    ''')
    for r in range(16): a(f'v_mul_f32 v{ACC+r}, s{sT2}, v{ACC+r}')
    for tt in range(4):
        d = ACT[0] + 4 * tt
        for t in range(2):
            for r in range(2): a(f'v_cvt_pk_bf16_f32 v{d+2*t+r}, v{ACC+16*t+4*tt+2*r}, v{ACC+16*t+4*tt+2*r+1}')
        a(f'buffer_store_dwordx2 {vr(d,2)}, v{vT}, {WS}, s{sT} offen offset:{(tt>>1)*QT + (tt&1)*128} {st}')
        a(f'buffer_store_dwordx2 {vr(d+2,2)}, v{vT3}, {WS}, s{sK} offen offset:{(tt>>1)*KVT + (tt&1)*32} {st}')
    a(f's_branch {fin}')
    def st_v(nt):
        a(f'''
        s_lshl_b32 s{sT}, s{sCb}, 8
        s_lshl_b32 s{sT2}, s{sRb}, 1
        s_add_u32 s{sT}, s{sT}, s{sT2}
        s_mul_i32 s{sT}, s{sT}, {KVT}
        s_add_u32 s{sT}, s{sT}, {WS_KV + KV_V}
        s_sub_u32 s{sT2}, s{sWave}, 5
        s_lshl_b32 s{sT2}, s{sT2}, 5
        ''')
        for t in range(nt):
            a(f'v_add_u32 v{vT2}, s{sT2}, v{lI}')
            if t: a(f'v_add_u32 v{vT2}, 16, v{vT2}')
            udiv(a, vT3, vT2, 20, 128)
            a(f'''
            v_mul_u32_u24 v{vT}, {64*KVT - 320}, v{vT3}
            v_lshl_add_u32 v{vT}, v{vT2}, 4, v{vT}
            v_mul_u32_u24 v{vT3}, 320, v{lG}
            v_add_u32 v{vT}, v{vT}, v{vT3}
            ''')
            for kt in range(2):
                d = ACT[0] + 8 * t + 4 * kt
                for h in range(2):
                    for r in range(2): a(f'v_cvt_pk_bf16_f32 v{d+2*h+r}, v{ACC+16*t+4*(2*kt+h)+2*r}, v{ACC+16*t+4*(2*kt+h)+2*r+1}')
                a(f'buffer_store_dwordx4 {vr(d,4)}, v{vT}, {WS}, s{sT} offen offset:{kt*KVT} {st}')
    a(f'''
    {lv}:
    s_cmp_eq_u32 s{sWave}, 7
    s_cbranch_scc1 {lv1}
    ''')
    loop(True, 2); st_v(2)
    a(f's_branch {fin}\n{lv1}:')
    loop(True, 1); st_v(1)
    a(f'{fin}:')
    V.release(mv); Sg.release(ms)
```

```python
from build import *
from attn import *
from modk import *
from qkv import *
from helpers import *
from proj import *
from gateup import *

def simple(name, kid, lds, fn, opt, wait=False):
    k = Kernel(name, 256, 512, lds)
    ctx = prologue(k, 256)
    if wait: ctx['wait_inputs'] = lambda: k.a('s_waitcnt lgkmcnt(0)')
    if opt.get('stamp'): ctx['stamp'] = Stamps(k, ctx, kid); ctx['stamp']()
    fn(k, ctx)
    if opt.get('stamp'): k.a('s_waitcnt lgkmcnt(0)'); ctx['stamp'].flush()
    epilogue(k, ctx); return k
def k_attn(opt):
    k = Kernel('attn_kernel', 256, 512, ATTN_LDS + HLP_LDS)
    a = k.a
    ctx = prologue(k, 256)
    ctx['wait_inputs'] = lambda: k.a('s_waitcnt lgkmcnt(0)')
    if opt.get('stamp'): ctx['stamp'] = Stamps(k, ctx, 2); ctx['stamp']()
    hl = a.label('helpers')
    a(f's_cmp_ge_u32 s{ctx["sWave"]}, 4\ns_cbranch_scc1 {hl}')
    cold = gen_attn(k.a, k.V, k.S, ctx, opt)
    if opt.get('stamp'): ctx['stamp'].flush()
    a(f's_endpgm\n{hl}:')
    after = gen_helpers(a, k.V, k.S, ctx, ATTN_LDS)
    a('s_barrier')
    after()
    a('s_endpgm'); cold()
    epilogue(k, ctx); return k
def multi(opt):
    return [simple('prep_kernel', 0, PREP_LDS, lambda k, c: gen_prep(k.a, k.V, k.S, c), opt),
            simple('qkv_kernel', 1, QKV_LDS, lambda k, c: gen_qkv(k.a, k.V, k.S, c, opt), opt),
            k_attn(opt),
            simple('oproj_kernel', 3, PROJ_LDS, lambda k, c: gen_proj(k.a, k.V, k.S, c, 'o', opt), opt),
            simple('gateup_kernel', 4, GU_LDS, lambda k, c: gen_gateup(k.a, k.V, k.S, c, opt), opt, wait=True),
            simple('down_kernel', 5, PROJ_LDS, lambda k, c: gen_proj(k.a, k.V, k.S, c, 'd', opt), opt)]
if __name__ == '__main__':
    opt = dict((x.split('=')[0], int(x.split('=')[1]) if '=' in x else 1) for x in sys.argv[2:])
    open(sys.argv[1], 'w').write(assemble(multi(opt)))
```

```python
import sys
from asm import *
from layout import *
NAME = 'adaLN_cond__mha_block__glu_gated_glu__prompt'
HEADER = open('cdna_kernels/' + NAME + '.s.ref').read().split('; Override launch geometry')[0]

def kd(name, vgpr, sgpr):
    vg = (vgpr + 7) // 8 * 8
    return f'''.amdhsa_kernel {name}
  .amdhsa_next_free_vgpr {vg}
  .amdhsa_next_free_sgpr {sgpr}
  .amdhsa_accum_offset {vg}
  .amdhsa_group_segment_fixed_size 0
  .amdhsa_kernarg_size 96
  .amdhsa_user_sgpr_count 2
  .amdhsa_user_sgpr_kernarg_segment_ptr 1
  .amdhsa_system_sgpr_workgroup_id_x 1
.end_amdhsa_kernel
'''

class Kernel:
    def __init__(self, name, grid, block, lds):
        self.name, self.grid, self.block, self.lds = name, grid, block, lds
        self.a = Asm(); self.a._lab = sum(map(ord, name)) % 1000 * 1000
        self.V = Regs('v', 1, 256); self.S = Regs('s', 4, 100)

def assemble(kernels, single=False):
    out = HEADER
    for k in kernels:
        out += f'; @launch {"" if single else "kernel=" + k.name + " "}grid=({k.grid},1,1) block=({k.block},1,1) lds={k.lds}\n'
    out += '.amdgcn_target "amdgcn-amd-amdhsa--gfx950"\n.text\n'
    seen = []
    for k in kernels:
        if k.name in seen: continue
        seen.append(k.name)
        out += f'.globl {k.name}\n.p2align 8\n.type {k.name},@function\n{k.name}:\n' + k.a.text() + '    s_endpgm\n'
    out += '.section .rodata,"a"\n'
    seen = []
    for k in kernels:
        if k.name in seen: continue
        seen.append(k.name)
        out += '.p2align 6\n' + kd(k.name, k.V.hi, min(102, k.S.hi + 2))
    return out

def srd(a, s, ptr, size):
    if s != ptr:
        a(f's_mov_b32 s{s}, s{ptr}\ns_mov_b32 s{s+1}, s{ptr+1}')
    a(f's_mov_b32 s{s+2}, {size}\ns_mov_b32 s{s+3}, 0x20000')

def prologue(k, nwg):
    a = k.a
    end = f'L_end_{k.name}'
    ctx = dict(sWG=2, end=end)
    ws = k.S(4); ctx['sWS'] = ws
    ctx['sTmp2'] = k.S(2)
    ctx['sWave'] = k.S(); ctx['vLane'] = k.V()
    a(f'''
    s_cmp_ge_u32 s2, {nwg}
    s_cbranch_scc1 {end}
    s_load_dwordx2 s[{ws}:{ws+1}], s[0:1], {ARG_WS}
    v_lshrrev_b32 v{ctx['vLane']}, 6, v0
    s_nop 0
    v_readfirstlane_b32 s{ctx['sWave']}, v{ctx['vLane']}
    v_and_b32 v{ctx['vLane']}, 63, v0
    ''')
    srd(a, ws, ws, WS_SIZE)
    return ctx
def epilogue(k, ctx):
    k.a(f'{ctx["end"]}:')

class Stamps:
    def __init__(self, k, ctx, kid, n=16):
        self.k, self.ctx, self.kid = k, ctx, kid
        self.s = k.S(4, 4); self.v = k.V(2); self.i = 0
        k.a(f'v_mov_b32 v{self.v}, 0\nv_mov_b32 v{self.v+1}, 0')
    def __call__(self):
        a, s, v = self.k.a, self.s, self.v
        a(f's_memrealtime s[{s}:{s+1}]\ns_memtime s[{s+2}:{s+3}]\ns_waitcnt lgkmcnt(0)\nv_writelane_b32 v{v}, s{s}, {self.i}\nv_writelane_b32 v{v+1}, s{s+2}, {self.i}')
        self.i += 1
    def at(self, i):
        save = self.i; self.i = i; self(); self.i = max(save, i + 1)
    def flush(self):
        k, a, c = self.k, self.k.a, self.ctx
        t = self.s
        a(f's_waitcnt vmcnt(0) lgkmcnt(0)')
        self()
        a(f's_lshl_b32 s{t}, s2, 3\ns_add_u32 s{t}, s{t}, s{c["sWave"]}\ns_lshl_b32 s{t}, s{t}, 7\ns_add_u32 s{t}, s{t}, {WS_STAMP + self.kid * 262144}')
        a(f'v_lshlrev_b32 v0, 3, v{c["vLane"]}\ns_mov_b64 exec, 0xffff\nbuffer_store_dwordx2 {vr(self.v,2)}, v0, {sr(c["sWS"],4)}, s{t} offen')
```

```python
from asm import *
from layout import *
from attn import f2u
from sync import *
from proj import Feed
from qkv import qkv_ids, gu_ids

class Prefetch:
    def __init__(self, a, V, Sg, ctx, total, n0, n1, base_fn):
        self.a, self.ctx, self.total, self.n0, self.n1, self.base_fn = a, ctx, total, n0, n1, base_fn
        self.sSrc, self.sM, self.sBase, self.sT = Sg(), Sg(), Sg(), Sg()
        self.vL16 = V()
        self.feed = Feed(a, ctx, self.sSrc, self.sM, self.vL16, Cnt(a, 'vmcnt', 63), ctx['ld_flags'])
    def __call__(self, part, rounds=None):
        a, f = self.a, self.feed
        if part == 0:
            a(f'v_lshlrev_b32 v{self.vL16}, 4, v{self.ctx["vLane"]}')
            self.base_fn(self.sBase, self.sT, self.sSrc)
            f.start(self.sBase, 0, 0, self.sT)
            for _ in range(self.n0 if rounds is None else rounds): f.round(self.total, 'W')
        elif part == 1:
            for _ in range(self.n1 if rounds is None else rounds): f.round(self.total, 'W')
        else:
            f.start(self.sBase, f.n, 1, self.sT)
            while f.n < self.total: f.round(self.total, 'W')

def gen_gateup(a, V, Sg, ctx, opt=None):
    opt = opt or {}
    ws, sWG, sWave, vLane = ctx['sWS'], ctx['sWG'], ctx['sWave'], ctx['vLane']
    st, ld = 'sc1', ctx['ld_flags']
    stamp = ctx.get('stamp', lambda: None)
    WS = sr(ws, 4)
    mv, ms = V.mark(), Sg.mark()
    sRb, sFb, sT, sT2, sW, sM, sA0, sA1, sTile, sBase, sIdle = [Sg() for _ in range(11)]
    vL16, vW, vT, vT2, lI, lG = [V() for _ in range(6)]
    vS = V(4, 2)
    NR = opt.get('gu_ring', 9)
    PRE = opt.get('gu_pre', 6)
    ACT = V(8 * NR, 4); WF = [V(28, 4), V(28, 4)]; ACC = V(56, 4)
    STT = V(16, 4); EXT = V(8, 4); SD = V(4, 2)
    vm, lg = Cnt(a, 'vmcnt', 63), Cnt(a, 'lgkmcnt', 15)
    idle, tail = a.label('gu_idle'), a.label('gu_tail')
    gu_ids(a, sWG, sRb, sFb, sT)
    a(f'''
    v_lshlrev_b32 v{vL16}, 4, v{vLane}
    v_and_b32 v{lI}, 15, v{vLane}
    v_lshrrev_b32 v{lG}, 4, v{vLane}
    ''')
    pg, pd = ctx['gu_prefetch'], ctx['d_prefetch']
    pg(1)
    w0b, w0c = a.label('gu_w0b'), a.label('gu_w0c')
    a(f'''
    s_waitcnt vmcnt({pg.n1})
    s_barrier
    s_cmp_eq_u32 s{sWave}, 0
    s_cbranch_scc1 {w0b}
    ''')
    pg(2)
    a(f'''
    s_branch {w0c}
    {w0b}:
    ''')
    signal(a, ctx, ctx['sSig'], vS)
    qkv_ids(a, sWG, sT, sW, sT2)
    a(f's_lshl_b32 s{sW}, s{sW}, 8\ns_add_u32 s{sW}, s{sW}, {C_PD}\ns_lshl_b32 s{sT}, s{sRb}, 10\ns_add_u32 s{sT}, s{sT}, {C_OP}')
    poll(a, ctx, sT, 4, 8, vS, sT2, extra=(sW, '54'))
    a(f'''
    {w0c}:
    v_mov_b32 v{vW}, v{vL16}
    s_lshl_b32 s{sTile}, s{sRb}, 3
    s_add_u32 s{sTile}, s{sTile}, s{sWave}
    s_lshl_b32 s{sTile}, s{sTile}, 1
    s_mul_i32 s{sA0}, s{sTile}, 20480
    s_add_u32 s{sA0}, s{sA0}, {WS_X1A}
    s_add_u32 s{sA1}, s{sA0}, 20480
    v_lshlrev_b32 v{vT}, 7, v{lI}
    v_lshl_add_u32 v{vT}, v{lG}, 5, v{vT}
    s_lshl_b32 s{sT}, s{sTile}, 11
    s_add_u32 s{sT}, s{sT}, {WS_ST}
    s_waitcnt vmcnt(0)
    s_barrier
    s_cmp_ge_u32 s{sFb}, 31
    s_cbranch_scc1 {idle}
    ''')
    vm.drain()
    stamp()
    na = [0]
    def act_upto(n):
        while na[0] <= min(n, 19):
            s_ = na[0]; na[0] += 1
            for tt, sa in enumerate((sA0, sA1)):
                vm.issue(('A', s_), f'buffer_load_dwordx4 {vr(ACT+8*(s_%NR)+4*tt,4)}, v{vL16}, {WS}, s{sa} offen offset:{1024*(s_&3)} {ld}')
            if s_ & 3 == 3: a(f's_add_u32 s{sA0}, s{sA0}, 4096\ns_add_u32 s{sA1}, s{sA1}, 4096')
    act_upto(1)
    cur = [0]
    def rdW(s_):
        off = s_ * 7168
        base = (off // 57344) * 57344
        if base != cur[0]:
            a(f'v_add_u32 v{vW}, {base - cur[0]}, v{vW}'); cur[0] = base
        return [(('R', s_), f'ds_read_b128 {vr(WF[s_&1]+4*t,4)}, v{vW} offset:{off - base + 1024*t}') for t in range(7)]
    for x in rdW(0): lg.issue(*x)
    act_upto(PRE - 1)
    def stats():
        vm.wait('S')
        for tt in range(2):
            b = STT + 8 * tt
            a(f'''
            v_add_f32 v{b}, v{b}, v{b+2}
            v_add_f32 v{b+1}, v{b+1}, v{b+3}
            v_add_f32 v{b+4}, v{b+4}, v{b+6}
            v_add_f32 v{b+5}, v{b+5}, v{b+7}
            v_add_f32 v{b}, v{b}, v{b+4}
            v_add_f32 v{b+1}, v{b+1}, v{b+5}
            ''')
            for sw in ('32', '16'):
                a(f'''
                v_mov_b32 v{b+2}, v{b}
                v_mov_b32 v{b+3}, v{b+1}
                s_nop 1
                v_permlane{sw}_swap_b32 v{b}, v{b+2}
                v_permlane{sw}_swap_b32 v{b+1}, v{b+3}
                s_nop 0
                v_add_f32 v{b}, v{b}, v{b+2}
                v_add_f32 v{b+1}, v{b+1}, v{b+3}
                ''')
            sd, rl, e = SD + 2 * tt, SD + 2 * tt + 1, EXT + 4 * tt
            a(f'''
            v_mul_f32 v{b}, {hex(f2u(-1/640))}, v{b}
            v_mul_f32 v{b+1}, {hex(f2u(1/640))}, v{b+1}
            v_fma_f32 v{b+1}, -v{b}, v{b}, v{b+1}
            v_max_f32 v{b+1}, 0, v{b+1}
            v_add_f32 v{b+1}, {hex(f2u(1e-5))}, v{b+1}
            v_sqrt_f32 v{sd}, v{b+1}
            v_rsq_f32 v{rl}, v{b+1}
            v_cvt_pk_bf16_f32 v{b+2}, v{b}, v{b}
            v_cvt_pk_bf16_f32 v{b+3}, v{sd}, v{sd}
            v_mul_f32 v{rl}, {hex(f2u(-1.4426950408889634))}, v{rl}
            v_and_b32 v{b+2}, 0xffff0000, v{b+2}
            v_and_b32 v{b+3}, 0xffff0000, v{b+3}
            v_sub_f32 v{b+4}, v{b}, v{b+2}
            v_sub_f32 v{b+5}, v{sd}, v{b+3}
            v_cmp_gt_u32 vcc, 16, v{vLane}
            v_cvt_pk_bf16_f32 v{e}, v{b+2}, v{b+4}
            v_cvt_pk_bf16_f32 v{e+1}, v{b+2}, v{b+3}
            v_cvt_pk_bf16_f32 v{e+2}, v{b+5}, v{b+3}
            v_mov_b32 v{e+3}, 0
            v_cndmask_b32 v{e}, 0, v{e}, vcc
            v_cndmask_b32 v{e+1}, 0, v{e+1}, vcc
            v_cndmask_b32 v{e+2}, 0, v{e+2}, vcc
            ''')
    for s_ in range(20):
        nxt = rdW(s_ + 1) if s_ < 19 else []
        wait2(a, vm, [('A', s_)], lg, [('R', s_)])
        for t in range(7):
            for tt in range(2):
                c = vr(ACC + 8 * t + 4 * tt, 4)
                a(f'v_mfma_f32_16x16x32_bf16 {c}, {vr(WF[s_&1]+4*t,4)}, {vr(ACT+8*(s_%NR)+4*tt,4)}, {c if s_ else 0}')
                if tt == 0 and nxt: lg.issue(*nxt[t])
            if t == 3: act_upto(s_ + PRE)
        if s_ == 20 - PRE:
            for tt in range(2):
                for h in range(2): vm.issue('S', f'buffer_load_dwordx4 {vr(STT+8*tt+4*h,4)}, v{vT}, {WS}, s{sT} offen offset:{2048*tt + 16*h} {ld}')
        if s_ == 18:
            a(f'''
            v_min_u32 v{vT}, 1, v{lG}
            v_lshlrev_b32 v{vT}, 30, v{vT}
            v_lshl_add_u32 v{vT}, v{lI}, 4, v{vT}
            s_mul_i32 s{sT}, s{sFb}, 1792
            s_add_u32 s{sT}, s{sT}, {WS_U}
            ''')
            for t in range(7): vm.issue('U', f'buffer_load_dwordx4 {vr(WF[0]+4*t,4)}, v{vT}, {WS}, s{sT} offen offset:{256*t} {ld}')
            stats()
    vm.wait('U')
    for t in range(7):
        for tt in range(2):
            c = vr(ACC + 8 * t + 4 * tt, 4)
            a(f'v_mfma_f32_16x16x32_bf16 {c}, {vr(WF[0]+4*t,4)}, {vr(EXT+4*tt,4)}, {c}')
    stamp()
    a(f'''
    s_mul_i32 s{sT}, s{sFb}, 7
    s_min_u32 s{sT}, s{sT}, 209
    s_lshl_b32 s{sT}, s{sT}, 8
    s_mul_i32 s{sT2}, s{sTile}, {54*1024}
    s_add_u32 s{sT}, s{sT}, s{sT2}
    s_add_u32 s{sA0}, s{sT}, {WS_HM}
    s_add_u32 s{sA1}, s{sA0}, {54*1024}
    v_lshrrev_b32 v{vT}, 1, v{lG}
    v_lshlrev_b32 v{vT2}, 8, v{vT}
    v_mul_u32_u24 v{vW}, {54*1024}, v{vT}
    v_and_b32 v{vT}, 1, v{lG}
    v_lshlrev_b32 v{vT}, 3, v{vT}
    v_lshl_add_u32 v{vT}, v{lI}, 4, v{vT}
    v_add_u32 v{vT2}, v{vT2}, v{vT}
    v_add_u32 v{vW}, v{vW}, v{vT}
    ''')
    def gate(g, u, n, sd, rl):
        for r in range(n): a(f'v_mul_f32 v{g[r]}, v{g[r]}, v{rl}')
        for r in range(n): a(f'v_exp_f32 v{g[r]}, v{g[r]}')
        for r in range(n): a(f'v_fma_f32 v{g[r]}, v{g[r]}, v{sd}, v{sd}')
        for r in range(n): a(f'v_rcp_f32 v{g[r]}, v{g[r]}')
        for r in range(n): a(f'v_mul_f32 v{g[r]}, v{g[r]}, v{u[r]}')
    P = WF[1]
    for tt in range(2):
        sd, rl = SD + 2 * tt, SD + 2 * tt + 1
        A_ = lambda t: [ACC + 8 * t + 4 * tt + r for r in range(4)]
        g, u = A_(0) + A_(1) + A_(4), A_(2) + A_(3) + A_(5)
        gate(g, u, 12, sd, rl)
        for r in range(6): a(f'v_cvt_pk_bf16_f32 v{P+8*tt+r}, v{g[2*r]}, v{g[2*r+1]}')
        so = sA1 if tt else sA0
        a(f'buffer_store_dwordx4 {vr(P+8*tt,4)}, v{vL16}, {WS}, s{so} offen {st}')
        a(f'buffer_store_dwordx2 {vr(P+8*tt+4,2)}, v{vT2}, {WS}, s{so} offen offset:1024 {st}')
    a(f'v_cmp_gt_u32 vcc, 32, v{vLane}')
    for r in range(4): a(f'v_permlane32_swap_b32 v{ACC+48+r}, v{ACC+52+r}')
    a(f'v_cndmask_b32 v{SD}, v{SD+2}, v{SD}, vcc\nv_cndmask_b32 v{SD+1}, v{SD+3}, v{SD+1}, vcc')
    g, u = [ACC + 48 + r for r in range(4)], [ACC + 52 + r for r in range(4)]
    gate(g, u, 4, SD, SD + 1)
    for r in range(2): a(f'v_cvt_pk_bf16_f32 v{P+16+r}, v{g[2*r]}, v{g[2*r+1]}')
    a(f'''
    buffer_store_dwordx2 {vr(P+16,2)}, v{vW}, {WS}, s{sA0} offen offset:1536 {st}
    s_lshl_b32 s{sT}, s{sRb}, 2
    s_and_b32 s{sT2}, s{sFb}, 3
    s_add_u32 s{sT}, s{sT}, s{sT2}
    s_lshl_b32 s{sT}, s{sT}, 8
    s_add_u32 s{ctx['sSig']}, s{sT}, {C_GU}
    s_barrier
    ''')
    pd(0, 0); pd(1)
    d0, d1, d2 = a.label('gu_d0'), a.label('gu_d1'), a.label('gu_d2')
    a(f's_waitcnt vmcnt({pd.n1})\ns_barrier')
    stamp()
    a(f's_cmp_lg_u32 s{sWave}, 0\ns_cbranch_scc1 {d0}')
    signal(a, ctx, ctx['sSig'], vS)
    a(f's_branch {d1}\n{idle}:')
    n_done = pd.feed.n
    pd(0, pd.n1)
    assert pd.feed.n == n_done
    a(f's_cmp_eq_u32 s{sWave}, 0\ns_cbranch_scc1 {d1}\n{d0}:')
    pd(2)
    a(f'{d1}:')
    V.release(mv); Sg.release(ms)
```

```python
from asm import *
from layout import *
from build import srd
from pack import *
from sync import *
from qkv import qkv_ids

HLP_Q = 25600
HLP_P = 1024

def gen_helpers(a, V, Sg, ctx, ldsP, gate):
    ws, sWG, sWave, vLane = ctx['sWS'], ctx['sWG'], ctx['sWave'], ctx['vLane']
    st, ld = 'sc1', ctx.get('ld_flags', 'sc1')
    WS = sr(ws, 4)
    mv, ms = V.mark(), Sg.mark()
    sP = Sg(8, 4)
    sPd = Sg(2)
    sA, sB, sC = Sg(4), Sg(4), Sg(4)
    sHw, sT, sT2, sTile, sFb, sTt, sL, sSrcA, sSrcB, sDst, sC0, sS1, sS2, sJ, sSrcC, sDstC, sCnt = [Sg() for _ in range(17)]
    vT, vT2, vD, vL16, vA, vCf, vPw, vB1, vB2 = [V() for _ in range(9)]
    vDB = V(5); vS = V(4, 2)
    Fr = V(20, 4); Cf = V(20, 4); acc = V(4, 4); Fb = V(20, 4)
    a(f'''
    s_setprio 2
    s_load_dwordx8 s[{sP}:{sP+7}], s[0:1], {ARG_WO}
    s_load_dwordx2 s[{sPd}:{sPd+1}], s[0:1], {ARG_WD}
    s_sub_u32 s{sHw}, s{sWave}, 4
    s_mul_i32 s{sL}, s{sHw}, {HLP_Q}
    v_lshlrev_b32 v{vL16}, 4, v{vLane}
    s_and_b32 s{sTile}, s{sWG}, 7
    s_mul_i32 s{sTile}, s{sTile}, 28
    s_lshr_b32 s{sT}, s{sWG}, 3
    s_add_u32 s{sTile}, s{sTile}, s{sT}
    s_cmp_ge_u32 s{sT}, 28
    s_cselect_b32 s{sTile}, 255, s{sTile}
    s_mul_i32 s{sFb}, s{sTile}, 9363
    s_lshr_b32 s{sFb}, s{sFb}, 16
    s_mul_i32 s{sT}, s{sFb}, 7
    s_sub_u32 s{sTt}, s{sTile}, s{sT}
    s_mul_i32 s{sSrcA}, s{sFb}, 112
    s_min_u32 s{sSrcA}, s{sSrcA}, {1672*2}
    s_mul_i32 s{sT}, s{sHw}, {160*3456}
    s_add_u32 s{sSrcA}, s{sSrcA}, s{sT}
    s_lshl_b32 s{sT}, s{sTt}, 2
    s_lshr_b32 s{sT2}, 0x6440000, s{sT}
    s_and_b32 s{sT2}, s{sT2}, 15
    s_lshl_b32 s{sT2}, s{sT2}, 4
    s_add_u32 s{sSrcA}, s{sSrcA}, s{sT2}
    s_add_u32 s{sSrcB}, s{sSrcA}, 32
    s_cmp_eq_u32 s{sTt}, 6
    s_cselect_b32 s{sSrcB}, s{sSrcA}, s{sSrcB}
    s_and_b32 s{sC0}, s{sTt}, 1
    s_lshl_b32 s{sC0}, s{sC0}, 3
    s_cmp_ge_u32 s{sTt}, 4
    s_cselect_b32 s{sC0}, 0, s{sC0}
    s_cselect_b32 s{sS1}, 8, 16
    s_bitcmp1_b32 0x30, s{sTt}
    s_cselect_b32 s{sS2}, 16, 5120
    s_mul_i32 s{sDst}, s{sFb}, 20
    s_mul_i32 s{sT}, s{sHw}, 5
    s_add_u32 s{sDst}, s{sDst}, s{sT}
    s_mul_i32 s{sDst}, s{sDst}, 7
    s_add_u32 s{sDst}, s{sDst}, s{sTt}
    s_lshl_b32 s{sDst}, s{sDst}, 10
    s_add_u32 s{sDst}, s{sDst}, {WS_PGU}
    ''')
    a(f'''
    v_lshrrev_b32 v{vT}, 1, v{vLane}
    v_bfe_u32 v{vD}, v{vT}, 2, 2
    v_lshlrev_b32 v{vD}, 3, v{vD}
    v_and_b32 v{vT2}, 3, v{vT}
    v_add_u32 v{vD}, v{vD}, v{vT2}
    v_lshrrev_b32 v{vT2}, 4, v{vT}
    v_lshl_add_u32 v{vD}, v{vT2}, 2, v{vD}
    v_mul_u32_u24 v{vD}, 3456, v{vD}
    v_and_b32 v{vT2}, 1, v{vLane}
    v_lshl_add_u32 v{vD}, v{vT2}, 4, v{vD}
    v_bfe_u32 v{vCf}, v{vLane}, 2, 2
    v_min_u32 v{vCf}, 1, v{vCf}
    v_lshl_add_u32 v{vCf}, v{vCf}, 30, v{vL16}
    v_lshrrev_b32 v{vA}, 2, v{vLane}
    v_mul_u32_u24 v{vB1}, 160, v{vA}
    v_lshlrev_b32 v{vA}, 5, v{vA}
    v_and_b32 v{vT}, 1, v{vLane}
    v_mul_lo_u32 v{vT}, v{vT}, s{sS1}
    v_bfe_u32 v{vT2}, v{vLane}, 1, 1
    v_mul_lo_u32 v{vT2}, v{vT2}, s{sS2}
    v_add3_u32 v{vA}, v{vA}, v{vT}, v{vT2}
    s_add_u32 s{sT}, s{sL}, s{sC0}
    v_add_u32 v{vA}, s{sT}, v{vA}
    v_and_b32 v{vT}, 15, v{vLane}
    v_lshlrev_b32 v{vT}, 6, v{vT}
    v_lshrrev_b32 v{vT2}, 4, v{vLane}
    v_lshl_add_u32 v{vT}, v{vT2}, 4, v{vT}
    s_lshl_b32 s{sT}, s{sHw}, 8
    s_add_u32 s{sT}, s{sT}, {ldsP}
    v_add_u32 v{vPw}, s{sT}, v{vT}
    s_add_u32 s{sT}, s{sL}, 10240
    v_add_u32 v{vB1}, s{sT}, v{vB1}
    v_and_b32 v{vT}, 3, v{vLane}
    v_lshl_add_u32 v{vB2}, v{vT}, 3, v{vB1}
    v_lshl_add_u32 v{vB1}, v{vT}, 4, v{vB1}
    ''')
    sA1, sA0, sBb = sC0, sS1, sS2
    isd, go = a.label('hlp_isd'), a.label('hlp_go')
    a(f'''
    s_lshl_b32 s{sJ}, s{sHw}, 8
    s_add_u32 s{sJ}, s{sJ}, s{sWG}
    s_waitcnt lgkmcnt(0)
    s_bitcmp1_b32 0x2c, s{sTt}
    s_cselect_b32 s{sA}, s{sP+6}, s{sP+4}
    s_cselect_b32 s{sA+1}, s{sP+7}, s{sP+5}
    s_bitcmp1_b32 0x6c, s{sTt}
    s_cselect_b32 s{sB}, s{sP+6}, s{sP+4}
    s_cselect_b32 s{sB+1}, s{sP+7}, s{sP+5}
    ''')
    srd(a, sA, sA, 640 * 3456); srd(a, sB, sB, 640 * 3456)
    a(f'''
    s_cmp_ge_u32 s{sJ}, 160
    s_cbranch_scc1 {isd}
    s_mul_i32 s{sDstC}, s{sJ}, 5120
    s_add_u32 s{sDstC}, s{sDstC}, {WS_PWO}
    s_mul_i32 s{sT}, s{sJ}, 3277
    s_lshr_b32 s{sT}, s{sT}, 16
    s_mul_i32 s{sT2}, s{sT}, 20
    s_sub_u32 s{sP+2}, s{sJ}, s{sT2}
    s_mul_i32 s{sSrcC}, s{sT}, 160
    s_lshl_b32 s{sCnt}, s{sT}, 8
    s_add_u32 s{sCnt}, s{sCnt}, {C_PO}
    s_mul_i32 s{sT}, s{sP+2}, {40*1280}
    s_sub_u32 s{sT2}, s{sP+2}, 16
    s_mul_i32 s{sT2}, s{sT2}, {160*1280}
    s_add_u32 s{sT2}, s{sT2}, {16*1280}
    s_cmp_ge_u32 s{sP+2}, 16
    s_cselect_b32 s{sT}, s{sT2}, s{sT}
    s_cselect_b32 s{sA1}, 80, 20
    s_cselect_b32 s{sA0}, 40, 4
    s_cselect_b32 s{sBb}, 20, 8
    s_add_u32 s{sSrcC}, s{sSrcC}, s{sT}
    s_mov_b32 s{sC}, s{sP}
    s_mov_b32 s{sC+1}, s{sP+1}
    s_mov_b32 s{sC+2}, {640*1280}
    s_branch {go}
    {isd}:
    s_sub_u32 s{sP+2}, s{sJ}, 160
    s_mul_i32 s{sDstC}, s{sP+2}, 5120
    s_add_u32 s{sDstC}, s{sDstC}, {WS_PWD}
    s_mul_i32 s{sT}, s{sP+2}, 1214
    s_lshr_b32 s{sT}, s{sT}, 16
    s_mul_i32 s{sT2}, s{sT}, 54
    s_sub_u32 s{sP+2}, s{sP+2}, s{sT2}
    s_mul_i32 s{sSrcC}, s{sT}, 160
    s_lshl_b32 s{sCnt}, s{sT}, 8
    s_add_u32 s{sCnt}, s{sCnt}, {C_PD}
    s_mul_i32 s{sT}, s{sP+2}, {32*1280}
    s_add_u32 s{sSrcC}, s{sSrcC}, s{sT}
    s_mov_b32 s{sA1}, 16
    s_mov_b32 s{sA0}, 8
    s_mov_b32 s{sBb}, 4
    s_mov_b32 s{sC}, s{sPd}
    s_mov_b32 s{sC+1}, s{sPd+1}
    s_mov_b32 s{sC+2}, {1728*1280}
    {go}:
    s_mov_b32 s{sC+3}, 0x20000
    ''')
    n, rho, u, g = Fb, Fb + 1, Fb + 2, Fb + 3
    for i in range(5):
        d = vDB + i
        a(f'v_add_u32 v{n}, {64*i}, v{vLane}')
        udiv(a, rho, n, 10, 320)
        a(f'''
        v_mul_u32_u24 v{u}, 10, v{rho}
        v_sub_u32 v{u}, v{n}, v{u}
        v_bfe_u32 v{d}, v{rho}, 3, 1
        v_mul_lo_u32 v{d}, v{d}, s{sA1}
        v_bfe_u32 v{g}, v{rho}, 2, 1
        v_mul_lo_u32 v{g}, v{g}, s{sA0}
        v_lshrrev_b32 v{n}, 4, v{rho}
        v_mul_lo_u32 v{n}, v{n}, s{sBb}
        v_and_b32 v{rho}, 3, v{rho}
        v_add3_u32 v{d}, v{d}, v{g}, v{n}
        v_add_u32 v{d}, v{d}, v{rho}
        v_mul_u32_u24 v{d}, 1280, v{d}
        v_lshl_add_u32 v{d}, v{u}, 4, v{d}
        ''')
    lB, lA = a.label('hlp_noB'), a.label('hlp_noA')
    a(f's_cmp_ge_u32 s{sJ}, 592\ns_cbranch_scc1 {lB}')
    gate(vS, sT2, sT, sHw, 'B')
    for i in range(5):
        a(f's_add_u32 s{sT}, s{sL}, {10240 + 1024*i}\ns_mov_b32 m0, s{sT}\ns_nop 0')
        a(f'buffer_load_dwordx4 v{vDB+i}, {sr(sC,4)}, s{sSrcC} offen lds')
    a('s_waitcnt vmcnt(0)')
    for i, (r, o) in enumerate(((vB1, 0), (vB1, 8), (vB1, 64), (vB1, 72), (vB2, 128))):
        for h in range(2): a(f'ds_read_b64_tr_b16 {vr(Fb+4*i+2*h,2)}, v{r} offset:{o + h*16*160}')
    for i in range(5):
        a(f's_waitcnt lgkmcnt({8-2*i})')
        if i == 4: a(f's_add_u32 s{sDstC}, s{sDstC}, 4096')
        a(f'buffer_store_dwordx4 {vr(Fb+4*i,4)}, v{vL16}, {WS}, s{sDstC} offen offset:{1024*(i&3)} {st}')
    a('s_waitcnt vmcnt(0)')
    signal(a, ctx, sCnt, vS)
    a(f'{lB}:\ns_cmp_ge_u32 s{sTile}, 217\ns_cbranch_scc1 {lA}')
    gate(vS, sT2, sT, sHw, 'A')
    for i in range(5):
        a(f'''
        s_add_u32 s{sT}, s{sL}, {1024*i}
        s_mov_b32 m0, s{sT}
        s_add_u32 s{sT}, s{sT}, 5120
        buffer_load_dwordx4 v{vD}, {sr(sA,4)}, s{sSrcA} offen lds
        s_mov_b32 m0, s{sT}
        s_add_u32 s{sSrcA}, s{sSrcA}, {32*3456}
        buffer_load_dwordx4 v{vD}, {sr(sB,4)}, s{sSrcB} offen lds
        s_add_u32 s{sSrcB}, s{sSrcB}, {32*3456}
        ''')
    a(f's_mul_i32 s{sT}, s{sHw}, 5120\ns_add_u32 s{sT}, s{sT}, {WS_MODB}')
    for i in range(5):
        if i == 4: a(f's_add_u32 s{sT}, s{sT}, 4096')
        a(f'buffer_load_dwordx4 {vr(Cf+4*i,4)}, v{vCf}, {WS}, s{sT} offen offset:{1024*(i&3)}')
    a('s_waitcnt vmcnt(0)')
    for i in range(5):
        for h in range(2): a(f'ds_read_b64_tr_b16 {vr(Fr+4*i+2*h,2)}, v{vA} offset:{1024*i + 512*h}')
    for i in range(5):
        a(f's_waitcnt lgkmcnt({8-2*i})')
        a(f'buffer_store_dwordx4 {vr(Fr+4*i,4)}, v{vL16}, {WS}, s{sDst} offen {st}')
        a(f'v_mfma_f32_16x16x32_bf16 {vr(acc,4)}, {vr(Fr+4*i,4)}, {vr(Cf+4*i,4)}, {vr(acc,4) if i else 0}')
        if i < 4: a(f's_add_u32 s{sDst}, s{sDst}, 7168')
    a(f'''
    s_mov_b32 exec_lo, 0x000f000f
    s_mov_b32 exec_hi, 0x000f000f
    s_nop 7
    ds_write_b128 v{vPw}, {vr(acc,4)}
    s_mov_b64 exec, -1
    {lA}:
    ''')
    gate(vS, sT2, sT, sHw, 'W')
    qkv_ids(a, sWG, sT2, sJ, sT)
    a(f's_lshl_b32 s{sT}, s{sJ}, 8\ns_add_u32 s{sT}, s{sT}, {C_PO}')
    poll(a, ctx, sT, 1, 20, vS, sT2, sleep=32)
    lp = a.label('hlp_wo')
    a(f'''
    s_mul_i32 s{sJ}, s{sJ}, 102400
    s_add_u32 s{sJ}, s{sJ}, {WS_PWO}
    s_add_u32 s{sJ}, s{sJ}, s{sL}
    s_add_u32 s{sT}, s{sL}, {HLP_Q}
    s_waitcnt lgkmcnt(0)
    {lp}:
    s_mov_b32 m0, s{sL}
    s_add_u32 s{sL}, s{sL}, 1024
    buffer_load_dwordx4 v{vL16}, {WS}, s{sJ} offen {ld} lds
    s_add_u32 s{sJ}, s{sJ}, 1024
    s_cmp_lt_u32 s{sL}, s{sT}
    s_cbranch_scc1 {lp}
    ''')
    if 'helper_extra' in ctx: ctx['helper_extra']()
    a('s_waitcnt vmcnt(0) lgkmcnt(0)\ns_setprio 0')
    def after_barrier():
        fin = a.label('hlp_fin')
        a(f'''
        s_cmp_lg_u32 s{sWave}, 4
        s_cbranch_scc1 {fin}
        s_cmp_ge_u32 s{sTile}, 217
        s_cbranch_scc1 {fin}
        v_and_b32 v{vT}, 15, v{vLane}
        v_lshrrev_b32 v{vT2}, 4, v{vLane}
        v_lshlrev_b32 v{vT2}, 8, v{vT2}
        v_lshl_add_u32 v{vT2}, v{vT}, 2, v{vT2}
        v_add_u32 v{vT2}, {ldsP}, v{vT2}
        ''')
        for n in range(4): a(f'ds_read_b32 v{acc+n}, v{vT2} offset:{64*n}')
        u1, u2, t1, t2 = acc, acc + 2, acc + 1, acc + 3
        a(f'''
        s_waitcnt lgkmcnt(0)
        v_add_f32 v{u1}, v{acc}, v{acc+1}
        v_add_f32 v{u2}, v{acc+2}, v{acc+3}
        v_mov_b32 v{t1}, v{u1}
        v_mov_b32 v{t2}, v{u2}
        s_nop 1
        v_permlane32_swap_b32 v{u1}, v{t1}
        v_permlane32_swap_b32 v{u2}, v{t2}
        s_nop 0
        v_add_f32 v{u1}, v{u1}, v{t1}
        v_add_f32 v{u2}, v{u2}, v{t2}
        v_mov_b32 v{t1}, v{u1}
        v_mov_b32 v{t2}, v{u2}
        s_nop 1
        v_permlane16_swap_b32 v{u1}, v{t1}
        v_permlane16_swap_b32 v{u2}, v{t2}
        s_nop 0
        v_add_f32 v{u1}, v{u1}, v{t1}
        v_add_f32 v{u2}, v{u2}, v{t2}
        v_cvt_pk_bf16_f32 v{Fr}, v{u1}, v{u1}
        v_cvt_pk_bf16_f32 v{Fr+4}, v{u2}, v{u2}
        v_and_b32 v{t1}, 0xffff0000, v{Fr}
        v_and_b32 v{t2}, 0xffff0000, v{Fr+4}
        v_sub_f32 v{u1}, v{u1}, v{t1}
        v_sub_f32 v{u2}, v{u2}, v{t2}
        v_cvt_pk_bf16_f32 v{Fr+1}, v{u1}, v{t2}
        v_cvt_pk_bf16_f32 v{Fr+2}, v{t2}, v{u2}
        v_mov_b32 v{Fr+3}, 0
        v_lshlrev_b32 v{vT}, 4, v{vT}
        s_lshl_b32 s{sT}, s{sTile}, 8
        s_add_u32 s{sT}, s{sT}, {WS_U}
        s_mov_b64 exec, 0xffff
        buffer_store_dwordx4 {vr(Fr,4)}, v{vT}, {WS}, s{sT} offen {st}
        s_mov_b64 exec, -1
        s_lshl_b32 s{sT}, s{sFb}, 8
        s_add_u32 s{sT}, s{sT}, {C_PG}
        s_waitcnt vmcnt(0)
        ''')
        signal(a, ctx, sT, vS)
        a(f'{fin}:')
        V.release(mv); Sg.release(ms)
    return after_barrier
```

```python
from asm import *
from layout import *
from attn import f2u
from sync import *
from qkv import qkv_ids, gu_ids

GRP = 40960
XCH = 143360

class Feed:
    def __init__(self, a, ctx, sSrc, sM, vL16, vm, ld):
        self.a, self.ctx, self.sSrc, self.sM, self.vL16, self.vm, self.ld = a, ctx, sSrc, sM, vL16, vm, ld
    def start(self, sBase, n0, w0, sT, lds0=0):
        a, w = self.a, self.ctx['sWave']
        self.n, self.w0 = n0, w0
        a(f'''
        s_add_u32 s{sT}, s{w}, {n0 - w0}
        s_lshl_b32 s{sT}, s{sT}, 10
        s_add_u32 s{self.sSrc}, s{sBase}, s{sT}
        s_add_u32 s{self.sM}, s{sT}, {lds0}
        ''')
    def round(self, n1, tag, wrap=None):
        a, w, nw = self.a, self.ctx['sWave'], 8 - self.w0
        skip = None
        if self.n + nw > n1:
            skip = a.label('feed_skip')
            a(f's_cmp_ge_u32 s{w}, {self.w0 + n1 - self.n}\ns_cbranch_scc1 {skip}')
        a(f's_mov_b32 m0, s{self.sM}\ns_add_u32 s{self.sM}, s{self.sM}, {1024*nw}')
        a(f'buffer_load_dwordx4 v{self.vL16}, {sr(self.ctx["sWS"],4)}, s{self.sSrc} offen {self.ld} lds')
        a(f's_add_u32 s{self.sSrc}, s{self.sSrc}, {1024*nw}')
        if skip: a(f'{skip}:')
        else: self.vm.issue(tag)
        self.n = min(n1, self.n + nw)

def gen_proj(a, V, Sg, ctx, kind, RES, opt=None):
    opt = opt or {}
    ws, sWG, sWave, vLane = ctx['sWS'], ctx['sWG'], ctx['sWave'], ctx['vLane']
    st, ld = 'sc1', ctx['ld_flags']
    stamp = ctx.get('stamp', lambda: None)
    WS = sr(ws, 4)
    NS = 20 if kind == 'o' else 54
    ACTB = WS_O if kind == 'o' else WS_HM
    NI = NS // 2
    NG = (NS + 7) // 8
    NSL = 4
    sX = ctx['sX'] if kind == 'o' else ctx['sOut']
    mv, ms = V.mark(), Sg.mark()
    sRb, sCb, sT, sT2, sKh, sTg, sW, sM, sAct, sR, sBase = [Sg() for _ in range(11)]
    vL16, vW0, vW1, vW2, vT, vT2, lI, lG, vTok, vTok2 = [V() for _ in range(10)]
    vS = V(4, 2)
    ACT = V(4 * NI, 4); WF = [V(20, 4), V(20, 4)]; ACC = V(20, 4)
    GA = V(12, 4); C1 = V(12, 4) if kind == 'o' else None
    vm, lg = Cnt(a, 'vmcnt', 63), Cnt(a, 'lgkmcnt', 15)
    qkv_ids(a, sWG, sRb, sCb, sT)
    modoff = (1280 if kind == 'o' else 3200) * 4
    a(f'''
    s_lshr_b32 s{sKh}, s{sWave}, 2
    s_and_b32 s{sTg}, s{sWave}, 3
    v_lshlrev_b32 v{vL16}, 4, v{vLane}
    v_and_b32 v{lI}, 15, v{vLane}
    v_lshrrev_b32 v{lG}, 4, v{vLane}
    s_mul_i32 s{sT}, s{sCb}, 320
    s_add_u32 s{sT}, s{sT}, {WS_MOD + modoff}
    s_lshl_b32 s{sT2}, s{sKh}, 7
    s_add_u32 s{sT2}, s{sT2}, s{sT}
    v_lshlrev_b32 v{vT}, 5, v{lG}
    v_lshlrev_b32 v{vT2}, 4, v{lG}
    buffer_load_dwordx4 {vr(GA,4)}, v{vT}, {WS}, s{sT2} offen
    buffer_load_dwordx4 {vr(GA+4,4)}, v{vT}, {WS}, s{sT2} offen offset:16
    buffer_load_dwordx4 {vr(GA+8,4)}, v{vT2}, {WS}, s{sT} offen offset:256
    s_lshl_b32 s{sR}, s{sRb}, 2
    s_add_u32 s{sR}, s{sR}, s{sTg}
    s_mul_i32 s{sAct}, s{sR}, {16*1280}
    s_mul_i32 s{sM}, s{sCb}, 160
    s_add_u32 s{sAct}, s{sAct}, s{sM}
    v_mul_u32_u24 v{vTok}, 1280, v{lI}
    v_add_u32 v{vTok}, s{sAct}, v{vTok}
    v_lshl_add_u32 v{vTok2}, v{lG}, 3, v{vTok}
    v_add_u32 v{vTok2}, 128, v{vTok2}
    v_lshl_add_u32 v{vTok}, v{lG}, 4, v{vTok}
    s_lshl_b32 s{sM}, s{sKh}, 6
    v_add_u32 v{vTok}, s{sM}, v{vTok}
    ''')
    if kind == 'o':
        a(f'''
        s_add_u32 s{sT}, s{sT}, {1280*4}
        s_add_u32 s{sT2}, s{sT2}, {1280*4}
        buffer_load_dwordx4 {vr(C1,4)}, v{vT}, {WS}, s{sT2} offen
        buffer_load_dwordx4 {vr(C1+4,4)}, v{vT}, {WS}, s{sT2} offen offset:16
        buffer_load_dwordx4 {vr(C1+8,4)}, v{vT2}, {WS}, s{sT} offen offset:256
        buffer_load_dwordx4 {vr(RES+4,4)}, v{vTok}, {sr(sX,4)}, 0 offen
        buffer_load_dwordx2 {vr(RES+10,2)}, v{vTok2}, {sr(sX,4)}, 0 offen
        ''')
    a(f'''
    s_mul_i32 s{sAct}, s{sR}, {NS}
    s_add_u32 s{sAct}, s{sAct}, s{sKh}
    s_lshl_b32 s{sAct}, s{sAct}, 10
    s_add_u32 s{sAct}, s{sAct}, {ACTB}
    s_mul_i32 s{sT}, s{sKh}, {5120 + 2048}
    v_add_u32 v{vW0}, s{sT}, v{vL16}
    s_mul_i32 s{sT}, s{sKh}, {5120 - 2048}
    s_add_u32 s{sT}, s{sT}, 2048
    v_add_u32 v{vW1}, s{sT}, v{vL16}
    s_mul_i32 s{sT}, s{sKh}, 5120
    s_add_u32 s{sT}, s{sT}, 4096
    v_add_u32 v{vW2}, s{sT}, v{vL16}
    ''')
    np_ = a.label('proj_nopoll')
    a(f'''
    s_cmp_lg_u32 s{sWave}, 0
    s_cbranch_scc1 {np_}
    s_lshr_b32 s{sT}, s{sRb}, 2
    s_lshl_b32 s{sT}, s{sT}, 10
    s_add_u32 s{sT}, s{sT}, {C_ATT if kind == 'o' else C_GU}
    ''')
    if kind == 'o':
        gu_ids(a, sWG, sT2, sBase, sW)
        a(f's_cmp_ge_u32 s{sBase}, 31\ns_cselect_b32 s{sM}, 0, 7\ns_lshl_b32 s{sW}, s{sBase}, 8\ns_add_u32 s{sW}, s{sW}, {C_PG}')
        poll(a, ctx, sT, 4, 8, vS, sT2, extra=(sW, f's{sM}'))
    else:
        poll(a, ctx, sT, 4, 8, vS, sT2, last=7)
    a(f'{np_}:\ns_waitcnt vmcnt(0)\ns_barrier')
    stamp()
    feed = Feed(a, ctx, sW, sM, vL16, vm, ld)
    if kind == 'd':
        a(f's_mul_i32 s{sBase}, s{sCb}, {NS*5120}\ns_add_u32 s{sBase}, s{sBase}, {WS_PWD}')
    na = [0]
    def act_upto(n):
        while na[0] < min(NI, n):
            i = na[0]; na[0] += 1
            vm.issue(('A', i), f'buffer_load_dwordx4 {vr(ACT+4*i,4)}, v{vL16}, {WS}, s{sAct} offen offset:{2048*(i&1)} {ld}')
            if i & 1: a(f's_add_u32 s{sAct}, s{sAct}, 4096')
    cur = [0]
    def rdW(i):
        G = i // 4
        off = (G % NSL) * GRP + (i % 4) * 10240
        base = off // 51200 * 51200
        if base != cur[0]:
            for v_ in (vW0, vW1, vW2): a(f'v_add_u32 v{v_}, {(base - cur[0]) & 0xffffffff}, v{v_}')
            cur[0] = base
        off -= base
        return [(('R', i), f'ds_read_b128 {vr(WF[i&1]+4*t,4)}, v{v_} offset:{off + o}')
                for t, (v_, o) in enumerate(((vW0, 0), (vW0, 1024), (vW1, 0), (vW1, 1024), (vW2, 0)))]
    APRE = opt.get('apre_' + kind, 10)
    act_upto(APRE)
    for x in rdW(0): lg.issue(*x)
    for i in range(NI):
        G = i // 4
        newgrp = kind == 'd' and i % 4 == 3 and i + 1 < NI
        nxt = []
        if i + 1 < NI and not (newgrp and G + 1 >= NSL): nxt = rdW(i + 1)
        wait2(a, vm, [('A', i)], lg, [('R', i)])
        if newgrp:
            if G + 1 >= NSL: vm.wait(('W', G + 1))
            a('s_barrier')
            if G + 1 >= NSL: nxt = rdW(i + 1)
        for t in range(5):
            c = vr(ACC + 4 * t, 4)
            a(f'v_mfma_f32_16x16x32_bf16 {c}, {vr(WF[i&1]+4*t,4)}, {vr(ACT+4*i,4)}, {c if i else 0}')
            if nxt: lg.issue(*nxt[t])
        act_upto(i + 1 + APRE)
        if newgrp and G + NSL < NG:
            n0 = 40 * (G + NSL); n1 = min(NS * 5, n0 + 40)
            feed.start(sBase, n0, 0, sT, lds0=((G % NSL) * GRP - n0 * 1024) & 0xffffffff)
            while feed.n < n1: feed.round(n1, ('W', G + NSL))
    stamp()
    k1, k2, k3 = a.label('proj_k1'), a.label('proj_k2'), a.label('proj_k3')
    xch = XCH if kind == 'o' else 0
    if kind == 'd': a('s_barrier')
    a(f'''
    s_lshl_b32 s{sT}, s{sTg}, 11
    s_mul_i32 s{sT2}, s{sTg}, 3072
    s_add_u32 s{sT2}, s{sT2}, 8192
    s_cmp_eq_u32 s{sKh}, 0
    s_cselect_b32 s{sM}, s{sT}, s{sT2}
    s_cselect_b32 s{sW}, s{sT2}, s{sT}
    v_add_u32 v{vW0}, s{sM}, v{vL16}
    v_add_u32 v{vW1}, s{sW}, v{vL16}
    v_add_u32 v{vW0}, {xch}, v{vW0}
    v_add_u32 v{vW1}, {xch}, v{vW1}
    ds_write_b128 v{vW0}, {vr(ACC+8,4)}
    ds_write_b128 v{vW0}, {vr(ACC+12,4)} offset:1024
    s_cbranch_scc1 {k2}
    ds_write_b128 v{vW0}, {vr(ACC+16,4)} offset:2048
    {k2}:
    ''')
    if kind == 'o':
        for r in range(4): a(f'v_lshlrev_b32 v{RES+2*r}, 16, v{RES+4+r}\nv_and_b32 v{RES+2*r+1}, 0xffff0000, v{RES+4+r}')
        for r in range(2): a(f'v_lshlrev_b32 v{RES+8+2*r}, 16, v{RES+10+r}\nv_and_b32 v{RES+8+2*r+1}, 0xffff0000, v{RES+10+r}')
    a('s_waitcnt lgkmcnt(0)\ns_barrier')
    for r in range(3): a(f'ds_read_b128 {vr(WF[0]+4*r,4)}, v{vW1} offset:{1024*r}')
    if kind == 'o': ctx['gu_prefetch'](0)
    src = [ACC + r for r in range(8)] + [ACC + 16 + r for r in range(4)]
    P = WF[1]
    a('s_waitcnt lgkmcnt(1)')
    for r in range(8): a(f'v_add_f32 v{src[r]}, v{src[r]}, v{WF[0]+r}')
    for r in range(8): a(f'v_fma_f32 v{RES+r}, v{src[r]}, v{GA+r}, v{RES+r}')
    if kind == 'o':
        for r in range(8): a(f'v_mul_f32 v{C1+r}, v{C1+r}, v{RES+r}')
        for r in range(4): a(f'v_cvt_pk_bf16_f32 v{P+r}, v{C1+2*r}, v{C1+2*r+1}')
        s1, s2, t1, t2 = GA, GA + 1, GA + 2, GA + 3
        a(f'''
        s_mul_i32 s{sT}, s{sR}, 20480
        s_mul_i32 s{sT2}, s{sCb}, 2560
        s_add_u32 s{sT}, s{sT}, s{sT2}
        s_add_u32 s{sT}, s{sT}, {WS_X1A}
        s_lshl_b32 s{sT2}, s{sKh}, 10
        s_add_u32 s{sT2}, s{sT2}, s{sT}
        buffer_store_dwordx4 {vr(P,4)}, v{vL16}, {WS}, s{sT2} offen {st}
        v_mul_f32 v{s2}, v{RES}, v{RES}
        v_add_f32 v{s1}, v{RES}, v{RES+1}
        v_fmac_f32 v{s2}, v{RES+1}, v{RES+1}
        ''')
        for r in range(2, 8): a(f'v_add_f32 v{s1}, v{s1}, v{RES+r}\nv_fmac_f32 v{s2}, v{RES+r}, v{RES+r}')
        a(f's_cmp_lg_u32 s{sKh}, 0\ns_cbranch_scc1 {k1}\ns_waitcnt lgkmcnt(0)')
        for r in range(8, 12): a(f'v_add_f32 v{src[r]}, v{src[r]}, v{WF[0]+r}')
        for r in range(8, 12): a(f'v_fma_f32 v{RES+r}, v{src[r]}, v{GA+r}, v{RES+r}')
        for r in range(8, 12): a(f'v_mul_f32 v{C1+r}, v{C1+r}, v{RES+r}')
        for r in range(4, 6): a(f'v_cvt_pk_bf16_f32 v{P+r}, v{C1+2*r}, v{C1+2*r+1}')
        a(f'''
        v_lshrrev_b32 v{vT}, 1, v{lG}
        v_lshlrev_b32 v{vT}, 8, v{vT}
        v_lshl_add_u32 v{vT}, v{lI}, 4, v{vT}
        v_and_b32 v{vT2}, 1, v{lG}
        v_lshl_add_u32 v{vT}, v{vT2}, 3, v{vT}
        buffer_store_dwordx2 {vr(P+4,2)}, v{vT}, {WS}, s{sT} offen offset:2048 {st}
        ''')
        for r in range(8, 12): a(f'v_add_f32 v{s1}, v{s1}, v{RES+r}\nv_fmac_f32 v{s2}, v{RES+r}, v{RES+r}')
        a(f'{k1}:')
        for sw in ('32', '16'):
            a(f'''
            v_mov_b32 v{t1}, v{s1}
            v_mov_b32 v{t2}, v{s2}
            s_nop 1
            v_permlane{sw}_swap_b32 v{s1}, v{t1}
            v_permlane{sw}_swap_b32 v{s2}, v{t2}
            s_nop 0
            v_add_f32 v{s1}, v{s1}, v{t1}
            v_add_f32 v{s2}, v{s2}, v{t2}
            ''')
        a(f'''
        s_lshl_b32 s{sT}, s{sCb}, 4
        s_lshl_b32 s{sT2}, s{sKh}, 3
        s_add_u32 s{sT}, s{sT}, s{sT2}
        s_lshl_b32 s{sT2}, s{sR}, 11
        s_add_u32 s{sT}, s{sT}, s{sT2}
        s_add_u32 s{sT}, s{sT}, {WS_ST}
        v_lshlrev_b32 v{vT}, 7, v{lI}
        s_mov_b64 exec, 0xffff
        buffer_store_dwordx2 {vr(s1,2)}, v{vT}, {WS}, s{sT} offen {st}
        s_mov_b64 exec, -1
        s_waitcnt lgkmcnt(0)
        ''')
        a(f'''
        s_lshr_b32 s{sT}, s{sRb}, 2
        s_lshl_b32 s{sT}, s{sT}, 2
        s_and_b32 s{sT2}, s{sRb}, 3
        s_add_u32 s{sT}, s{sT}, s{sT2}
        s_lshl_b32 s{sT}, s{sT}, 8
        s_add_u32 s{ctx['sSig']}, s{sT}, {C_OP}
        ''')
    else:
        for r in range(4): a(f'v_cvt_pk_bf16_f32 v{P+r}, v{RES+2*r}, v{RES+2*r+1}')
        a(f'''
        buffer_store_dwordx4 {vr(P,4)}, v{vTok}, {sr(sX,4)}, 0 offen
        s_cmp_lg_u32 s{sKh}, 0
        s_cbranch_scc1 {k1}
        s_waitcnt lgkmcnt(0)
        ''')
        for r in range(8, 12): a(f'v_add_f32 v{src[r]}, v{src[r]}, v{WF[0]+r}')
        for r in range(8, 12): a(f'v_fma_f32 v{RES+r}, v{src[r]}, v{GA+r}, v{RES+r}')
        for r in range(4, 6): a(f'v_cvt_pk_bf16_f32 v{P+r}, v{RES+2*r}, v{RES+2*r+1}')
        a(f'buffer_store_dwordx2 {vr(P+4,2)}, v{vTok2}, {sr(sX,4)}, 0 offen\n{k1}:')
    V.release(mv); Sg.release(ms)
```

```python
from asm import *
from layout import *
from attn import f2u
from build import srd
from pack import udiv

QKV_H, QKV_C = 0, 81920
QKV_LDS = QKV_C + 6144

def qkv_ids(a, sWG, sRb, sCb, sT):
    a(f'''
    s_bfe_u32 s{sRb}, s{sWG}, 0x20001
    s_lshl_b32 s{sRb}, s{sRb}, 3
    s_lshr_b32 s{sT}, s{sWG}, 5
    s_add_u32 s{sRb}, s{sRb}, s{sT}
    s_and_b32 s{sCb}, s{sWG}, 1
    s_lshl_b32 s{sCb}, s{sCb}, 2
    s_bfe_u32 s{sT}, s{sWG}, 0x20003
    s_add_u32 s{sCb}, s{sCb}, s{sT}
    ''')

def gu_ids(a, sWG, sRb, sFb, sT):
    a(f'''
    s_bfe_u32 s{sRb}, s{sWG}, 0x10002
    s_lshl_b32 s{sRb}, s{sRb}, 2
    s_bfe_u32 s{sT}, s{sWG}, 0x20003
    s_add_u32 s{sRb}, s{sRb}, s{sT}
    s_and_b32 s{sFb}, s{sWG}, 3
    s_lshl_b32 s{sFb}, s{sFb}, 3
    s_lshr_b32 s{sT}, s{sWG}, 5
    s_add_u32 s{sFb}, s{sFb}, s{sT}
    ''')

def gen_qkv(a, V, Sg, ctx, opt=None):
    opt = opt or {}
    ws, sWG, sWave, vLane = ctx['sWS'], ctx['sWG'], ctx['sWave'], ctx['vLane']
    st = ctx.get('st_flags', '')
    stamp = ctx.get('stamp', lambda: None)
    WS = sr(ws, 4)
    mv, ms = V.mark(), Sg.mark()
    sX = Sg(4)
    sRb, sCb, sT, sT2, sK, sW0, sW1, sA, sB, sI2, sTg = [Sg() for _ in range(11)]
    vT, vT2, vT3, vH0, vH1, vL16 = [V() for _ in range(6)]
    NW = 12
    WF = V(8 * NW, 4)
    m2 = V.mark()
    X = V(40, 4); CB = [V(16, 4), V(16, 4)]; XF = V(8, 4); PR = V(6, 2); vH0x = V()
    vX1, vH2 = XF + 4, XF + 5
    if 'sX' in ctx: sX = ctx['sX']
    else: a(f's_load_dwordx2 s[{sX}:{sX+1}], s[0:1], {ARG_X}')
    qkv_ids(a, sWG, sRb, sCb, sT)
    a(f'''
    v_lshrrev_b32 v{vT}, 3, v{vLane}
    v_and_b32 v{vT2}, 7, v{vLane}
    v_mul_u32_u24 v{vH0x}, 1280, v{vT}
    v_lshl_add_u32 v{vH0x}, v{vT2}, 4, v{vH0x}
    v_lshlrev_b32 v{vL16}, 4, v{vLane}
    s_mul_i32 s{sT}, s{sRb}, {64*1280}
    s_lshl_b32 s{sT2}, s{sWave}, 7
    s_add_u32 s{sA}, s{sT}, s{sT2}
    s_lshr_b32 s{sI2}, s{sWave}, 2
    s_add_u32 s{sI2}, s{sI2}, 8
    s_and_b32 s{sTg}, s{sWave}, 3
    s_lshl_b32 s{sTg}, s{sTg}, 1
    s_mul_i32 s{sB}, s{sTg}, {8*1280}
    s_add_u32 s{sB}, s{sB}, s{sT}
    s_lshl_b32 s{sT2}, s{sI2}, 7
    s_add_u32 s{sB}, s{sB}, s{sT2}
    s_lshl_b32 s{sT2}, s{sWave}, 2
    s_lshr_b32 s{sW0}, 0xeca47520, s{sT2}
    s_and_b32 s{sW0}, s{sW0}, 15
    s_lshr_b32 s{sW1}, 0xedb98631, s{sT2}
    s_and_b32 s{sW1}, s{sW1}, 15
    s_mul_i32 s{sT2}, s{sCb}, 15
    s_add_u32 s{sW0}, s{sW0}, s{sT2}
    s_add_u32 s{sW1}, s{sW1}, s{sT2}
    s_mul_i32 s{sW0}, s{sW0}, 20480
    s_mul_i32 s{sW1}, s{sW1}, 20480
    s_add_u32 s{sW0}, s{sW0}, {WS_PQKV}
    s_add_u32 s{sW1}, s{sW1}, {WS_PQKV}
    s_cmp_eq_u32 s{sWave}, 7
    s_cselect_b32 s{sW1}, 0x40000000, s{sW1}
    s_lshl_b32 s{sK}, s{sRb}, 9
    s_add_u32 s{sK}, s{sK}, {WS_LN1 - 1024}
    s_mov_b32 s{sT}, {WS_MOD}
    s_mov_b32 m0, {QKV_C}
    s_cmp_lg_u32 s{sWave}, 0
    s_waitcnt lgkmcnt(0)
    ''')
    srd(a, sX, sX, S * 1280)
    nt_ = a.label('qkv_notab')
    a(f's_cbranch_scc1 {nt_}')
    for i in range(4): a(f'buffer_load_dwordx4 v{vL16}, {WS}, s{sT} offen offset:{1024*i} lds')
    a(f'''
    s_mov_b32 m0, {QKV_C + 4096}
    s_add_u32 s{sT}, s{sT}, 4096
    buffer_load_dwordx4 v{vL16}, {WS}, s{sT} offen lds
    s_mov_b32 exec_hi, 0
    buffer_load_dwordx4 v{vL16}, {WS}, s{sK} offen offset:1024 lds
    s_mov_b64 exec, -1
    {nt_}:
    ''')
    vm = Cnt(a, 'vmcnt', 63)
    vm.issue('T')
    def ldX(n):
        if n == 8: a(f's_mov_b32 s{sA}, s{sB}')
        vm.issue(('X', n), f'buffer_load_dwordx4 {vr(X+4*n,4)}, v{vH0x}, {sr(sX,4)}, s{sA} offen')
        if n < 9: a(f's_add_u32 s{sA}, s{sA}, {8*1280}')
    XPRE = opt.get('xpre', 3)
    for n in range(XPRE): ldX(n)
    def ldW(s_):
        vm.issue(('W', s_), f'buffer_load_dwordx4 {vr(WF+8*(s_%NW),4)}, v{vL16}, {WS}, s{sW0} offen offset:{1024*(s_&3)}')
        vm.issue(('W', s_), f'buffer_load_dwordx4 {vr(WF+8*(s_%NW)+4,4)}, v{vL16}, {WS}, s{sW1} offen offset:{1024*(s_&3)}')
        if s_ & 3 == 3 and s_ < 19: a(f's_add_u32 s{sW0}, s{sW0}, 4096\ns_add_u32 s{sW1}, s{sW1}, 4096')
    vA0, vA1 = XF, XF + 1
    a(f'''
    v_and_b32 v{vA0}, 3, v{vT2}
    v_lshrrev_b32 v{vA1}, 2, v{vT2}
    v_mul_u32_u24 v{vT3}, 12, v{vA1}
    v_add_u32 v{vT3}, v{vT3}, v{vA0}
    v_xor_b32 v{vT3}, v{vT3}, v{vT}
    v_lshlrev_b32 v{vT3}, 4, v{vT3}
    v_lshl_add_u32 v{vT3}, v{vA0}, 8, v{vT3}
    v_lshl_add_u32 v{vT3}, v{vA1}, 12, v{vT3}
    s_lshl_b32 s{sT}, s{sWave}, 13
    v_add_u32 v{vH1}, s{sT}, v{vT3}
    s_lshl_b32 s{sT}, s{sI2}, 13
    s_lshl_b32 s{sT2}, s{sTg}, 9
    s_add_u32 s{sT}, s{sT}, s{sT2}
    v_add_u32 v{vT3}, s{sT}, v{vT3}
    v_lshlrev_b32 v{vT2}, 5, v{vT2}
    s_lshl_b32 s{sT}, s{sWave}, 8
    s_add_u32 s{sT}, s{sT}, {QKV_C}
    v_add_u32 v{vX1}, s{sT}, v{vT2}
    s_lshl_b32 s{sT}, s{sI2}, 8
    s_add_u32 s{sT}, s{sT}, {QKV_C}
    v_add_u32 v{vH2}, s{sT}, v{vT2}
    v_lshlrev_b32 v{vT}, 3, v{vT}
    v_add_u32 v{vT}, {QKV_C + 5120}, v{vT}
    s_lshl_b32 s{sT}, s{sTg}, 6
    v_add_u32 v{vT2}, s{sT}, v{vT}
    v_xor_b32 v{vH0}, 128, v{vH1}
    ''')
    vm.wait('T'); a('s_barrier')
    for b, ad in ((0, vX1), (1, vH2)):
        for h in range(2):
            a(f'ds_read_b128 {vr(CB[b]+4*h,4)}, v{ad} offset:{2560 + 16*h}')
            a(f'ds_read_b128 {vr(CB[b]+8+4*h,4)}, v{ad} offset:{16*h}')
    def rdS(n):
        a(f'ds_read_b64 {vr(PR+2*(n%3),2)}, v{vT if n < 8 else vT2} offset:{64*(n&7)}')
    rdS(0); rdS(1)
    stamp()
    NPRE = opt.get('npre', 6)
    for n in range(10):
        c = CB[n >> 3]; pr = PR + 2 * (n % 3)
        if n + XPRE < 10: ldX(n + XPRE)
        vm.wait(('X', n))
        for r in range(4):
            a(f'v_lshlrev_b32 v{XF+2*r}, 16, v{X+4*n+r}\nv_and_b32 v{XF+2*r+1}, 0xffff0000, v{X+4*n+r}')
        a(f's_waitcnt lgkmcnt({1 if n == 0 else (2 if n < 9 else 1)})')
        for r in range(4):
            a(f'v_pk_fma_f32 {vr(XF+2*r,2)}, {vr(XF+2*r,2)}, {vr(pr,2)}, {vr(pr,2)} op_sel:[0,0,1] op_sel_hi:[1,0,1]')
        if n < 8: rdS(n + 2)
        if n >= 10 - NPRE: ldW(n - 10 + NPRE)
        for r in range(4):
            a(f'v_pk_fma_f32 {vr(XF+2*r,2)}, {vr(XF+2*r,2)}, {vr(c+2*r,2)}, {vr(c+8+2*r,2)}')
        for r in range(4):
            a(f'v_cvt_pk_bf16_f32 v{X+4*n+r}, v{XF+2*r}, v{XF+2*r+1}')
        if n == 8: a(f'v_mov_b32 v{vH1}, v{vT3}\nv_xor_b32 v{vH0}, 128, v{vT3}')
        a(f'ds_write_b128 v{vH0 if n & 1 else vH1}, {vr(X+4*n,4)} offset:{1024*((n&7)>>1)}')
    V.release(m2)
    ACT = [V(16, 4), V(16, 4), V(16, 4)]; ACC = V(32, 4)
    lI, lG = V(), V()
    a(f'''
    v_and_b32 v{lI}, 15, v{vLane}
    v_lshrrev_b32 v{lG}, 4, v{vLane}
    v_xor_b32 v{vH0}, v{lI}, v{lG}
    v_lshlrev_b32 v{vH0}, 4, v{vH0}
    v_lshl_add_u32 v{vH0}, v{lG}, 8, v{vH0}
    v_xor_b32 v{vH1}, {12*16}, v{vH0}
    s_waitcnt lgkmcnt(0)
    s_barrier
    ''')
    stamp()
    q0 = list(vm.q)
    lv, lv1, fin = [a.label(x) for x in ('qkv_v', 'qkv_v1', 'qkv_fin')]
    def loop(swap, nt):
        def rd(s_):
            vh = vH1 if s_ & 1 else vH0
            return [f'ds_read_b128 {vr(ACT[s_%3]+4*tt,4)}, v{vh} offset:{(s_&15)*4096 + tt*1024}' for tt in range(4)]
        a('\n'.join(rd(0) + rd(1)))
        vm.q = list(q0)
        for s_ in range(20):
            n_ = vm.need(('W', s_))
            a(f's_waitcnt {"" if n_ is None else f"vmcnt({n_})"} lgkmcnt({4 if s_ < 19 else 0})')
            if s_ == 14: a(f'v_add_u32 v{vH0}, 65536, v{vH0}')
            if s_ == 15: a(f'v_add_u32 v{vH1}, 65536, v{vH1}')
            R_ = rd(s_ + 2) if s_ < 18 else []
            for tt in range(4):
                for t in range(nt):
                    A_, B_ = vr(WF + 8*(s_%NW) + 4*t, 4), vr(ACT[s_%3] + 4*tt, 4)
                    if swap: A_, B_ = B_, A_
                    c = vr(ACC + 16*t + 4*tt, 4)
                    a(f'v_mfma_f32_16x16x32_bf16 {c}, {A_}, {B_}, {c if s_ else 0}')
                    if t == 0 and R_: a(R_[tt])
                    if t == nt - 1 and tt == 1 and s_ + NPRE < 20: ldW(s_ + NPRE)
        a('s_nop 6')
        if 'stamp' in ctx: stamp.at(3)
    a(f's_cmp_ge_u32 s{sWave}, 5\ns_cbranch_scc1 {lv}')
    loop(False, 2)
    lk, lleft = a.label('qkv_st_k'), a.label('qkv_st_left')
    a(f'''
    v_bfe_u32 v{vT2}, v{lI}, 2, 2
    v_and_b32 v{vT3}, 3, v{lI}
    v_lshl_add_u32 v{vT2}, v{vT2}, 3, v{vT3}
    s_lshl_b32 s{sT}, s{sCb}, 8
    s_lshl_b32 s{sT2}, s{sRb}, 1
    s_add_u32 s{sT}, s{sT}, s{sT2}
    s_cmp_eq_u32 s{sWave}, 4
    s_cbranch_scc1 {lleft}
    s_and_b32 s{sT2}, s{sWave}, 1
    s_lshl_b32 s{sT2}, s{sT2}, 7
    s_add_u32 s{sT}, s{sT}, s{sT2}
    v_lshrrev_b32 v{vT}, 1, v{lG}
    v_and_b32 v{vT3}, 1, v{lG}
    s_cmp_ge_u32 s{sWave}, 2
    s_cbranch_scc1 {lk}
    s_mul_i32 s{sT}, s{sT}, {QT}
    s_add_u32 s{sT}, s{sT}, {WS_Q}
    v_mul_u32_u24 v{vT}, {64*QT}, v{vT}
    v_lshl_add_u32 v{vT}, v{vT3}, 9, v{vT}
    v_lshl_add_u32 v{vT}, v{lI}, 4, v{vT}
    s_mov_b32 s{sT2}, {hex(f2u(QSCALE))}
    ''')
    for r in range(32): a(f'v_mul_f32 v{ACC+r}, s{sT2}, v{ACC+r}')
    def st_main(stride, tokoff):
        for tt in range(4):
            d = ACT[0] + 4 * tt
            for t in range(2):
                for r in range(2): a(f'v_cvt_pk_bf16_f32 v{d+2*t+r}, v{ACC+16*t+4*tt+2*r}, v{ACC+16*t+4*tt+2*r+1}')
            a(f'buffer_store_dwordx4 {vr(d,4)}, v{vT}, {WS}, s{sT} offen offset:{(tt>>1)*stride + (tt&1)*tokoff} {st}')
    st_main(QT, 256)
    a(f'''
    s_branch {fin}
    {lk}:
    s_mul_i32 s{sT}, s{sT}, {KVT}
    s_add_u32 s{sT}, s{sT}, {WS_KV + KV_K1}
    v_mul_u32_u24 v{vT}, {64*KVT}, v{vT}
    v_lshl_add_u32 v{vT}, v{vT3}, 9, v{vT}
    v_lshl_add_u32 v{vT}, v{vT2}, 4, v{vT}
    ''')
    st_main(KVT, 64)
    a(f'''
    s_branch {fin}
    {lleft}:
    s_mul_i32 s{sK}, s{sT}, {KVT}
    s_add_u32 s{sK}, s{sK}, {WS_KV + KV_K2}
    s_mul_i32 s{sT}, s{sT}, {QT}
    s_add_u32 s{sT}, s{sT}, {WS_Q + 1024}
    v_mul_u32_u24 v{vT}, {64*QT}, v{lG}
    v_lshl_add_u32 v{vT}, v{lI}, 3, v{vT}
    v_mul_u32_u24 v{vT3}, {64*KVT}, v{lG}
    v_lshl_add_u32 v{vT3}, v{vT2}, 3, v{vT3}
    s_mov_b32 s{sT2}, {hex(f2u(QSCALE))}
    ''')
    for r in range(16): a(f'v_mul_f32 v{ACC+r}, s{sT2}, v{ACC+r}')
    for tt in range(4):
        d = ACT[0] + 4 * tt
        for t in range(2):
            for r in range(2): a(f'v_cvt_pk_bf16_f32 v{d+2*t+r}, v{ACC+16*t+4*tt+2*r}, v{ACC+16*t+4*tt+2*r+1}')
        a(f'buffer_store_dwordx2 {vr(d,2)}, v{vT}, {WS}, s{sT} offen offset:{(tt>>1)*QT + (tt&1)*128} {st}')
        a(f'buffer_store_dwordx2 {vr(d+2,2)}, v{vT3}, {WS}, s{sK} offen offset:{(tt>>1)*KVT + (tt&1)*32} {st}')
    a(f's_branch {fin}')
    def st_v(nt):
        a(f'''
        s_lshl_b32 s{sT}, s{sCb}, 8
        s_lshl_b32 s{sT2}, s{sRb}, 1
        s_add_u32 s{sT}, s{sT}, s{sT2}
        s_mul_i32 s{sT}, s{sT}, {KVT}
        s_add_u32 s{sT}, s{sT}, {WS_KV + KV_V}
        s_sub_u32 s{sT2}, s{sWave}, 5
        s_lshl_b32 s{sT2}, s{sT2}, 5
        ''')
        for t in range(nt):
            a(f'v_add_u32 v{vT2}, s{sT2}, v{lI}')
            if t: a(f'v_add_u32 v{vT2}, 16, v{vT2}')
            udiv(a, vT3, vT2, 20, 128)
            a(f'''
            v_mul_u32_u24 v{vT}, {64*KVT - 320}, v{vT3}
            v_lshl_add_u32 v{vT}, v{vT2}, 4, v{vT}
            v_mul_u32_u24 v{vT3}, 320, v{lG}
            v_add_u32 v{vT}, v{vT}, v{vT3}
            ''')
            for kt in range(2):
                d = ACT[0] + 8 * t + 4 * kt
                for h in range(2):
                    for r in range(2): a(f'v_cvt_pk_bf16_f32 v{d+2*h+r}, v{ACC+16*t+4*(2*kt+h)+2*r}, v{ACC+16*t+4*(2*kt+h)+2*r+1}')
                a(f'buffer_store_dwordx4 {vr(d,4)}, v{vT}, {WS}, s{sT} offen offset:{kt*KVT} {st}')
    a(f'''
    {lv}:
    s_cmp_eq_u32 s{sWave}, 7
    s_cbranch_scc1 {lv1}
    ''')
    loop(True, 2); st_v(2)
    a(f's_branch {fin}\n{lv1}:')
    loop(True, 1); st_v(1)
    a(f'{fin}:')
    V.release(mv); Sg.release(ms)
```

```python
from asm import *
from layout import *
C_QKV, C_ATT, C_OP, C_GU = [WS_FLAG + i * 8 * 4 * 256 for i in range(4)]
C_PO = WS_FLAG + 4 * 8192
C_PD = C_PO + 8 * 256
C_PG = C_PD + 8 * 256
C_END = C_PG + 32 * 256
N_CNT = (C_END - WS_FLAG) // 256
SPIN = 1 << 20

def signal(a, ctx, sOff, vT):
    a(f'''
    s_mov_b64 exec, 1
    v_mov_b32 v{vT}, 0
    v_mov_b32 v{vT+1}, 1
    buffer_atomic_add v{vT+1}, v{vT}, {sr(ctx['sWS'],4)}, s{sOff} offen sc1
    s_mov_b64 exec, -1
    ''')

def poll(a, ctx, sOff, nsh, expect, vT, sCnt, last=None, sleep=0, extra=None):
    lp, out = a.label('poll'), a.label('poll_out')
    a(f'''
    s_mov_b64 exec, {(1 << (nsh + (1 if extra else 0))) - 1}
    v_lshlrev_b32 v{vT}, 8, v{ctx['vLane']}
    v_mov_b32 v{vT+1}, {expect}
    s_mov_b32 s{sCnt}, {SPIN}
    ''')
    if last is not None: a(f'v_writelane_b32 v{vT+1}, {last}, {nsh-1}')
    if extra:
        a(f's_sub_u32 s{extra[0]}, s{extra[0]}, s{sOff}\nv_writelane_b32 v{vT}, s{extra[0]}, {nsh}\nv_writelane_b32 v{vT+1}, {extra[1]}, {nsh}')
    a(f'''
    {lp}:
    buffer_load_dword v{vT+2}, v{vT}, {sr(ctx['sWS'],4)}, s{sOff} offen sc1
    s_sub_u32 s{sCnt}, s{sCnt}, 1
    s_cbranch_scc1 {out}
    s_waitcnt vmcnt(0)
    v_cmp_gt_u32 vcc, v{vT+1}, v{vT+2}
    {f's_sleep {sleep}' if sleep else 's_nop 0'}
    s_cbranch_vccnz {lp}
    {out}:
    s_waitcnt vmcnt(0)
    s_mov_b64 exec, -1
    ''')
```

```python
from build import *
from attn import *
from modk import *
from qkv import *
from helpers import *
from proj import *
from gateup import *
from sync import *

L_STAGE = 102400
L_PART = L_STAGE + ATTN_LDS
L_WORD = L_PART + HLP_P
MEGA_LDS = 163840

def k_prep(opt, code_bytes):
    k = Kernel('prep_kernel', 256, 512, PREP_LDS)
    a = k.a
    ctx = prologue(k, 256)
    if opt.get('stamp'): ctx['stamp'] = Stamps(k, ctx, 0); ctx['stamp']()
    def extra():
        v, s = k.V(6, 4), k.S(3, 2)
        sk = a.label('prep_nozero')
        a(f'''
        s_cmp_ge_u32 s2, {N_CNT}
        s_cbranch_scc1 {sk}
        s_lshl_b32 s{s+2}, s2, 8
        s_add_u32 s{s+2}, s{s+2}, {WS_FLAG}
        v_mov_b32 v{v}, 0
        s_mov_b64 exec, 1
        buffer_store_dword v{v}, v{v}, {sr(ctx['sWS'],4)}, s{s+2} offen
        s_mov_b64 exec, -1
        {sk}:
        ''')
        if not opt.get('nopf'):
            per = -(-code_bytes // (32 * 1024))
            a(f'''
            s_getpc_b64 s[{s}:{s+1}]
            L_prep_pc:
            s_add_u32 s{s}, s{s}, main_kernel-L_prep_pc
            s_addc_u32 s{s+1}, s{s+1}, 0
            s_lshr_b32 s{s+2}, s2, 3
            s_mul_i32 s{s+2}, s{s+2}, {per*1024}
            v_lshlrev_b32 v{v}, 4, v{ctx['vLane']}
            v_add_u32 v{v}, s{s+2}, v{v}
            v_min_u32 v{v}, {code_bytes - per*1024}, v{v}
            ''')
            for i in range(per): a(f'global_load_dwordx4 {vr(v+2,4)}, v{v}, s[{s}:{s+1}] offset:{1024*i}')
    ctx['prep_extra'] = extra
    gen_prep(a, k.V, k.S, ctx)
    if opt.get('stamp'): a('s_waitcnt lgkmcnt(0)'); ctx['stamp'].flush()
    epilogue(k, ctx); return k

def k_main(opt):
    k = Kernel('main_kernel', 256, 512, MEGA_LDS)
    a, V, Sg = k.a, k.V, k.S
    ctx = prologue(k, 256)
    ctx['sX'], ctx['sOut'], ctx['sSig'] = Sg(4), Sg(4), Sg()
    sWave = ctx['sWave']
    a(f's_load_dwordx2 {sr(ctx["sX"],2)}, s[0:1], {ARG_X}\ns_load_dwordx2 {sr(ctx["sOut"],2)}, s[0:1], {ARG_OUT}')
    srd(a, ctx['sOut'], ctx['sOut'], S * 1280)
    ctx['st_flags'] = 'sc1'
    ctx['ld_flags'] = '' if opt.get('plainld') else 'sc1'
    if opt.get('stamp'): ctx['stamp'] = Stamps(k, ctx, 1, 16); ctx['stamp']()
    stamp = ctx.get('stamp', lambda: None)
    gen_qkv(a, V, Sg, ctx, opt)
    m, ms = V.mark(), Sg.mark()
    vS = V(4, 2); sT, sT2, sT3 = Sg(), Sg(), Sg()
    hl, nw0, go, p3 = a.label('helpers'), a.label('m_nw0'), a.label('m_go'), a.label('m_p3')
    a(f'''
    v_mov_b32 v{vS}, {L_WORD}
    v_mov_b32 v{vS+1}, 0
    ds_write_b32 v{vS}, v{vS+1}
    s_waitcnt vmcnt(0) lgkmcnt(0)
    s_barrier
    ''')
    if 'stamp' in ctx: stamp.at(4)
    a(f's_cmp_ge_u32 s{sWave}, 4\ns_cbranch_scc1 {hl}')
    def wait_qkv():
        a(f's_cmp_lg_u32 s{sWave}, 0\ns_cbranch_scc1 {nw0}')
        qkv_ids(a, 2, sT2, sT, sT3)
        a(f'''
        s_lshl_b32 s{sT}, s{sT}, 2
        s_and_b32 s{sT2}, s{sT2}, 3
        s_add_u32 s{sT}, s{sT}, s{sT2}
        s_lshl_b32 s{sT}, s{sT}, 8
        s_add_u32 s{sT}, s{sT}, {C_QKV}
        ''')
        signal(a, ctx, sT, vS)
        a(f's_and_b32 s{sT}, s2, 7\ns_lshl_b32 s{sT}, s{sT}, 10\ns_add_u32 s{sT}, s{sT}, {C_QKV}')
        poll(a, ctx, sT, 4, 8, vS, sT2)
        a(f'''
        v_mov_b32 v{vS}, {L_WORD}
        v_mov_b32 v{vS+1}, 1
        ds_write_b32 v{vS}, v{vS+1}
        s_branch {go}
        {nw0}:
        ''')
        lds_spin(vS, sT2)
        a(f'{go}:\ns_waitcnt lgkmcnt(0)')
    def lds_spin(v, s, thr='1', sleep=1):
        lp, out = a.label('m_spin'), a.label('m_spin_out')
        a(f'''
        v_mov_b32 v{v}, {L_WORD}
        s_mov_b32 s{s}, {SPIN * 8}
        {lp}:
        ds_read_b32 v{v+1}, v{v}
        s_sub_u32 s{s}, s{s}, 1
        s_cbranch_scc1 {out}
        s_waitcnt lgkmcnt(0)
        v_cmp_gt_u32 vcc, {thr}, v{v+1}
        s_sleep {sleep}
        s_cbranch_vccnz {lp}
        {out}:
        s_waitcnt lgkmcnt(0)
        ''')
    def helper_gate(v, s, sThr, sHw, job):
        base, per = {'B': (opt.get('gB', 2), 2), 'A': (opt.get('gA', 6), 4), 'W': (opt.get('gW', 14), 2)}[job]
        a(f's_mul_i32 s{sThr}, s{sHw}, {per}\ns_add_u32 s{sThr}, s{sThr}, {base}')
        lds_spin(v, s, f's{sThr}', 8)
    vP = V(2)
    a(f'v_mov_b32 v{vP}, {L_WORD}\nv_mov_b32 v{vP+1}, 0\nv_writelane_b32 v{vP+1}, 1, 0')
    c2 = dict(ctx, wait_inputs=wait_qkv, lds_base=L_STAGE, progress=vP)
    if 'stamp' in ctx: stamp.i = 5
    cold = gen_attn(a, V, Sg, c2, opt)
    a(f's_branch {p3}\n{hl}:')
    after = gen_helpers(a, V, Sg, ctx, L_PART, helper_gate)
    a('s_barrier')
    after()
    a(f'{p3}:\ns_waitcnt vmcnt(0)\ns_barrier')
    if 'stamp' in ctx: stamp.at(8)
    ns = a.label('m_nosig')
    a(f'''
    s_cmp_lg_u32 s{sWave}, 0
    s_cbranch_scc1 {ns}
    s_lshr_b32 s{sT}, s2, 5
    s_lshl_b32 s{sT}, s{sT}, 2
    s_and_b32 s{sT2}, s2, 3
    s_add_u32 s{sT}, s{sT}, s{sT2}
    s_lshl_b32 s{sT}, s{sT}, 8
    s_add_u32 s{sT}, s{sT}, {C_ATT}
    ''')
    signal(a, ctx, sT, vS)
    a(f'{ns}:')
    V.release(m); Sg.release(ms)
    RES = V(12, 4)
    def gu_base(sB, sT, sT2):
        gu_ids(a, 2, sT, sB, sT2)
        a(f's_cmp_ge_u32 s{sB}, 31\ns_mul_i32 s{sB}, s{sB}, {140*1024}\ns_cselect_b32 s{sT}, 0x40000000, {WS_PGU}\ns_add_u32 s{sB}, s{sB}, s{sT}')
    def d_base(sB, sT, sT2):
        qkv_ids(a, 2, sT, sB, sT2)
        a(f's_mul_i32 s{sB}, s{sB}, {54*5120}\ns_add_u32 s{sB}, s{sB}, {WS_PWD}')
    ctx['gu_prefetch'] = Prefetch(a, V, Sg, ctx, 140, opt.get('g0', 3), opt.get('g1', 6), gu_base)
    ctx['d_prefetch'] = Prefetch(a, V, Sg, ctx, 160, 0, opt.get('d1', 8), d_base)
    gen_proj(a, V, Sg, ctx, 'o', RES, opt)
    gen_gateup(a, V, Sg, ctx, opt)
    if 'stamp' in ctx: stamp.i = 14
    c5 = dict(ctx)
    if 'stamp' in ctx:
        n = [0]
        def st5():
            n[0] += 1
            if n[0] == 1: stamp()
        c5['stamp'] = st5
    gen_proj(a, V, Sg, c5, 'd', RES, opt)
    if 'stamp' in ctx: stamp.flush()
    a('s_endpgm'); cold()
    epilogue(k, ctx); return k

if __name__ == '__main__':
    import subprocess
    opt = dict((x.split('=')[0], int(x.split('=')[1]) if '=' in x else 1) for x in sys.argv[2:])
    main = k_main(opt)
    open('sz.s', 'w').write('.amdgcn_target "amdgcn-amd-amdhsa--gfx950"\n.text\n' + main.a.text() + 's_endpgm\n')
    subprocess.run(['clang', '-x', 'assembler', '-target', 'amdgcn-amd-amdhsa', '-mcpu=gfx950', '-c', 'sz.s', '-o', 'sz.o'], check=True)
    subprocess.run(['llvm-objcopy', '-O', 'binary', '-j', '.text', 'sz.o', 'sz.bin'], check=True)
    import os
    nbytes = os.path.getsize('sz.bin') // 16 * 16
    print('main kernel code bytes', nbytes, 'vgprs', main.V.hi, 'sgprs', main.S.hi)
    open(sys.argv[1], 'w').write(assemble([k_prep(opt, nbytes), main]))
```

```python
from asm import *
from layout import *
import struct
def f2u(x): return struct.unpack('<I', struct.pack('<f', x))[0]

ATTN_LDS = 4 * 6144
OOB = 0x40000000

def gen_attn(a, V, Sg, ctx, opt=None):
    opt = opt or {}
    ws, sWG, sWave, vLane = ctx['sWS'], ctx['sWG'], ctx['sWave'], ctx['vLane']
    lds0 = ctx.get('lds_base', 0)
    st, ld = ctx.get('st_flags', ''), ctx.get('ld_flags', '')
    stamp = ctx.get('stamp', lambda: None)
    WS = sr(ws, 4)
    mv, ms = V.mark(), Sg.mark()
    sHead, sQb, sKV, sKV0, sKVe, sC, sT, sT2, sQ, sKh, sG, sO1, sO2, sX1, sX2 = [Sg() for _ in range(15)]
    sMHi = Sg(2)
    vL16, vAK2, vAV0, vAV1, vIdx, vT, vT2, vT3, vO1, vO2, vXw, vXr = [V() for _ in range(12)]
    NQ, NB = 4, opt.get('nb', 4)
    Q1, Q2 = [V(4) for _ in range(NQ)], [V(2) for _ in range(NQ)]
    K1, K2, V0, V1 = [V(4) for _ in range(NB)], [V(2) for _ in range(NB)], [V(4) for _ in range(NB)], [V(4) for _ in range(NB)]
    Sb = [V(16, 4), V(16, 4)]
    O = [V(16, 4) for _ in range(NQ)]
    E = lambda r: a(f'v_exp_f32 v{r}, v{r}' if not opt.get('noexp') else '')
    def QKa(q, b, d): a(f'v_mfma_f32_32x32x16_bf16 {vr(d,16)}, {vr(K1[b],4)}, {vr(Q1[q],4)}, 0')
    def QKb(q, b, d): a(f'v_mfma_f32_32x32x8bf16_1k {vr(d,16)}, {vr(K2[b],2)}, {vr(Q2[q],2)}, {vr(d,16)}')
    def SM(q, vv, p): a(f'v_smfmac_f32_32x32x32_bf16 {vr(O[q],16)}, {vr(vv,4)}, {vr(p,8)}, v{vIdx}')
    def ldK1(b, s=sKV): a(f'buffer_load_dwordx4 {vr(K1[b],4)}, v{vL16}, {WS}, s{s} offen {ld}')
    def ldK2(b, s=sKV): a(f'buffer_load_dwordx2 {vr(K2[b],2)}, v{vAK2}, {WS}, s{s} offen {ld}')
    def ldV0(b, s=sKV): a(f'buffer_load_dwordx4 {vr(V0[b],4)}, v{vAV0}, {WS}, s{s} offen {ld}')
    def ldV1(b, s=sKV): a(f'buffer_load_dwordx4 {vr(V1[b],4)}, v{vAV1}, {WS}, s{s} offen {ld}')
    def adv(): a(f's_add_u32 s{sKV}, s{sKV}, {KVT}')

    a(f'''
    s_and_b32 s{sHead}, s{sWG}, 7
    s_lshl_b32 s{sHead}, s{sHead}, 2
    s_lshr_b32 s{sT}, s{sWG}, 3
    s_and_b32 s{sT2}, s{sT}, 3
    s_add_u32 s{sHead}, s{sHead}, s{sT2}
    s_lshr_b32 s{sQb}, s{sT}, 2
    s_lshr_b32 s{sKh}, s{sWave}, 1
    s_and_b32 s{sG}, s{sWave}, 1
    s_mul_i32 s{sKV0}, s{sHead}, {64*KVT}
    s_add_u32 s{sKV0}, s{sKV0}, {WS_KV}
    s_mul_i32 s{sT}, s{sKh}, {32*KVT}
    s_add_u32 s{sKV}, s{sKV0}, s{sT}
    s_add_u32 s{sKVe}, s{sKV}, {31*KVT}
    s_lshl_b32 s{sT}, s{sHead}, 6
    s_lshl_b32 s{sT2}, s{sQb}, 3
    s_add_u32 s{sT}, s{sT}, s{sT2}
    s_lshl_b32 s{sT2}, s{sG}, 2
    s_add_u32 s{sT}, s{sT}, s{sT2}
    s_lshl_b32 s{sT2}, s{sKh}, 1
    s_add_u32 s{sQ}, s{sT}, s{sT2}
    s_xor_b32 s{sC}, s{sQ}, 2
    s_mul_i32 s{sQ}, s{sQ}, {QT}
    s_add_u32 s{sQ}, s{sQ}, {WS_Q}
    s_mul_i32 s{sC}, s{sC}, {QT}
    s_add_u32 s{sC}, s{sC}, {WS_Q}
    s_mov_b32 s{sMHi}, 0
    s_mov_b32 s{sMHi+1}, -1
    v_lshlrev_b32 v{vL16}, 4, v{vLane}
    v_and_b32 v{vT}, 31, v{vLane}
    v_lshrrev_b32 v{vT2}, 5, v{vLane}
    v_lshlrev_b32 v{vT3}, 3, v{vT}
    v_lshl_add_u32 v{vIdx}, v{vT2}, 30, v{vT3}
    ''')
    a(f'''
    s_lshl_b32 s{sT}, s{sQb}, 3
    s_lshl_b32 s{sT2}, s{sG}, 2
    s_add_u32 s{sT}, s{sT}, s{sT2}
    s_lshl_b32 s{sT2}, s{sKh}, 1
    s_add_u32 s{sT}, s{sT}, s{sT2}
    s_mul_i32 s{sT}, s{sT}, 40960
    s_add_u32 s{sT}, s{sT}, {WS_O}
    s_lshr_b32 s{sT2}, s{sHead}, 1
    s_lshl_b32 s{sO1}, s{sT2}, 10
    s_and_b32 s{sX1}, s{sHead}, 1
    s_lshl_b32 s{sX2}, s{sX1}, 9
    s_add_u32 s{sO1}, s{sO1}, s{sX2}
    s_add_u32 s{sO1}, s{sO1}, s{sT}
    s_and_b32 s{sT2}, s{sT2}, 3
    s_lshl_b32 s{sT2}, s{sT2}, 8
    s_lshl_b32 s{sX1}, s{sX1}, 3
    s_add_u32 s{sT2}, s{sT2}, s{sX1}
    s_lshr_b32 s{sX1}, s{sHead}, 3
    s_add_u32 s{sX1}, s{sX1}, 16
    s_lshl_b32 s{sX1}, s{sX1}, 10
    s_add_u32 s{sT2}, s{sT2}, s{sX1}
    s_add_u32 s{sO2}, s{sT2}, s{sT}
    s_mul_i32 s{sT}, s{sWave}, 6144
    s_add_u32 s{sT}, s{sT}, {lds0}
    s_xor_b32 s{sT2}, s{sWave}, 2
    s_mul_i32 s{sT2}, s{sT2}, 6144
    s_add_u32 s{sT2}, s{sT2}, {lds0}
    v_add_u32 v{vXw}, s{sT}, v{vL16}
    v_add_u32 v{vXr}, s{sT2}, v{vL16}
    ''')
    a(f'''
    v_bfe_u32 v{vAV0}, v{vLane}, 4, 1
    v_mul_u32_u24 v{vAV0}, 20480, v{vAV0}
    v_and_b32 v{vAV1}, 15, v{vLane}
    v_lshl_add_u32 v{vO2}, v{vAV1}, 4, v{vAV0}
    v_lshrrev_b32 v{vAV0}, 5, v{vLane}
    v_lshl_add_u32 v{vO1}, v{vAV0}, 8, v{vO2}
    v_lshl_add_u32 v{vO2}, v{vAV0}, 30, v{vO2}
    ''')
    vQ2 = Sb[0]
    a(f'''
    v_mov_b32 v{vQ2}, v{vIdx}
    v_add_u32 v{vT3}, {KV_K2}, v{vT3}
    v_mov_b32 v{vAK2}, {KV_ONE}
    v_cmp_gt_u32 vcc, 32, v{vLane}
    v_mul_u32_u24 v{vAV0}, 20, v{vT2}
    v_add_u32 v{vAV0}, v{vAV0}, v{vT}
    v_cndmask_b32 v{vAK2}, v{vAK2}, v{vT3}, vcc
    v_lshlrev_b32 v{vAV0}, 4, v{vAV0}
    v_add_u32 v{vAV0}, {KV_V}, v{vAV0}
    v_add_u32 v{vAV1}, 640, v{vAV0}
    v_mov_b32 v{vT3}, {KV_ONE}
    v_mov_b32 v{vT2}, {OOB}
    v_cmp_eq_u32 vcc, 20, v{vT}
    v_mov_b32 v{vIdx}, 0xdddd
    s_nop 0
    v_cndmask_b32 v{vT3}, v{vT2}, v{vT3}, vcc
    v_cmp_gt_u32 vcc, 20, v{vT}
    s_nop 1
    v_cndmask_b32 v{vAV0}, v{vT3}, v{vAV0}, vcc
    v_cndmask_b32 v{vAV1}, v{vT3}, v{vAV1}, vcc
    ''')
    for r in range(8, 16): a(f'v_mov_b32 v{Sb[1]+r}, 0')
    for r in range(4): a(f'v_mov_b32 v{V1[NB-1]+r}, 0')
    if 'wait_inputs' in ctx: ctx['wait_inputs']()
    ldK1(NB-1, sKV0); ldK2(NB-1, sKV0)
    for q in range(NQ):
        sq = sQ if q < 2 else sC
        a(f'buffer_load_dwordx4 {vr(Q1[q],4)}, v{vL16}, {WS}, s{sq} offen offset:{(q&1)*QT} {ld}')
        a(f'buffer_load_dwordx2 {vr(Q2[q],2)}, v{vQ2}, {WS}, s{sq} offen offset:{(q&1)*QT+1024} {ld}')
    a(f's_mov_b32 s{sC}, 0')
    for b in range(2):
        ldK1(b); ldV1(b); ldK2(b); ldV0(b); adv()
    a('s_waitcnt vmcnt(8)')
    stamp()
    for q in range(NQ):
        QKa(q, NB-1, O[q]); QKb(q, NB-1, O[q])
    for b in range(2, NB - 1):
        ldK1(b); ldV1(b); ldK2(b); ldV0(b); adv()
    def rowmax(dst, src, first):
        if first:
            a(f'v_max3_f32 v{dst}, v{src}, v{src+1}, v{src+2}')
            a(f'v_max_f32 v{dst}, v{dst}, v{src+3}')
            rest = range(4, 16, 2)
        else:
            rest = range(0, 16, 2)
        for r in rest: a(f'v_max3_f32 v{dst}, v{dst}, v{src+r}, v{src+r+1}')
    for q in range(NQ):
        if q == NQ - 1: a('s_nop 3')
        rowmax(vT, O[q], True)
        a(f'''
        v_mov_b32 v{vT2}, v{vT}
        v_mov_b32 v{O[q]}, 0
        v_mov_b32 v{O[q]+1}, 0
        v_permlane32_swap_b32 v{vT}, v{vT2}
        ''')
        for r in range(2, 16): a(f'v_mov_b32 v{O[q]+r}, 0')
        a(f'''
        v_max_f32 v{vT}, v{vT}, v{vT2}
        v_sub_f32 v{vT}, {hex(f2u(-MBIAS))}, v{vT}
        v_cvt_pk_bf16_f32 v{vT}, v{vT}, 0
        s_mov_b64 exec, {sr(sMHi,2)}
        v_mov_b32 v{Q2[q]}, v{vT}
        s_mov_b64 exec, -1
        ''')
    a(f's_waitcnt vmcnt({4*(NB-2)})')
    QKa(0, 0, Sb[0]); QKb(0, 0, Sb[0])
    a('s_nop 10')
    loop = a.label('attn_loop')
    stamp()
    ctx.get('tr', lambda *x: 0)(2, 1)
    a('.p2align 6')
    a(f'{loop}:')
    for i in range(NB):
        b, nb, pb = i, (i + 1) % NB, (i - 1) % NB
        for q in range(NQ):
            c, n = Sb[q & 1], Sb[(q + 1) & 1]
            E(c); E(c + 1)
            SM((q - 1) % NQ, V1[b if q else pb], n + 8)
            if q == 0: ldK1(pb)
            if q == 1: ldK2(pb)
            if q == 2: adv(); a(f's_min_u32 s{sKV}, s{sKV}, s{sKVe}')
            if q == 3: a(f's_waitcnt vmcnt({4*(NB-2)})')
            for r in range(2, 6): E(c + r)
            nq, kb = (q + 1) % NQ, (b if q < NQ - 1 else nb)
            QKa(nq, kb, n)
            if i == NB - 1 and q == 2: a(f's_add_u32 s{sC}, s{sC}, 1')
            if i == NB - 1 and q == 3: a(f's_cmp_lt_u32 s{sC}, {32 // NB}')
            for r in range(6, 10): E(c + r)
            QKb(nq, kb, n)
            for r in range(10, 14): E(c + r)
            SM(q, V0[b], c)
            if q == 0: ldV1(pb)
            if q == 1: ldV0(pb)
            if q == 2 and 'progress' in ctx: a(f'ds_add_u32 v{ctx["progress"]}, v{ctx["progress"]+1}')
            E(c + 14); E(c + 15)
    a(f's_cbranch_scc1 {loop}')
    stamp()
    ctx.get('tr', lambda *x: 0)(2, 10)
    a('s_nop 1')
    SM(NQ - 1, V1[NB - 1], Sb[1] + 8)
    if ctx.get('pre_combine_barrier'): a('s_barrier')
    for j in range(2):
        if j == 1: a('s_nop 8')
        for r in range(3): a(f'ds_write_b128 v{vXw}, {vr(O[2+j]+4*r,4)} offset:{3072*j + 1024*r}')
    a(f'''
    s_waitcnt lgkmcnt(0)
    s_barrier
    ''')
    for j in range(2):
        for r in range(3): a(f'ds_read_b128 {vr(O[2+j]+4*r,4)}, v{vXr} offset:{3072*j + 1024*r}')
    tmp = ctx['sTmp2']
    slows = []
    for j in range(2):
        Oq = O[j]
        fin, slow = a.label('attn_fin'), a.label('attn_slow')
        slows.append((j, fin, slow))
        a(f's_waitcnt lgkmcnt({3 - 3*j})')
        for r in range(12): a(f'v_add_f32 v{Oq+r}, v{Oq+r}, v{O[2+j]+r}')
        a(f'''
        v_mov_b32 v{vT}, v{Oq+8}
        v_mov_b32 v{vT2}, v{Oq+8}
        v_max3_f32 v{vT3}, abs(v{Oq}), abs(v{Oq+1}), abs(v{Oq+2})
        s_nop 0
        v_permlane32_swap_b32 v{vT}, v{vT2}
        ''')
        for r in range(3, 11, 2): a(f'v_max3_f32 v{vT3}, v{vT3}, abs(v{Oq+r}), abs(v{Oq+r+1})')
        a(f'''
        v_max_f32_e64 v{vT3}, v{vT3}, abs(v{Oq+11})
        s_mov_b32 s{sT}, {hex(f2u(2.0**120))}
        s_mov_b32 s{sC}, 0x7f800000
        v_cmp_nlt_f32_e64 {sr(tmp,2)}, v{vT2}, s{sT}
        v_cmp_nlt_f32_e64 vcc, v{vT3}, s{sC}
        s_or_b64 vcc, vcc, {sr(tmp,2)}
        ''')
        if opt.get('force_slow'): a(f's_branch {slow}')
        a(f's_cbranch_vccnz {slow}')
        a(f'{fin}:')
        a(f'v_rcp_f32 v{vT2}, v{vT2}\ns_nop 0')
        for r in range(12): a(f'v_mul_f32 v{Oq+r}, v{Oq+r}, v{vT2}')
        for r in range(6): a(f'v_cvt_pk_bf16_f32 v{Oq+r}, v{Oq+2*r}, v{Oq+2*r+1}')
        a(f'buffer_store_dwordx4 {vr(Oq,4)}, v{vO1}, {WS}, s{sO1} offen {st}')
        a(f'buffer_store_dwordx2 {vr(Oq+4,2)}, v{vO2}, {WS}, s{sO2} offen {st}')
        if j == 0: a(f's_add_u32 s{sO1}, s{sO1}, 40960\ns_add_u32 s{sO2}, s{sO2}, 40960')
    def cold():
        for j, fin, slow in slows:
            Oq = O[j]
            l1, l2 = a.label('slow1'), a.label('slow2')
            a(f'''
            {slow}:
            s_waitcnt vmcnt(0) lgkmcnt(0)
            s_mov_b64 exec, {sr(sMHi,2)}
            v_mov_b32 v{Q2[j]}, 0
            s_mov_b64 exec, -1
            v_mov_b32 v{vT}, 0xff800000
            s_mov_b32 s{sKV}, s{sKV0}
            s_mov_b32 s{sC}, 0
            {l1}:
            ''')
            ldK1(0); ldK2(0); a('s_waitcnt vmcnt(0)')
            QKa(j, 0, Sb[0]); QKb(j, 0, Sb[0])
            a('s_nop 15')
            rowmax(vT, Sb[0], False)
            adv()
            a(f'''
            s_add_u32 s{sC}, s{sC}, 1
            s_cmp_lt_u32 s{sC}, 64
            s_cbranch_scc1 {l1}
            v_mov_b32 v{vT2}, v{vT}
            s_nop 1
            v_permlane32_swap_b32 v{vT}, v{vT2}
            s_nop 1
            v_max_f32 v{vT3}, v{vT}, v{vT2}
            ''')
            for r in range(16): a(f'v_mov_b32 v{Oq+r}, 0')
            a(f's_mov_b32 s{sKV}, s{sKV0}\ns_mov_b32 s{sC}, 0\n{l2}:')
            ldK1(0); ldK2(0); ldV0(0); ldV1(0); a('s_waitcnt vmcnt(0)')
            QKa(j, 0, Sb[0]); QKb(j, 0, Sb[0])
            a('s_nop 15')
            for r in range(16): a(f'v_sub_f32 v{Sb[0]+r}, v{Sb[0]+r}, v{vT3}')
            for r in range(16): a(f'v_exp_f32 v{Sb[0]+r}, v{Sb[0]+r}')
            a('s_nop 1')
            SM(j, V0[0], Sb[0]); SM(j, V1[0], Sb[0] + 8)
            adv()
            a(f'''
            s_add_u32 s{sC}, s{sC}, 1
            s_cmp_lt_u32 s{sC}, 64
            s_cbranch_scc1 {l2}
            s_nop 15
            v_mov_b32 v{vT}, v{Oq+8}
            v_mov_b32 v{vT2}, v{Oq+8}
            s_nop 1
            v_permlane32_swap_b32 v{vT}, v{vT2}
            s_nop 1
            s_branch {fin}
            ''')
    V.release(mv); Sg.release(ms)
    return cold
```

```python
from asm import *
from layout import *
from attn import f2u
from sync import *
from proj import Feed
from qkv import qkv_ids, gu_ids

GU_BASE = 20480

class Prefetch:
    def __init__(self, a, V, Sg, ctx, lds0, base_fn):
        self.a, self.ctx, self.lds0, self.base_fn = a, ctx, lds0, base_fn
        self.sSrc, self.sM, self.sBase, self.sT = Sg(), Sg(), Sg(), Sg()
        self.vL16 = V()
        self.feed = Feed(a, ctx, self.sSrc, self.sM, self.vL16, Cnt(a, 'vmcnt', 63), ctx['ld_flags'])
    def init(self):
        self.a(f'v_lshlrev_b32 v{self.vL16}, 4, v{self.ctx["vLane"]}')
        self.base_fn(self.sBase, self.sT, self.sSrc)
    def start(self, n0, n1, w0):
        self.n1 = n1
        self.feed.start(self.sBase, n0, w0, self.sT, self.lds0)
    def rounds(self, k=None):
        n = 0
        while self.feed.n < self.n1 and (k is None or n < k):
            self.feed.round(self.n1, 'W'); n += 1
        return n

def gen_gateup(a, V, Sg, ctx, opt=None):
    opt = opt or {}
    ws, sWG, sWave, vLane = ctx['sWS'], ctx['sWG'], ctx['sWave'], ctx['vLane']
    st, ld = 'sc1', ctx['ld_flags']
    stamp = ctx.get('stamp', lambda: None)
    WS = sr(ws, 4)
    mv, ms = V.mark(), Sg.mark()
    sRb, sFb, sT, sT2, sW, sM, sA0, sA1, sTile, sBase, sIdle = [Sg() for _ in range(11)]
    vL16, vW, vT, vT2, lI, lG = [V() for _ in range(6)]
    vS = V(4, 2)
    NR = opt.get('gu_ring', 9)
    PRE = opt.get('gu_pre', 6)
    ACT = V(8 * NR, 4); WF = [V(28, 4), V(28, 4)]; ACC = V(56, 4)
    STT = V(16, 4); EXT = V(8, 4); SD = V(4, 2)
    vm, lg = Cnt(a, 'vmcnt', 63), Cnt(a, 'lgkmcnt', 15)
    idle, tail = a.label('gu_idle'), a.label('gu_tail')
    gu_ids(a, sWG, sRb, sFb, sT)
    a(f'''
    v_lshlrev_b32 v{vL16}, 4, v{vLane}
    v_and_b32 v{lI}, 15, v{vLane}
    v_lshrrev_b32 v{lG}, 4, v{vLane}
    ''')
    pg, pd = ctx['gu_prefetch'], ctx['d_prefetch']
    g1 = pg.rounds(opt.get('g1', 3))
    w0b, w0c = a.label('gu_w0b'), a.label('gu_w0c')
    a(f'''
    s_waitcnt vmcnt({g1})
    s_barrier
    s_cmp_eq_u32 s{sWave}, 0
    s_cbranch_scc1 {w0b}
    ''')
    ctx['tr'](3, 11)
    pg.start(pg.feed.n, 84, 1); pg.rounds()
    ctx['tr'](3, 12)
    a(f'''
    s_waitcnt vmcnt(0)
    s_branch {w0c}
    {w0b}:
    ''')
    ctx['tr'](3, 11)
    signal(a, ctx, ctx['sSig'], vS, NREP)
    qkv_ids(a, sWG, sT, sW, sT2)
    a(f's_lshl_b32 s{sW}, s{sW}, 8\ns_add_u32 s{sW}, s{sW}, {C_PD}')
    cnt_poll(a, sT, C_OP, sRb, sT2)
    poll(a, ctx, sT, NSH, 4, vS, sT2, extra=(sW, '0' if opt.get('nohelp') else '54'))
    ctx['tr'](3, 12)
    a(f'''
    {w0c}:
    v_add_u32 v{vW}, {GU_BASE}, v{vL16}
    s_lshl_b32 s{sTile}, s{sRb}, 3
    s_add_u32 s{sTile}, s{sTile}, s{sWave}
    s_lshl_b32 s{sTile}, s{sTile}, 1
    s_mul_i32 s{sA0}, s{sTile}, 20480
    s_add_u32 s{sA0}, s{sA0}, {WS_X1A}
    s_add_u32 s{sA1}, s{sA0}, 20480
    v_lshlrev_b32 v{vT}, 7, v{lI}
    v_lshl_add_u32 v{vT}, v{lG}, 5, v{vT}
    s_lshl_b32 s{sT}, s{sTile}, 11
    s_add_u32 s{sT}, s{sT}, {WS_ST}
    s_barrier
    s_cmp_ge_u32 s{sFb}, 31
    s_cbranch_scc1 {idle}
    ''')
    vm.drain()
    stamp()
    ctx['tr'](3, 13); ctx['tr'](4)
    na = [0]
    def act_upto(n):
        while na[0] <= min(n, 19):
            s_ = na[0]; na[0] += 1
            for tt, sa in enumerate((sA0, sA1)):
                vm.issue(('A', s_), f'buffer_load_dwordx4 {vr(ACT+8*(s_%NR)+4*tt,4)}, v{vL16}, {WS}, s{sa} offen offset:{1024*(s_&3)} {ld}')
            if s_ & 3 == 3: a(f's_add_u32 s{sA0}, s{sA0}, 4096\ns_add_u32 s{sA1}, s{sA1}, 4096')
    act_upto(1)
    cur = [0]
    def rdW(s_):
        off = s_ * 7168
        base = (off // 57344) * 57344
        if base != cur[0]:
            a(f'v_add_u32 v{vW}, {base - cur[0]}, v{vW}'); cur[0] = base
        return [(('R', s_), f'ds_read_b128 {vr(WF[s_&1]+4*t,4)}, v{vW} offset:{off - base + 1024*t}') for t in range(7)]
    for x in rdW(0): lg.issue(*x)
    act_upto(PRE - 1)
    for tt in range(2):
        for h in range(2): vm.issue('S', f'buffer_load_dwordx4 {vr(STT+8*tt+4*h,4)}, v{vT}, {WS}, s{sT} offen offset:{2048*tt + 16*h} {ld}')
    SST = PRE + 1
    assert NR == 9 and PRE <= 6
    UF = ACT + 8 * (20 % NR)
    LAD = opt.get('ladder', 1)
    DE = 16 if opt.get('dearly', 1) else 0
    def stats():
        vm.wait('S')
        for tt in range(2):
            b = STT + 8 * tt
            a(f'''
            v_add_f32 v{b}, v{b}, v{b+2}
            v_add_f32 v{b+1}, v{b+1}, v{b+3}
            v_add_f32 v{b+4}, v{b+4}, v{b+6}
            v_add_f32 v{b+5}, v{b+5}, v{b+7}
            v_add_f32 v{b}, v{b}, v{b+4}
            v_add_f32 v{b+1}, v{b+1}, v{b+5}
            ''')
            for sw in ('32', '16'):
                a(f'''
                v_mov_b32 v{b+2}, v{b}
                v_mov_b32 v{b+3}, v{b+1}
                s_nop 1
                v_permlane{sw}_swap_b32 v{b}, v{b+2}
                v_permlane{sw}_swap_b32 v{b+1}, v{b+3}
                s_nop 0
                v_add_f32 v{b}, v{b}, v{b+2}
                v_add_f32 v{b+1}, v{b+1}, v{b+3}
                ''')
            sd, rl, e = SD + 2 * tt, SD + 2 * tt + 1, EXT + 4 * tt
            a(f'''
            v_mul_f32 v{b}, {hex(f2u(-1/640))}, v{b}
            v_mul_f32 v{b+1}, {hex(f2u(1/640))}, v{b+1}
            v_fma_f32 v{b+1}, -v{b}, v{b}, v{b+1}
            v_max_f32 v{b+1}, 0, v{b+1}
            v_add_f32 v{b+1}, {hex(f2u(1e-5))}, v{b+1}
            v_sqrt_f32 v{sd}, v{b+1}
            v_rsq_f32 v{rl}, v{b+1}
            v_cvt_pk_bf16_f32 v{b+2}, v{b}, v{b}
            v_cvt_pk_bf16_f32 v{b+3}, v{sd}, v{sd}
            v_mul_f32 v{rl}, {hex(f2u(-1.4426950408889634))}, v{rl}
            v_and_b32 v{b+2}, 0xffff0000, v{b+2}
            v_and_b32 v{b+3}, 0xffff0000, v{b+3}
            v_sub_f32 v{b+4}, v{b}, v{b+2}
            v_sub_f32 v{b+5}, v{sd}, v{b+3}
            v_cmp_gt_u32 vcc, 16, v{vLane}
            v_cvt_pk_bf16_f32 v{e}, v{b+2}, v{b+4}
            v_cvt_pk_bf16_f32 v{e+1}, v{b+2}, v{b+3}
            v_cvt_pk_bf16_f32 v{e+2}, v{b+5}, v{b+3}
            v_mov_b32 v{e+3}, 0
            v_cndmask_b32 v{e}, 0, v{e}, vcc
            v_cndmask_b32 v{e+1}, 0, v{e+1}, vcc
            v_cndmask_b32 v{e+2}, 0, v{e+2}, vcc
            ''')
    for s_ in range(20):
        if LAD and s_ % 5 == 0: a(f's_setprio {3 - s_ // 5}')
        nxt = rdW(s_ + 1) if s_ < 19 else []
        wait2(a, vm, [('A', s_)], lg, [('R', s_)])
        if s_ % 2 == 0: ctx['tr'](4)
        if s_ in (0, 5, 10, 15, 19): ctx['tr'](6, 10 + (s_ + 1) // 5)
        for t in range(7):
            for tt in range(2):
                c = vr(ACC + 8 * t + 4 * tt, 4)
                a(f'v_mfma_f32_16x16x32_bf16 {c}, {vr(WF[s_&1]+4*t,4)}, {vr(ACT+8*(s_%NR)+4*tt,4)}, {c if s_ else 0}')
                if tt == 0 and nxt: lg.issue(*nxt[t])
            if t == 3: act_upto(s_ + PRE)
        if s_ == SST: stats()
        if s_ == 10 and DE:
            pd.init(); pd.start(0, 16, 0); n_ = pd.rounds()
            for _ in range(n_): vm.issue('D')
        if s_ == 15:
            a(f'''
            v_min_u32 v{vT}, 1, v{lG}
            v_lshlrev_b32 v{vT}, 30, v{vT}
            v_lshl_add_u32 v{vT}, v{lI}, 4, v{vT}
            s_mul_i32 s{sT}, s{sFb}, 1792
            s_add_u32 s{sT}, s{sT}, {WS_U}
            ''')
            for t in range(7): vm.issue('U', f'buffer_load_dwordx4 {vr(UF+4*t,4)}, v{vT}, {WS}, s{sT} offen offset:{256*t} {ld}')
    vm.wait('U')
    for t in range(7):
        for tt in range(2):
            c = vr(ACC + 8 * t + 4 * tt, 4)
            a(f'v_mfma_f32_16x16x32_bf16 {c}, {vr(UF+4*t,4)}, {vr(EXT+4*tt,4)}, {c}')
    if LAD: a('s_setprio 0')
    D0 = opt.get('d0', 0)
    if D0: a('s_barrier')
    if not DE: pd.init()
    pd.start(DE, 160, 0)
    left = [D0]
    def dma(k):
        k = min(k, left[0]); left[0] -= k
        pd.rounds(k)
    stamp()
    ctx['tr'](4)
    a(f'''
    s_mul_i32 s{sT}, s{sFb}, 7
    s_min_u32 s{sT}, s{sT}, 209
    s_lshl_b32 s{sT}, s{sT}, 8
    s_mul_i32 s{sT2}, s{sTile}, {54*1024}
    s_add_u32 s{sT}, s{sT}, s{sT2}
    s_add_u32 s{sA0}, s{sT}, {WS_HM}
    s_add_u32 s{sA1}, s{sA0}, {54*1024}
    v_lshrrev_b32 v{vT}, 1, v{lG}
    v_lshlrev_b32 v{vT2}, 8, v{vT}
    v_mul_u32_u24 v{vW}, {54*1024}, v{vT}
    v_and_b32 v{vT}, 1, v{lG}
    v_lshlrev_b32 v{vT}, 3, v{vT}
    v_lshl_add_u32 v{vT}, v{lI}, 4, v{vT}
    v_add_u32 v{vT2}, v{vT2}, v{vT}
    v_add_u32 v{vW}, v{vW}, v{vT}
    ''')
    def gate(g, u, n, sd, rl):
        for r in range(n): a(f'v_mul_f32 v{g[r]}, v{g[r]}, v{rl}')
        dma(1)
        for r in range(n): a(f'v_exp_f32 v{g[r]}, v{g[r]}')
        dma(1)
        for r in range(n): a(f'v_fma_f32 v{g[r]}, v{g[r]}, v{sd}, v{sd}')
        for r in range(n): a(f'v_rcp_f32 v{g[r]}, v{g[r]}')
        dma(1)
        for r in range(n): a(f'v_mul_f32 v{g[r]}, v{g[r]}, v{u[r]}')
    P = WF[1]
    for tt in range(2):
        sd, rl = SD + 2 * tt, SD + 2 * tt + 1
        A_ = lambda t: [ACC + 8 * t + 4 * tt + r for r in range(4)]
        g, u = A_(0) + A_(1) + A_(4), A_(2) + A_(3) + A_(5)
        gate(g, u, 12, sd, rl)
        for r in range(6): a(f'v_cvt_pk_bf16_f32 v{P+8*tt+r}, v{g[2*r]}, v{g[2*r+1]}')
        so = sA1 if tt else sA0
        a(f'buffer_store_dwordx4 {vr(P+8*tt,4)}, v{vL16}, {WS}, s{so} offen {st}')
        a(f'buffer_store_dwordx2 {vr(P+8*tt+4,2)}, v{vT2}, {WS}, s{so} offen offset:1024 {st}')
    a(f'v_cmp_gt_u32 vcc, 32, v{vLane}')
    for r in range(4): a(f'v_permlane32_swap_b32 v{ACC+48+r}, v{ACC+52+r}')
    a(f'v_cndmask_b32 v{SD}, v{SD+2}, v{SD}, vcc\nv_cndmask_b32 v{SD+1}, v{SD+3}, v{SD+1}, vcc')
    g, u = [ACC + 48 + r for r in range(4)], [ACC + 52 + r for r in range(4)]
    gate(g, u, 4, SD, SD + 1)
    for r in range(2): a(f'v_cvt_pk_bf16_f32 v{P+16+r}, v{g[2*r]}, v{g[2*r+1]}')
    a(f'''
    buffer_store_dwordx2 {vr(P+16,2)}, v{vW}, {WS}, s{sA0} offen offset:1536 {st}
    ''')
    cnt_sig(a, ctx['sSig'], C_GU, sRb, sFb, sT2)
    if not D0: a('s_barrier')
    ctx['tr'](4)
    d1n = pd.rounds(opt.get('d1', 4))
    d0, d1, d2 = a.label('gu_d0'), a.label('gu_d1'), a.label('gu_d2')
    a(f's_waitcnt vmcnt({d1n})\ns_barrier')
    stamp()
    a(f's_cmp_lg_u32 s{sWave}, 0\ns_cbranch_scc1 {d0}')
    signal(a, ctx, ctx['sSig'], vS, NREP)
    a(f's_branch {d1}\n{idle}:')
    n_done = pd.feed.n
    pd.init(); pd.start(0, n_done, 0); pd.rounds()
    a(f's_cmp_eq_u32 s{sWave}, 0\ns_cbranch_scc1 {d1}\n{d0}:')
    pd.start(n_done, 160, 1); pd.rounds()
    a(f'{d1}:')
    V.release(mv); Sg.release(ms)
```

```python
from asm import *
from layout import *
from build import srd
from pack import *
from sync import *
from qkv import qkv_ids, gu_ids

HLP_Q = 25600
HLP_P = 4096
OOBS = 0x40000000

class Helpers:
    def __init__(self, a, V, Sg, ctx, ldsP, ldsC):
        self.a, self.V, self.Sg, self.ctx, self.ldsP, self.ldsC = a, V, Sg, ctx, ldsP, ldsC
        self.sA, self.sB, self.sC = Sg(4), Sg(4), Sg(4)
        (self.sHw, self.sT, self.sT2, self.sL, self.sSrcG, self.sDstG, self.sCntG, self.sId, self.sSrcC, self.sDstC, self.sCntB, self.sA1, self.sA0, self.sBb) = [Sg() for _ in range(14)]
        self.vL16 = V(); self.vDG = V(); self.vDB = V(); self.vS = V(4, 2)

    def setup(self, tv, ts):
        a, c = self.a, self.ctx
        sWG, sWave, vLane = c['sWG'], c['sWave'], c['vLane']
        sA, sB, sC, sHw, sT, sT2, sL, sId = self.sA, self.sB, self.sC, self.sHw, self.sT, self.sT2, self.sL, self.sId
        sP, sPd, sJ, sA1, sA0, sBb = ts, ts + 8, ts + 10, self.sA1, self.sA0, self.sBb
        isd, go = a.label('hlp_isd'), a.label('hlp_go')
        a(f'''
        s_load_dwordx8 s[{sP}:{sP+7}], s[0:1], {ARG_WO}
        s_load_dwordx2 s[{sPd}:{sPd+1}], s[0:1], {ARG_WD}
        s_sub_u32 s{sHw}, s{sWave}, 4
        s_mul_i32 s{sL}, s{sHw}, {HLP_Q}
        s_lshl_b32 s{sId}, s{sHw}, 8
        s_add_u32 s{sId}, s{sId}, s{sWG}
        v_lshlrev_b32 v{self.vL16}, 4, v{vLane}
        s_mul_i32 s{self.sDstG}, s{sId}, 7168
        s_add_u32 s{self.sDstG}, s{self.sDstG}, {WS_PGU}
        s_mul_i32 s{sT}, s{sId}, 3277
        s_lshr_b32 s{sT}, s{sT}, 16
        s_mul_i32 s{sT2}, s{sT}, 20
        s_sub_u32 s{sT2}, s{sId}, s{sT2}
        s_lshl_b32 s{self.sCntG}, s{sT}, 8
        s_add_u32 s{self.sCntG}, s{self.sCntG}, {C_PW}
        s_mul_i32 s{sT}, s{sT}, 112
        s_min_u32 s{sT}, s{sT}, {1672*2}
        s_mul_i32 s{sT2}, s{sT2}, {32*3456}
        s_add_u32 s{self.sSrcG}, s{sT}, s{sT2}
        s_cmp_ge_u32 s{sId}, 620
        s_cselect_b32 s{self.sSrcG}, {OOBS}, s{self.sSrcG}
        ''')
        d = self.vDG
        a(f'''
        v_lshrrev_b32 v{d}, 5, v{vLane}
        v_bfe_u32 v{tv}, v{vLane}, 3, 2
        v_lshl_add_u32 v{d}, v{d}, 3, v{tv}
        v_mul_u32_u24 v{d}, 3456, v{d}
        v_and_b32 v{tv}, 7, v{vLane}
        v_lshl_add_u32 v{d}, v{tv}, 4, v{d}
        v_cmp_eq_u32 vcc, 7, v{tv}
        v_mov_b32 v{tv}, {OOBS}
        s_nop 0
        v_cndmask_b32 v{d}, v{d}, v{tv}, vcc
        ''')
        pack5_addr(a, self.vDB, vLane, 1280, tv)
        a(f'''
        s_sub_u32 s{sJ}, s{sId}, 432
        s_max_i32 s{sJ}, s{sJ}, 0
        s_waitcnt lgkmcnt(0)
        s_mov_b32 s{sA}, s{sP+4}
        s_mov_b32 s{sA+1}, s{sP+5}
        s_mov_b32 s{sB}, s{sP+6}
        s_mov_b32 s{sB+1}, s{sP+7}
        ''')
        srd(a, sA, sA, 640 * 3456); srd(a, sB, sB, 640 * 3456)
        a(f'''
        s_cmp_ge_u32 s{sJ}, 160
        s_cbranch_scc1 {isd}
        s_mul_i32 s{self.sDstC}, s{sJ}, 5120
        s_add_u32 s{self.sDstC}, s{self.sDstC}, {WS_PWO}
        s_mul_i32 s{sT}, s{sJ}, 3277
        s_lshr_b32 s{sT}, s{sT}, 16
        s_mul_i32 s{sT2}, s{sT}, 20
        s_sub_u32 s{sJ}, s{sJ}, s{sT2}
        s_mul_i32 s{self.sSrcC}, s{sT}, 160
        s_lshl_b32 s{self.sCntB}, s{sT}, 8
        s_add_u32 s{self.sCntB}, s{self.sCntB}, {C_PO}
        s_mul_i32 s{sT}, s{sJ}, {40*1280}
        s_sub_u32 s{sT2}, s{sJ}, 16
        s_mul_i32 s{sT2}, s{sT2}, {160*1280}
        s_add_u32 s{sT2}, s{sT2}, {16*1280}
        s_cmp_ge_u32 s{sJ}, 16
        s_cselect_b32 s{sT}, s{sT2}, s{sT}
        s_cselect_b32 s{sA1}, 80, 20
        s_cselect_b32 s{sA0}, 40, 4
        s_cselect_b32 s{sBb}, 20, 8
        s_add_u32 s{self.sSrcC}, s{self.sSrcC}, s{sT}
        s_mov_b32 s{sC}, s{sP}
        s_mov_b32 s{sC+1}, s{sP+1}
        s_mov_b32 s{sC+2}, {640*1280}
        s_branch {go}
        {isd}:
        s_sub_u32 s{sJ}, s{sJ}, 160
        s_mul_i32 s{self.sDstC}, s{sJ}, 5120
        s_add_u32 s{self.sDstC}, s{self.sDstC}, {WS_PWD}
        s_mul_i32 s{sT}, s{sJ}, 1214
        s_lshr_b32 s{sT}, s{sT}, 16
        s_mul_i32 s{sT2}, s{sT}, 54
        s_sub_u32 s{sJ}, s{sJ}, s{sT2}
        s_mul_i32 s{self.sSrcC}, s{sT}, 160
        s_lshl_b32 s{self.sCntB}, s{sT}, 8
        s_add_u32 s{self.sCntB}, s{self.sCntB}, {C_PD}
        s_mul_i32 s{sT}, s{sJ}, {32*1280}
        s_add_u32 s{self.sSrcC}, s{self.sSrcC}, s{sT}
        s_mov_b32 s{sA1}, 16
        s_mov_b32 s{sA0}, 8
        s_mov_b32 s{sBb}, 4
        s_mov_b32 s{sC}, s{sPd}
        s_mov_b32 s{sC+1}, s{sPd+1}
        s_mov_b32 s{sC+2}, {1728*1280}
        {go}:
        s_mov_b32 s{sC+3}, 0x20000
        s_mul_i32 s{sA1}, s{sA1}, 1280
        s_mul_i32 s{sA0}, s{sA0}, 1280
        s_mul_i32 s{sBb}, s{sBb}, 1280
        s_cmp_lt_u32 s{sId}, 432
        s_cselect_b32 s{self.sSrcC}, {OOBS}, s{self.sSrcC}
        ''')

    def loads(self, sT3):
        a, sT, sT2, sL = self.a, self.sT, self.sT2, self.sL
        def rowoff(sD, g, jh):
            a(f's_mov_b32 s{sD}, 0')
            if g >> 1: a(f's_add_u32 s{sD}, s{sD}, s{self.sA1}')
            if g & 1: a(f's_add_u32 s{sD}, s{sD}, s{self.sA0}')
            if jh: a(f's_add_u32 s{sD}, s{sD}, s{self.sBb}')
        a(f's_add_u32 s{sT3}, s{sL}, 8192')
        pack5_load(a, self.vDB, self.sC, self.sSrcC, sT3, sT, sT2, rowoff)
        for m_, sr_ in enumerate((self.sA, self.sB)):
            for i in range(4):
                a(f's_add_u32 s{sT}, s{sL}, {4096*m_ + 1024*i}\ns_mov_b32 m0, s{sT}\ns_add_u32 s{sT2}, s{self.sSrcG}, {(16*(i&1) + 4*(i>>1)) * 3456}')
                a(f'buffer_load_dwordx4 v{self.vDG}, {sr(sr_,4)}, s{sT2} offen lds')

    def rest(self, gate):
        a, V, Sg, ctx, ldsP = self.a, self.V, self.Sg, self.ctx, self.ldsP
        sWG, sWave, vLane, WS = ctx['sWG'], ctx['sWave'], ctx['vLane'], sr(ctx['sWS'], 4)
        st, ld, TH = 'sc1', ctx['ld_flags'], ctx.get('hthr')
        if ctx.get('x_nost'):
            a0 = a
            class F:
                def __call__(s_, t=''): a0('\n'.join(l for l in t.split('\n') if not ('buffer_store_dwordx4' in l and 'offset' in l)))
                def label(s_, b): return a0.label(b)
            a = F()
        sHw, sT, sT2, sL, sId, vL16, vS = self.sHw, self.sT, self.sT2, self.sL, self.sId, self.vL16, self.vS
        mv, ms = V.mark(), Sg.mark()
        sJ, sTile, sFb = Sg(), Sg(), Sg()
        vT, vT2, vB1, vB2, vG1, vG2, vG3, vCf, vPw = [V() for _ in range(9)]
        Fr = V(28, 4); Cf = V(20, 4); acc = V(4, 4)
        lB, lG, lU = a.label('hlp_noB'), a.label('hlp_noG'), a.label('hlp_noU')
        a(f'''
        s_setprio {ctx.get('hprio', 2)}
        v_lshrrev_b32 v{vT}, 2, v{vLane}
        v_and_b32 v{vT2}, 3, v{vLane}
        v_lshlrev_b32 v{vB1}, 8, v{vT}
        s_add_u32 s{sT}, s{sL}, 8192
        v_add_u32 v{vB1}, s{sT}, v{vB1}
        v_lshl_add_u32 v{vB2}, v{vT2}, 3, v{vB1}
        v_lshl_add_u32 v{vB1}, v{vT2}, 4, v{vB1}
        v_lshlrev_b32 v{vG1}, 7, v{vT}
        v_add_u32 v{vG1}, s{sL}, v{vG1}
        v_lshl_add_u32 v{vG2}, v{vT2}, 3, v{vG1}
        v_bfe_u32 v{vT}, v{vLane}, 1, 1
        v_mul_u32_u24 v{vT}, {4096 - 16}, v{vT}
        v_add_u32 v{vG3}, v{vG2}, v{vT}
        v_lshl_add_u32 v{vG1}, v{vT2}, 4, v{vG1}
        v_and_b32 v{vT}, 15, v{vLane}
        v_lshlrev_b32 v{vT}, 6, v{vT}
        v_lshrrev_b32 v{vT2}, 4, v{vLane}
        v_lshl_add_u32 v{vT}, v{vT2}, 4, v{vT}
        s_lshl_b32 s{sT}, s{sHw}, 10
        s_add_u32 s{sT}, s{sT}, {ldsP}
        v_add_u32 v{vPw}, s{sT}, v{vT}
        s_and_b32 s{sTile}, s{sWG}, 3
        s_mul_i32 s{sTile}, s{sTile}, 56
        s_bfe_u32 s{sT}, s{sWG}, 0x10002
        s_mul_i32 s{sT}, s{sT}, 28
        s_add_u32 s{sTile}, s{sTile}, s{sT}
        s_lshr_b32 s{sT}, s{sWG}, 3
        s_add_u32 s{sTile}, s{sTile}, s{sT}
        s_cmp_ge_u32 s{sT}, 28
        s_cselect_b32 s{sTile}, 255, s{sTile}
        s_mul_i32 s{sFb}, s{sTile}, 9363
        s_lshr_b32 s{sFb}, s{sFb}, 16
        ''')
        gate(vS, sT2, sT, sHw, 'L')
        tr = lambda i: ctx['tr'](2, i)
        tr(2)
        if not ctx.get('x_noload'): self.loads(sJ)
        tr(3)
        a('s_waitcnt vmcnt(0)')
        tr(4)
        gate(vS, sT2, sT, sHw, 'B')
        a(f's_cmp_lt_u32 s{sId}, 432\ns_cbranch_scc1 {lB}')
        for i, (r, o) in enumerate(((vB1, 0), (vB1, 8), (vB1, 64), (vB1, 72), (vB2, 128))):
            for h in range(2): a(f'ds_read_b64_tr_b16 {vr(Fr+4*i+2*h,2)}, v{r} offset:{o + h*4096}')
        for i in range(5):
            a(f's_waitcnt lgkmcnt({8-2*i})')
            if i == 4: a(f's_add_u32 s{self.sDstC}, s{self.sDstC}, 4096')
            a(f'buffer_store_dwordx4 {vr(Fr+4*i,4)}, v{vL16}, {WS}, s{self.sDstC} offen offset:{1024*(i&3)} {st}')
        a('s_waitcnt vmcnt(0)')
        signal(a, ctx, self.sCntB, vS)
        a(f'{lB}:')
        tr(5)
        a(f's_cmp_ge_u32 s{sId}, 620\ns_cbranch_scc1 {lG}')
        for i, (r, o) in enumerate(((vG1, 0), (vG1, 8), (vG1, 4096), (vG1, 4104), (vG2, 64), (vG2, 4160), (vG3, 96))):
            for h in range(2): a(f'ds_read_b64_tr_b16 {vr(Fr+4*i+2*h,2)}, v{r} offset:{o + h*2048}')
        for i in range(7):
            a(f's_waitcnt lgkmcnt({12-2*i})')
            if i == 4: a(f's_add_u32 s{self.sDstG}, s{self.sDstG}, 4096')
            a(f'buffer_store_dwordx4 {vr(Fr+4*i,4)}, v{vL16}, {WS}, s{self.sDstG} offen offset:{1024*(i&3)} {st}')
        a('s_waitcnt vmcnt(0)')
        signal(a, ctx, self.sCntG, vS)
        a(f'{lG}:')
        tr(6)
        lpm, outm = a.label('hlp_fm'), a.label('hlp_fmo')
        a(f'''
        v_lshlrev_b32 v{vT}, 2, v{vLane}
        v_min_u32 v{vT2}, 31, v{vLane}
        v_lshlrev_b32 v{vT2}, 2, v{vT2}
        s_and_b32 s{sT}, s{sWG}, 7
        s_lshl_b32 s{sT}, s{sT}, 10
        s_add_u32 s{sT}, s{sT}, {F_MOD}
        s_mov_b32 s{sT2}, {SPIN}
        {lpm}:
        buffer_load_dword v{vS}, v{vT}, {WS}, s{sT} offen offset:320 sc1
        buffer_load_dword v{vS+1}, v{vT}, {WS}, s{sT} offen offset:576 sc1
        buffer_load_dword v{vS+2}, v{vT2}, {WS}, s{sT} offen offset:832 sc1
        s_sub_u32 s{sT2}, s{sT2}, 1
        s_cbranch_scc1 {outm}
        s_waitcnt vmcnt(0)
        v_xor_b32 v{vS}, s{ctx['sNonce']}, v{vS}
        v_xor_b32 v{vS+1}, s{ctx['sNonce']}, v{vS+1}
        v_xor_b32 v{vS+2}, s{ctx['sNonce']}, v{vS+2}
        v_or3_b32 v{vS}, v{vS}, v{vS+1}, v{vS+2}
        v_cmp_ne_u32 vcc, 0, v{vS}
        s_sleep 8
        s_cbranch_vccnz {lpm}
        {outm}:
        s_waitcnt vmcnt(0)
        ''')
        nco = a.label('hlp_nocoef')
        qkv_ids(a, sWG, sT2, sJ, sT)
        a(f'''
        s_cmp_lg_u32 s{sHw}, 3
        s_cbranch_scc1 {nco}
        s_mul_i32 s{sT}, s{sJ}, 320
        s_add_u32 s{sT}, s{sT}, {WS_MODP + 1280*4}
        v_mul_u32_u24 v{vT}, 13, v{vLane}
        v_lshrrev_b32 v{vT}, 8, v{vT}
        v_min_u32 v{vT2}, 1, v{vT}
        v_add_u32 v{vT2}, v{vT2}, v{vT}
        v_mul_u32_u24 v{vT2}, 2560, v{vT2}
        v_mul_u32_u24 v{vT}, 320, v{vT}
        v_sub_u32 v{vT}, v{vL16}, v{vT}
        v_add_u32 v{vT}, v{vT}, v{vT2}
        ''')
        for p in range(4):
            a(f'buffer_load_dwordx4 {vr(Fr+4*p,4)}, v{vT}, {WS}, s{sT} offen {ld}')
            if p < 3: a(f's_add_u32 s{sT}, s{sT}, {MODQ}')
        a(f'v_add_u32 v{vT2}, {self.ldsC}, v{vL16}\ns_waitcnt vmcnt(0)')
        for r in range(4): a(f'v_add_f32 v{Fr+r}, v{Fr+r}, v{Fr+4+r}\nv_add_f32 v{Fr+8+r}, v{Fr+8+r}, v{Fr+12+r}')
        for r in range(4): a(f'v_add_f32 v{Fr+r}, v{Fr+r}, v{Fr+8+r}')
        a(f'ds_write_b128 v{vT2}, {vr(Fr,4)}\n{nco}:')
        gate(vS, sT2, sT, sHw, 'W')
        qkv_ids(a, sWG, sT2, sJ, sT)
        a(f's_lshl_b32 s{sT}, s{sJ}, 8\ns_add_u32 s{sT}, s{sT}, {C_PO}')
        poll(a, ctx, sT, 1, 20, vS, sT2, sleep=16)
        tr(7)
        lp = a.label('hlp_wo')
        a(f'''
        s_mul_i32 s{sJ}, s{sJ}, 102400
        s_add_u32 s{sJ}, s{sJ}, {WS_PWO}
        s_add_u32 s{sJ}, s{sJ}, s{sL}
        s_add_u32 s{sT}, s{sL}, {HLP_Q}
        {lp}:
        s_mov_b32 m0, s{sL}
        s_add_u32 s{sL}, s{sL}, 1024
        {'s_nop 0' if ctx.get('x_nowo') else f'buffer_load_dwordx4 v{vL16}, {WS}, s{sJ} offen {ld} lds'}
        s_add_u32 s{sJ}, s{sJ}, 1024
        {f's_waitcnt vmcnt({TH})' if TH is not None else ''}
        s_cmp_lt_u32 s{sL}, s{sT}
        s_cbranch_scc1 {lp}
        s_cmp_ge_u32 s{sTile}, 217
        s_cbranch_scc1 {lU}
        s_lshl_b32 s{sT}, s{sFb}, 8
        s_add_u32 s{sT}, s{sT}, {C_PW}
        ''')
        tr(8)
        poll(a, ctx, sT, 1, 20, vS, sT2, sleep=16)
        a(f'''
        s_mul_i32 s{sT}, s{sFb}, {140 - 7}
        s_add_u32 s{sT}, s{sT}, s{sTile}
        s_mul_i32 s{sT2}, s{sHw}, 35
        s_add_u32 s{sT}, s{sT}, s{sT2}
        s_lshl_b32 s{sT}, s{sT}, 10
        s_add_u32 s{sT}, s{sT}, {WS_PGU}
        s_mul_i32 s{sT2}, s{sHw}, 5120
        s_add_u32 s{sT2}, s{sT2}, {WS_MODB}
        ''')
        for i in range(5):
            a(f'''
            buffer_load_dwordx4 {vr(Fr+4*i,4)}, v{vL16}, {WS}, s{sT} offen {ld}
            buffer_load_dwordx4 {vr(Cf+4*i,4)}, v{vL16}, {WS}, s{sT2} offen {ld}
            s_add_u32 s{sT}, s{sT}, 7168
            s_add_u32 s{sT2}, s{sT2}, 1024
            ''')
        a('s_waitcnt vmcnt(0)')
        for i in range(5):
            a(f'v_mfma_f32_16x16x32_bf16 {vr(acc,4)}, {vr(Fr+4*i,4)}, {vr(Cf+4*i,4)}, {vr(acc,4) if i else 0}')
        a(f'''
        s_nop 7
        ds_write_b128 v{vPw}, {vr(acc,4)}
        {lU}:
        ''')
        ng0 = a.label('hlp_nogu0')
        gu_ids(a, sWG, sT2, sJ, sT)
        a(f's_cmp_ge_u32 s{sJ}, 31\ns_cbranch_scc1 {ng0}\ns_cmp_lg_u32 s{sHw}, 0\ns_cbranch_scc1 {ng0}\ns_lshl_b32 s{sT}, s{sJ}, 8\ns_add_u32 s{sT}, s{sT}, {C_PW}')
        poll(a, ctx, sT, 1, 20, vS, sT2, sleep=16)
        a(f'{ng0}:')
        if ctx.get('warm'):
            def touch(sBase, npieces, total):
                lp_ = a.label('hlp_touch')
                a(f'''
                s_mul_i32 s{sT}, s{sHw}, {npieces}
                s_add_u32 s{sT2}, s{sT2}, s{sT}
                s_min_u32 s{sT2}, s{sT2}, {total - npieces}
                s_lshl_b32 s{sT2}, s{sT2}, 10
                s_add_u32 s{sBase}, s{sBase}, s{sT2}
                s_mov_b32 s{sT}, {npieces}
                {lp_}:
                buffer_load_dwordx4 {vr(Fr,4)}, v{vL16}, {WS}, s{sBase} offen {ld}
                s_add_u32 s{sBase}, s{sBase}, 1024
                s_sub_u32 s{sT}, s{sT}, 1
                {f's_waitcnt vmcnt({TH})' if TH is not None else ''}
                s_cmp_lg_u32 s{sT}, 0
                s_cbranch_scc1 {lp_}
                ''')
            ng = a.label('hlp_nogu')
            gu_ids(a, sWG, sT2, sJ, sT)
            a(f's_cmp_ge_u32 s{sJ}, 31\ns_cbranch_scc1 {ng}\ns_lshl_b32 s{sT}, s{sJ}, 8\ns_add_u32 s{sT}, s{sT}, {C_PW}')
            poll(a, ctx, sT, 1, 20, vS, sT2, sleep=16)
            a(f's_mul_i32 s{sJ}, s{sJ}, {140*1024}\ns_add_u32 s{sJ}, s{sJ}, {WS_PGU}\ns_bfe_u32 s{sT2}, s{sWG}, 0x20003\ns_mul_i32 s{sT2}, s{sT2}, 36')
            touch(sJ, 9, 140)
            a(f'{ng}:')
            if ctx['warm'] > 1:
                qkv_ids(a, sWG, sT2, sJ, sT)
                a(f's_lshl_b32 s{sT}, s{sJ}, 8\ns_add_u32 s{sT}, s{sT}, {C_PD}')
                poll(a, ctx, sT, 1, 54, vS, sT2, sleep=16)
                a(f's_mul_i32 s{sJ}, s{sJ}, {270*1024}\ns_add_u32 s{sJ}, s{sJ}, {WS_PWD}\ns_lshr_b32 s{sT2}, s{sWG}, 5\ns_mul_i32 s{sT2}, s{sT2}, 36')
                touch(sJ, 9, 270)
        a('s_waitcnt vmcnt(0) lgkmcnt(0)\ns_setprio 0')
        tr(9)
        def after_barrier():
            fin = a.label('hlp_fin')
            a(f'''
            s_cmp_lg_u32 s{sWave}, 4
            s_cbranch_scc1 {fin}
            s_cmp_ge_u32 s{sTile}, 217
            s_cbranch_scc1 {fin}
            v_and_b32 v{vT}, 15, v{vLane}
            v_lshrrev_b32 v{vT2}, 4, v{vLane}
            v_lshlrev_b32 v{vT2}, 10, v{vT2}
            v_lshl_add_u32 v{vT2}, v{vT}, 2, v{vT2}
            v_add_u32 v{vT2}, {ldsP}, v{vT2}
            ''')
            for n in range(16): a(f'ds_read_b32 v{Cf+n}, v{vT2} offset:{64*n}')
            u1, u2, t1, t2 = acc, acc + 2, acc + 1, acc + 3
            a('s_waitcnt lgkmcnt(0)')
            for d in (4, 2):
                for i in range(d): a(f'v_add_f32 v{Cf+i}, v{Cf+i}, v{Cf+i+d}\nv_add_f32 v{Cf+8+i}, v{Cf+8+i}, v{Cf+8+i+d}')
            a(f'''
            v_add_f32 v{u1}, v{Cf}, v{Cf+1}
            v_add_f32 v{u2}, v{Cf+8}, v{Cf+9}
            v_mov_b32 v{t1}, v{u1}
            v_mov_b32 v{t2}, v{u2}
            s_nop 1
            v_permlane32_swap_b32 v{u1}, v{t1}
            v_permlane32_swap_b32 v{u2}, v{t2}
            s_nop 0
            v_add_f32 v{u1}, v{u1}, v{t1}
            v_add_f32 v{u2}, v{u2}, v{t2}
            v_mov_b32 v{t1}, v{u1}
            v_mov_b32 v{t2}, v{u2}
            s_nop 1
            v_permlane16_swap_b32 v{u1}, v{t1}
            v_permlane16_swap_b32 v{u2}, v{t2}
            s_nop 0
            v_add_f32 v{u1}, v{u1}, v{t1}
            v_add_f32 v{u2}, v{u2}, v{t2}
            v_cvt_pk_bf16_f32 v{Fr}, v{u1}, v{u1}
            v_cvt_pk_bf16_f32 v{Fr+4}, v{u2}, v{u2}
            v_and_b32 v{t1}, 0xffff0000, v{Fr}
            v_and_b32 v{t2}, 0xffff0000, v{Fr+4}
            v_sub_f32 v{u1}, v{u1}, v{t1}
            v_sub_f32 v{u2}, v{u2}, v{t2}
            v_cvt_pk_bf16_f32 v{Fr+1}, v{u1}, v{t2}
            v_cvt_pk_bf16_f32 v{Fr+2}, v{t2}, v{u2}
            v_mov_b32 v{Fr+3}, 0
            v_lshlrev_b32 v{vT}, 4, v{vT}
            s_lshl_b32 s{sT}, s{sTile}, 8
            s_add_u32 s{sT}, s{sT}, {WS_U}
            s_mov_b64 exec, 0xffff
            buffer_store_dwordx4 {vr(Fr,4)}, v{vT}, {WS}, s{sT} offen {st}
            s_mov_b64 exec, -1
            s_lshl_b32 s{sT}, s{sFb}, 8
            s_add_u32 s{sT}, s{sT}, {C_PG}
            s_waitcnt vmcnt(0)
            ''')
            signal(a, ctx, sT, vS)
            a(f'{fin}:')
            V.release(mv); Sg.release(ms)
        return after_barrier
```

```python
S, D, H, DH, F = 2048, 640, 32, 20, 1728
ARG_X, ARG_WQKV, ARG_WO, ARG_BX, ARG_WG, ARG_WU, ARG_WD, ARG_C, ARG_WMOD, ARG_OUT, ARG_DBG, ARG_WS = [8*i for i in range(12)]
WS_SIZE = 268435456
def al(x, a=4096): return (x + a - 1) // a * a
WS_EPOCH = 0
WS_MODB = 16384
WS_MODP = 16384 + 20480
MODQ = 3840 * 4
WS_FLAG = 131072
WS_U = WS_FLAG + 589824
WS_ST = WS_U + 262144
QT = 1280
KVT = 2688
KV_K1, KV_K2, KV_V = 0, 1024, 1280
KV_ONE = 2560
WS_Q = WS_ST + 262144
WS_KV = al(WS_Q + H * 64 * QT)
WS_O = al(WS_KV + H * 64 * KVT + 1024)
WS_X1A = al(WS_O + 128 * 20 * 1024)
WS_X1R = al(WS_X1A + 64 * 40 * 1024)
WS_HM = al(WS_X1R + 256 * 24576)
WS_PQKV = al(WS_HM + 128 * 54 * 1024)
WS_PWO = WS_PQKV + 8 * 15 * 20 * 1024
WS_PWD = WS_PWO + 8 * 20 * 5 * 1024
WS_PGU = WS_PWD + 8 * 54 * 5 * 1024
WS_LN1 = WS_PGU + 31 * 20 * 7 * 1024
WS_END = al(WS_LN1 + S * 8)
WS_STAMP = WS_END
QSCALE = (DH ** -0.5) * 1.4426950408889634
MBIAS = 24.0
```

```python
from asm import *
from layout import *

def udiv(a, q, v, d, maxv):
    for sh in range(8, 24):
        m = -(-(1 << sh) // d)
        if all((x * m) >> sh == x // d for x in range(maxv)) and m * maxv < (1 << 32) and m < (1 << 24): break
    else: raise ValueError
    a(f'v_mul_u32_u24 v{q}, {m}, v{v}\nv_lshrrev_b32 v{q}, {sh}, v{q}')

PACK5_LDS = 8192
OOBV = 30

def pack5_addr(a, vD, vLane, stride, t):
    a(f'''
    v_and_b32 v{t}, 15, v{vLane}
    v_lshrrev_b32 v{vD}, 4, v{vLane}
    v_mul_u32_u24 v{vD}, {stride}, v{vD}
    v_lshl_add_u32 v{vD}, v{t}, 4, v{vD}
    v_cmp_lt_u32 vcc, 9, v{t}
    v_mov_b32 v{t}, 0x40000000
    s_nop 0
    v_cndmask_b32 v{vD}, v{vD}, v{t}, vcc
    ''')

def pack5_load(a, vD, srcSRD, sSrc, sLds, sT, sT2, rowoff):
    for m in range(8):
        rowoff(sT2, m & 3, m >> 2)
        a(f'''
        s_add_u32 s{sT}, s{sLds}, {1024*m}
        s_mov_b32 m0, s{sT}
        s_add_u32 s{sT2}, s{sT2}, s{sSrc}
        buffer_load_dwordx4 v{vD}, {sr(srcSRD,4)}, s{sT2} offen lds
        ''')

def pack5_store(a, V, vLane, ws, sLds, kind, sDst, dstride, st=''):
    m = V.mark()
    ad, t, l16 = V(), V(), V()
    Fr = V(20, 4)
    a(f'''
    v_lshrrev_b32 v{t}, 2, v{vLane}
    v_lshlrev_b32 v{ad}, 8, v{t}
    v_add_u32 v{ad}, s{sLds}, v{ad}
    v_and_b32 v{t}, 3, v{vLane}
    v_lshlrev_b32 v{l16}, 4, v{vLane}
    ''')
    a1, a2 = V(), V()
    if kind == 'natural':
        a(f'v_lshl_add_u32 v{a1}, v{t}, 3, v{ad}')
        offs = [(a1, 32 * i) for i in range(5)]
    elif kind == 'qk':
        a(f'''
        v_mul_u32_u24 v{a2}, 40, v{t}
        v_add_u32 v{a2}, v{a2}, v{ad}
        v_lshrrev_b32 v{a1}, 1, v{t}
        v_mul_u32_u24 v{a1}, 40, v{a1}
        v_and_b32 v{t}, 1, v{t}
        v_lshl_add_u32 v{a1}, v{t}, 4, v{a1}
        v_add_u32 v{a1}, v{a1}, v{ad}
        ''')
        offs = [(a1, 0), (a1, 8), (a1, 80), (a1, 88), (a2, 32)]
    a('s_waitcnt vmcnt(0)')
    for i, (r, o) in enumerate(offs):
        for h in range(2):
            a(f'ds_read_b64_tr_b16 {vr(Fr+4*i+2*h,2)}, v{r} offset:{o + h*4096}')
    for i in range(5):
        a(f's_waitcnt lgkmcnt({8-2*i})')
        a(f'buffer_store_dwordx4 {vr(Fr+4*i,4)}, v{l16}, {sr(ws,4)}, s{sDst} offen {st}')
        if i < 4: a(f's_add_u32 s{sDst}, s{sDst}, {dstride}')
    V.release(m)
```

```python
from asm import *
from layout import *
from attn import f2u
from sync import *
from qkv import qkv_ids, gu_ids

GRP = 40960

class Feed:
    def __init__(self, a, ctx, sSrc, sM, vL16, vm, ld):
        self.a, self.ctx, self.sSrc, self.sM, self.vL16, self.vm, self.ld = a, ctx, sSrc, sM, vL16, vm, ld
    def start(self, sBase, n0, w0, sT, lds0=0):
        a, w = self.a, self.ctx['sWave']
        self.n, self.w0 = n0, w0
        a(f'''
        s_add_u32 s{sT}, s{w}, {n0 - w0}
        s_lshl_b32 s{sT}, s{sT}, 10
        s_add_u32 s{self.sSrc}, s{sBase}, s{sT}
        s_add_u32 s{self.sM}, s{sT}, {lds0}
        ''')
    def round(self, n1, tag, wrap=None):
        a, w, nw = self.a, self.ctx['sWave'], 8 - self.w0
        skip = None
        if self.n + nw > n1:
            skip = a.label('feed_skip')
            a(f's_cmp_ge_u32 s{w}, {self.w0 + n1 - self.n}\ns_cbranch_scc1 {skip}')
        a(f's_mov_b32 m0, s{self.sM}\ns_add_u32 s{self.sM}, s{self.sM}, {1024*nw}')
        a(f'buffer_load_dwordx4 v{self.vL16}, {sr(self.ctx["sWS"],4)}, s{self.sSrc} offen {self.ld} lds')
        a(f's_add_u32 s{self.sSrc}, s{self.sSrc}, {1024*nw}')
        if skip: a(f'{skip}:')
        else: self.vm.issue(tag)
        self.n = min(n1, self.n + nw)

L_COEF = 102400

def gen_proj(a, V, Sg, ctx, kind, RES, GB, opt=None):
    opt = opt or {}
    ws, sWG, sWave, vLane = ctx['sWS'], ctx['sWG'], ctx['sWave'], ctx['vLane']
    st, ld = 'sc1', ctx['ld_flags']
    stamp = ctx.get('stamp', lambda: None)
    WS = sr(ws, 4)
    NS = 20 if kind == 'o' else 54
    ACTB = WS_O if kind == 'o' else WS_HM
    NI = NS // 2
    NG = (NS + 7) // 8
    NSL = 4
    sX = ctx['sX'] if kind == 'o' else ctx['sOut']
    mv, ms = V.mark(), Sg.mark()
    sRb, sCb, sT, sT2, sKh, sTg, sW, sM, sAct, sR, sBase = [Sg() for _ in range(11)]
    vL16, vW0, vW1, vW2, vT, vT2, lI, lG, vTok, vTok2 = [V() for _ in range(10)]
    vS = V(4, 2)
    ACT = V(4 * NI, 4); WF = [V(20, 4), V(20, 4), V(20, 4)]; ACC = V(20, 4)
    GA, C1 = (V(12, 4), V(12, 4)) if kind == 'o' else (GB, None)
    vm, lg = Cnt(a, 'vmcnt', 63), Cnt(a, 'lgkmcnt', 15)
    qkv_ids(a, sWG, sRb, sCb, sT)
    a(f'''
    s_lshr_b32 s{sKh}, s{sWave}, 2
    s_and_b32 s{sTg}, s{sWave}, 3
    v_lshlrev_b32 v{vL16}, 4, v{vLane}
    v_and_b32 v{lI}, 15, v{vLane}
    v_lshrrev_b32 v{lG}, 4, v{vLane}
    v_lshlrev_b32 v{vT}, 5, v{lG}
    v_lshlrev_b32 v{vT2}, 4, v{lG}
    ''')
    if kind == 'o':
        a(f's_lshl_b32 s{sT}, s{sKh}, 7\ns_add_u32 s{sT}, s{sT}, {L_COEF}\nv_add_u32 v{vT}, s{sT}, v{vT}\nv_add_u32 v{vT2}, {L_COEF + 256}, v{vT2}')
        for v_, d in enumerate((GA, C1, GB)):
            a(f'ds_read_b128 {vr(d,4)}, v{vT} offset:{320*v_}\nds_read_b128 {vr(d+4,4)}, v{vT} offset:{320*v_+16}\nds_read_b128 {vr(d+8,4)}, v{vT2} offset:{320*v_}')
    a(f'''
    s_lshl_b32 s{sR}, s{sRb}, 2
    s_add_u32 s{sR}, s{sR}, s{sTg}
    s_mul_i32 s{sAct}, s{sR}, {16*1280}
    s_mul_i32 s{sM}, s{sCb}, 160
    s_add_u32 s{sAct}, s{sAct}, s{sM}
    v_mul_u32_u24 v{vTok}, 1280, v{lI}
    v_add_u32 v{vTok}, s{sAct}, v{vTok}
    v_lshl_add_u32 v{vTok2}, v{lG}, 3, v{vTok}
    v_add_u32 v{vTok2}, 128, v{vTok2}
    v_lshl_add_u32 v{vTok}, v{lG}, 4, v{vTok}
    s_lshl_b32 s{sM}, s{sKh}, 6
    v_add_u32 v{vTok}, s{sM}, v{vTok}
    ''')
    if kind == 'o':
        a(f'''
        buffer_load_dwordx4 {vr(RES+4,4)}, v{vTok}, {sr(sX,4)}, 0 offen
        buffer_load_dwordx2 {vr(RES+10,2)}, v{vTok2}, {sr(sX,4)}, 0 offen
        ''')
    a(f'''
    s_mul_i32 s{sAct}, s{sR}, {NS}
    s_add_u32 s{sAct}, s{sAct}, s{sKh}
    s_lshl_b32 s{sAct}, s{sAct}, 10
    s_add_u32 s{sAct}, s{sAct}, {ACTB}
    s_mul_i32 s{sT}, s{sKh}, {5120 + 2048}
    v_add_u32 v{vW0}, s{sT}, v{vL16}
    s_mul_i32 s{sT}, s{sKh}, {5120 - 2048}
    s_add_u32 s{sT}, s{sT}, 2048
    v_add_u32 v{vW1}, s{sT}, v{vL16}
    s_mul_i32 s{sT}, s{sKh}, 5120
    s_add_u32 s{sT}, s{sT}, 4096
    v_add_u32 v{vW2}, s{sT}, v{vL16}
    ''')
    np_ = a.label('proj_nopoll')
    if kind == 'o':
        pg = ctx['gu_prefetch']; pg.init()
        w0 = a.label('proj_w0')
        a(f's_cmp_eq_u32 s{sWave}, 0\ns_cbranch_scc1 {w0}')
        pg.start(84, 140, 1); pg.rounds()
        a(f's_branch {np_}\n{w0}:')
    a(f'''
    s_cmp_lg_u32 s{sWave}, 0
    s_cbranch_scc1 {np_}
    s_lshr_b32 s{sT}, s{sRb}, 2
    ''')
    cnt_poll(a, sT, C_ATT if kind == 'o' else C_GU, sT, sT2)
    if kind == 'o':
        gu_ids(a, sWG, sT2, sBase, sW)
        a(f's_cmp_ge_u32 s{sBase}, 31\ns_cselect_b32 s{sM}, 0, {0 if opt.get("nohelp") else 7}\ns_lshl_b32 s{sW}, s{sBase}, 8\ns_add_u32 s{sW}, s{sW}, {C_PG}')
        poll(a, ctx, sT, NSH, 4, vS, sT2, extra=(sW, f's{sM}'))
    else:
        poll(a, ctx, sT, NSH, 4, vS, sT2, last=3)
    if kind == 'o': ctx['epoch'](vS)
    pb = a.label('proj_bar')
    a(f's_branch {pb}\n{np_}:\ns_waitcnt vmcnt(0)\n{pb}:\ns_waitcnt lgkmcnt(0)\ns_barrier')
    stamp()
    PH = 3 if kind == 'o' else 5
    ctx['tr'](PH)
    feed = Feed(a, ctx, sW, sM, vL16, vm, ld)
    if kind == 'd':
        a(f's_mul_i32 s{sBase}, s{sCb}, {NS*5120}\ns_add_u32 s{sBase}, s{sBase}, {WS_PWD}')
    na = [0]
    def act_upto(n):
        while na[0] < min(NI, n):
            i = na[0]; na[0] += 1
            vm.issue(('A', i), f'buffer_load_dwordx4 {vr(ACT+4*i,4)}, v{vL16}, {WS}, s{sAct} offen offset:{2048*(i&1)} {ld}')
            if i & 1: a(f's_add_u32 s{sAct}, s{sAct}, 4096')
    cur = [0]
    def rdW(i):
        G = i // 4
        off = (G % NSL) * GRP + (i % 4) * 10240
        base = off // 51200 * 51200
        if base != cur[0]:
            for v_ in (vW0, vW1, vW2): a(f'v_add_u32 v{v_}, {(base - cur[0]) & 0xffffffff}, v{v_}')
            cur[0] = base
        off -= base
        return [(('R', i), f'ds_read_b128 {vr(WF[i%3]+4*t,4)}, v{v_} offset:{off + o}')
                for t, (v_, o) in enumerate(((vW0, 0), (vW0, 1024), (vW1, 0), (vW1, 1024), (vW2, 0)))]
    APRE = opt.get('apre_' + kind, 10 if kind == 'o' else 6)
    act_upto(APRE)
    for x in rdW(0) + rdW(1): lg.issue(*x)
    for i in range(NI):
        G = i // 4
        newgrp = kind == 'd' and i % 4 == 2 and i + 2 < NI
        late = newgrp and G + 1 >= NSL
        nxt = rdW(i + 2) if (i + 2 < NI and not late) else []
        wait2(a, vm, [('A', i)], lg, [('R', i + 1 if newgrp else i)])
        if i % (2 if kind == 'o' else 4) == 0: ctx['tr'](PH)
        if newgrp:
            if late: vm.wait(('W', G + 1))
            a('s_barrier')
            if late: nxt = rdW(i + 2)
        for t in range(5):
            c = vr(ACC + 4 * t, 4)
            a(f'v_mfma_f32_16x16x32_bf16 {c}, {vr(WF[i%3]+4*t,4)}, {vr(ACT+4*i,4)}, {c if i else 0}')
            if nxt: lg.issue(*nxt[t])
        if newgrp and G + NSL < NG:
            n0 = 40 * (G + NSL); n1 = min(NS * 5, n0 + 40)
            feed.start(sBase, n0, 0, sT, lds0=((G % NSL) * GRP - n0 * 1024) & 0xffffffff)
            while feed.n < n1: feed.round(n1, ('W', G + NSL))
        act_upto(i + 1 + (APRE if i < opt.get('aramp', 10) else opt.get('apre2', APRE)))
    stamp()
    ctx['tr'](PH)
    k1, k2, k3 = a.label('proj_k1'), a.label('proj_k2'), a.label('proj_k3')
    xch = 0
    a('s_barrier')
    a(f'''
    s_lshl_b32 s{sT}, s{sTg}, 11
    s_mul_i32 s{sT2}, s{sTg}, 3072
    s_add_u32 s{sT2}, s{sT2}, 8192
    s_cmp_eq_u32 s{sKh}, 0
    s_cselect_b32 s{sM}, s{sT}, s{sT2}
    s_cselect_b32 s{sW}, s{sT2}, s{sT}
    v_add_u32 v{vW0}, s{sM}, v{vL16}
    v_add_u32 v{vW1}, s{sW}, v{vL16}
    ds_write_b128 v{vW0}, {vr(ACC+8,4)}
    ds_write_b128 v{vW0}, {vr(ACC+12,4)} offset:1024
    s_cbranch_scc1 {k2}
    ds_write_b128 v{vW0}, {vr(ACC+16,4)} offset:2048
    {k2}:
    ''')
    if kind == 'o':
        for r in range(4): a(f'v_lshlrev_b32 v{RES+2*r}, 16, v{RES+4+r}\nv_and_b32 v{RES+2*r+1}, 0xffff0000, v{RES+4+r}')
        for r in range(2): a(f'v_lshlrev_b32 v{RES+8+2*r}, 16, v{RES+10+r}\nv_and_b32 v{RES+8+2*r+1}, 0xffff0000, v{RES+10+r}')
    a('s_waitcnt lgkmcnt(0)\ns_barrier')
    ctx['tr'](PH)
    for r in range(3): a(f'ds_read_b128 {vr(WF[0]+4*r,4)}, v{vW1} offset:{1024*r}')
    if kind == 'o':
        pg.start(0, 84, 0); pg.rounds(opt.get('g0', 2))
    src = [ACC + r for r in range(8)] + [ACC + 16 + r for r in range(4)]
    P = WF[1]
    a('s_waitcnt lgkmcnt(1)')
    for r in range(8): a(f'v_add_f32 v{src[r]}, v{src[r]}, v{WF[0]+r}')
    for r in range(8): a(f'v_fma_f32 v{RES+r}, v{src[r]}, v{GA+r}, v{RES+r}')
    if kind == 'o':
        for r in range(8): a(f'v_mul_f32 v{C1+r}, v{C1+r}, v{RES+r}')
        for r in range(4): a(f'v_cvt_pk_bf16_f32 v{P+r}, v{C1+2*r}, v{C1+2*r+1}')
        s1, s2, t1, t2 = GA, GA + 1, GA + 2, GA + 3
        a(f'''
        s_mul_i32 s{sT}, s{sR}, 20480
        s_mul_i32 s{sT2}, s{sCb}, 2560
        s_add_u32 s{sT}, s{sT}, s{sT2}
        s_add_u32 s{sT}, s{sT}, {WS_X1A}
        s_lshl_b32 s{sT2}, s{sKh}, 10
        s_add_u32 s{sT2}, s{sT2}, s{sT}
        buffer_store_dwordx4 {vr(P,4)}, v{vL16}, {WS}, s{sT2} offen {st}
        v_mul_f32 v{s2}, v{RES}, v{RES}
        v_add_f32 v{s1}, v{RES}, v{RES+1}
        v_fmac_f32 v{s2}, v{RES+1}, v{RES+1}
        ''')
        for r in range(2, 8): a(f'v_add_f32 v{s1}, v{s1}, v{RES+r}\nv_fmac_f32 v{s2}, v{RES+r}, v{RES+r}')
        a(f's_cmp_lg_u32 s{sKh}, 0\ns_cbranch_scc1 {k1}\ns_waitcnt lgkmcnt(0)')
        for r in range(8, 12): a(f'v_add_f32 v{src[r]}, v{src[r]}, v{WF[0]+r}')
        for r in range(8, 12): a(f'v_fma_f32 v{RES+r}, v{src[r]}, v{GA+r}, v{RES+r}')
        for r in range(8, 12): a(f'v_mul_f32 v{C1+r}, v{C1+r}, v{RES+r}')
        for r in range(4, 6): a(f'v_cvt_pk_bf16_f32 v{P+r}, v{C1+2*r}, v{C1+2*r+1}')
        a(f'''
        v_lshrrev_b32 v{vT}, 1, v{lG}
        v_lshlrev_b32 v{vT}, 8, v{vT}
        v_lshl_add_u32 v{vT}, v{lI}, 4, v{vT}
        v_and_b32 v{vT2}, 1, v{lG}
        v_lshl_add_u32 v{vT}, v{vT2}, 3, v{vT}
        buffer_store_dwordx2 {vr(P+4,2)}, v{vT}, {WS}, s{sT} offen offset:2048 {st}
        ''')
        for r in range(8, 12): a(f'v_add_f32 v{s1}, v{s1}, v{RES+r}\nv_fmac_f32 v{s2}, v{RES+r}, v{RES+r}')
        a(f'{k1}:')
        for sw in ('32', '16'):
            a(f'''
            v_mov_b32 v{t1}, v{s1}
            v_mov_b32 v{t2}, v{s2}
            s_nop 1
            v_permlane{sw}_swap_b32 v{s1}, v{t1}
            v_permlane{sw}_swap_b32 v{s2}, v{t2}
            s_nop 0
            v_add_f32 v{s1}, v{s1}, v{t1}
            v_add_f32 v{s2}, v{s2}, v{t2}
            ''')
        a(f'''
        s_lshl_b32 s{sT}, s{sCb}, 4
        s_lshl_b32 s{sT2}, s{sKh}, 3
        s_add_u32 s{sT}, s{sT}, s{sT2}
        s_lshl_b32 s{sT2}, s{sR}, 11
        s_add_u32 s{sT}, s{sT}, s{sT2}
        s_add_u32 s{sT}, s{sT}, {WS_ST}
        v_lshlrev_b32 v{vT}, 7, v{lI}
        s_mov_b64 exec, 0xffff
        buffer_store_dwordx2 {vr(s1,2)}, v{vT}, {WS}, s{sT} offen {st}
        s_mov_b64 exec, -1
        s_waitcnt lgkmcnt(0)
        ''')
        a(f's_lshr_b32 s{sT}, s{sRb}, 2')
        cnt_sig(a, ctx['sSig'], C_OP, sT, sCb, sT2)
    else:
        for r in range(4): a(f'v_cvt_pk_bf16_f32 v{P+r}, v{RES+2*r}, v{RES+2*r+1}')
        a(f'''
        buffer_store_dwordx4 {vr(P,4)}, v{vTok}, {sr(sX,4)}, 0 offen
        s_cmp_lg_u32 s{sKh}, 0
        s_cbranch_scc1 {k1}
        s_waitcnt lgkmcnt(0)
        ''')
        for r in range(8, 12): a(f'v_add_f32 v{src[r]}, v{src[r]}, v{WF[0]+r}')
        for r in range(8, 12): a(f'v_fma_f32 v{RES+r}, v{src[r]}, v{GA+r}, v{RES+r}')
        for r in range(4, 6): a(f'v_cvt_pk_bf16_f32 v{P+r}, v{RES+2*r}, v{RES+2*r+1}')
        a(f'buffer_store_dwordx2 {vr(P+4,2)}, v{vTok2}, {sr(sX,4)}, 0 offen\n{k1}:')
    ctx['tr'](PH)
    V.release(mv); Sg.release(ms)
```

```python
from asm import *
from layout import *
from attn import f2u
from build import srd
from pack import *
from sync import *

QKV_H, QKV_C = 0, 81920
QKV_LDS = QKV_C + 6144

def qkv_ids(a, sWG, sRb, sCb, sT):
    a(f'''
    s_bfe_u32 s{sRb}, s{sWG}, 0x20001
    s_lshl_b32 s{sRb}, s{sRb}, 3
    s_lshr_b32 s{sT}, s{sWG}, 5
    s_add_u32 s{sRb}, s{sRb}, s{sT}
    s_and_b32 s{sCb}, s{sWG}, 1
    s_lshl_b32 s{sCb}, s{sCb}, 2
    s_bfe_u32 s{sT}, s{sWG}, 0x20003
    s_add_u32 s{sCb}, s{sCb}, s{sT}
    ''')

def gu_ids(a, sWG, sRb, sFb, sT):
    a(f'''
    s_bfe_u32 s{sRb}, s{sWG}, 0x10002
    s_lshl_b32 s{sRb}, s{sRb}, 2
    s_bfe_u32 s{sT}, s{sWG}, 0x20003
    s_add_u32 s{sRb}, s{sRb}, s{sT}
    s_and_b32 s{sFb}, s{sWG}, 3
    s_lshl_b32 s{sFb}, s{sFb}, 3
    s_lshr_b32 s{sT}, s{sWG}, 5
    s_add_u32 s{sFb}, s{sFb}, s{sT}
    ''')

L_TAB, L_STAT, L_SPART, L_W0, L_GO, L_MCNT, L_MPART, L_PSTAGE = 81920, 87040, 87552, 140032, 140036, 140040, 140288, 97024

def lds_wait(a, v, sCnt, addr, sleep=1, thr=1):
    lp, out = a.label('spin'), a.label('spin_out')
    a(f"""
    v_mov_b32 v{v}, {addr}
    s_mov_b32 s{sCnt}, {SPIN * 8}
    {lp}:
    ds_read_b32 v{v+1}, v{v}
    s_sub_u32 s{sCnt}, s{sCnt}, 1
    s_cbranch_scc1 {out}
    s_waitcnt lgkmcnt(0)
    v_cmp_gt_u32 vcc, {thr}, v{v+1}
    s_sleep {sleep}
    s_cbranch_vccnz {lp}
    {out}:
    s_waitcnt lgkmcnt(0)
    """)

def gen_qkv(a, V, Sg, ctx, opt=None):
    opt = opt or {}
    ws, sWG, sWave, vLane = ctx['sWS'], ctx['sWG'], ctx['sWave'], ctx['vLane']
    st, ld = 'sc1', ctx['ld_flags']
    stamp = ctx.get('stamp', lambda: None)
    tr = lambda i: ctx['tr'](1, i)
    WS = sr(ws, 4)
    sX, sNonce = ctx['sX'], ctx['sNonce']
    mv, ms = V.mark(), Sg.mark()
    sP, sQ = Sg(4), Sg(4)
    sRb, sCb, sT, sT2, sK_, sW0, sW1, sA, sB, sI2, sTg, sJ, sL, sSeg, sDst, sRole = [Sg() for _ in range(16)]
    sK = sWG
    vT, vT2, vT3, vH0, vH1, vL16 = [V() for _ in range(6)]
    NW = 10
    WF = V(8 * NW, 4)
    m2 = V.mark()
    X = V(40, 4); XF = V(80, 4); PR = V(6, 2)
    vXa, vX1, vH2, vSa, vSb, vPa, vPb = [V() for _ in range(7)]
    CB = [X, X + 16]
    Scr = Regs('v', WF, WF + 8 * NW)
    vS = Scr(4, 2)
    wmod, wpack, wconst, xload, nomod = [a.label(x) for x in ('p0_mod', 'p0_pack', 'p0_const', 'p0_x', 'p0_nomod')]
    a(f"""
    s_load_dwordx4 s[{sP}:{sP+3}], s[0:1], {ARG_C}
    s_load_dwordx2 s[{sQ}:{sQ+1}], s[0:1], {ARG_WQKV}
    v_mov_b32 v{vS}, {L_W0}
    v_mov_b32 v{vS+2}, 0
    v_mov_b32 v{vS+3}, 0
    ds_write_b64 v{vS}, {vr(vS+2,2)}
    ds_write_b32 v{vS}, v{vS+2} offset:8
    """)
    qkv_ids(a, sWG, sRb, sCb, sT)
    a(f"""
    v_lshrrev_b32 v{vT}, 3, v{vLane}
    v_and_b32 v{vT2}, 7, v{vLane}
    v_mul_u32_u24 v{vXa}, 1280, v{vT}
    v_lshl_add_u32 v{vXa}, v{vT2}, 4, v{vXa}
    v_lshlrev_b32 v{vL16}, 4, v{vLane}
    s_mul_i32 s{sT}, s{sRb}, {64*1280}
    s_lshl_b32 s{sT2}, s{sWave}, 7
    s_add_u32 s{sA}, s{sT}, s{sT2}
    s_lshr_b32 s{sI2}, s{sWave}, 2
    s_add_u32 s{sI2}, s{sI2}, 8
    s_and_b32 s{sTg}, s{sWave}, 3
    s_lshl_b32 s{sTg}, s{sTg}, 1
    s_mul_i32 s{sB}, s{sTg}, {8*1280}
    s_add_u32 s{sB}, s{sB}, s{sT}
    s_lshl_b32 s{sT2}, s{sI2}, 7
    s_add_u32 s{sB}, s{sB}, s{sT2}
    s_waitcnt lgkmcnt(0)
    s_load_dword s{sNonce}, s[{ws}:{ws+1}], {WS_EPOCH}
    s_barrier
    """)
    srd(a, sX, sX, S * 1280)
    tr(1)
    def ldX_all():
        for n in range(10):
            if n == 8: a(f's_mov_b32 s{sA}, s{sB}')
            a(f'buffer_load_dwordx4 {vr(X+4*n,4)}, v{vXa}, {sr(sX,4)}, s{sA} offen')
            if n < 9: a(f's_add_u32 s{sA}, s{sA}, {8*1280}')
    def addr_setup():
        vA0, vA1 = XF, XF + 1
        a(f"""
        v_and_b32 v{vA0}, 3, v{vT2}
        v_lshrrev_b32 v{vA1}, 2, v{vT2}
        v_mul_u32_u24 v{vT3}, 12, v{vA1}
        v_add_u32 v{vT3}, v{vT3}, v{vA0}
        v_xor_b32 v{vT3}, v{vT3}, v{vT}
        v_lshlrev_b32 v{vT3}, 4, v{vT3}
        v_lshl_add_u32 v{vT3}, v{vA0}, 8, v{vT3}
        v_lshl_add_u32 v{vT3}, v{vA1}, 12, v{vT3}
        s_lshl_b32 s{sT}, s{sWave}, 13
        v_add_u32 v{vH1}, s{sT}, v{vT3}
        s_lshl_b32 s{sT}, s{sI2}, 13
        s_lshl_b32 s{sT2}, s{sTg}, 9
        s_add_u32 s{sT}, s{sT}, s{sT2}
        v_add_u32 v{vT3}, s{sT}, v{vT3}
        v_lshlrev_b32 v{vA0}, 5, v{vT2}
        s_lshl_b32 s{sT}, s{sWave}, 8
        s_add_u32 s{sT}, s{sT}, {L_TAB}
        v_add_u32 v{vX1}, s{sT}, v{vA0}
        s_lshl_b32 s{sT}, s{sI2}, 8
        s_add_u32 s{sT}, s{sT}, {L_TAB}
        v_add_u32 v{vH2}, s{sT}, v{vA0}
        v_lshlrev_b32 v{vSa}, 3, v{vT}
        v_add_u32 v{vSa}, {L_STAT}, v{vSa}
        s_lshl_b32 s{sT}, s{sTg}, 6
        v_add_u32 v{vSb}, s{sT}, v{vSa}
        v_xor_b32 v{vH0}, 128, v{vH1}
        v_mul_u32_u24 v{vA0}, 80, v{vT}
        s_lshl_b32 s{sT}, s{sWave}, 3
        s_add_u32 s{sT}, s{sT}, {L_SPART}
        v_add_u32 v{vPa}, s{sT}, v{vA0}
        s_mul_i32 s{sT}, s{sTg}, 640
        s_lshl_b32 s{sT2}, s{sI2}, 3
        s_add_u32 s{sT}, s{sT}, s{sT2}
        s_add_u32 s{sT}, s{sT}, {L_SPART}
        v_add_u32 v{vPb}, s{sT}, v{vA0}
        """)
    def x_stats():
        a(f's_mov_b32 s{sT}, 0x3f803f80')
        for n in range(10):
            p = XF + 2 * n
            a(f'v_dot2_f32_bf16 v{p}, v{X+4*n}, s{sT}, 0\nv_dot2_f32_bf16 v{p+1}, v{X+4*n}, v{X+4*n}, 0')
            for r in range(1, 4):
                a(f'v_dot2_f32_bf16 v{p}, v{X+4*n+r}, s{sT}, v{p}\nv_dot2_f32_bf16 v{p+1}, v{X+4*n+r}, v{X+4*n+r}, v{p+1}')
        a('s_nop 0')
        for dpp in ('quad_perm:[1,0,3,2]', 'quad_perm:[2,3,0,1]', 'row_half_mirror'):
            for e in range(20): a(f'v_add_f32_dpp v{XF+e}, v{XF+e}, v{XF+e} {dpp} row_mask:0xf bank_mask:0xf')
        a('s_mov_b32 exec_lo, 0x01010101\ns_mov_b32 exec_hi, 0x01010101')
        for n in range(10): a(f'ds_write_b64 v{vPa if n < 8 else vPb}, {vr(XF+2*n,2)} offset:{640*(n&7)}')
        a('s_mov_b64 exec, -1')
    L = lambda *n: [a.label('p0_' + x) for x in n]
    b1, mod2, pack2, const2, late2, none2, stats_, flag3, xgo, b2, const1 = L('b1', 'mod2', 'pack2', 'const2', 'late2', 'none2', 'stats', 'flag3', 'xgo', 'b2', 'const1')
    a(f"""
    s_mov_b32 s{sRole}, 3
    s_cmp_eq_u32 s{sWave}, 7
    s_cbranch_scc1 {wconst}
    s_cmp_ge_u32 s{sWave}, 5
    s_cbranch_scc1 {wpack}
    s_cmp_eq_u32 s{sWave}, 4
    s_cbranch_scc1 {xload}
    """)
    NR = 5
    MP = opt.get('mpos', 0)
    acc = Scr(8); vM = Scr(); acc0, vM0 = acc, vM
    if MP: Scr.release(WF + 48)
    W = [Scr(4) for _ in range(NR)]; C = [Scr() for _ in range(NR)]; vR, vO = Scr(), Scr(); Cl = [Scr() for _ in range(NR)]
    def mod_loads():
        for i in range(NR):
            a(f'buffer_load_ushort v{C[i]}, v{vR}, {sr(sP,4)}, 0 offen offset:{16*i}')
        for i in range(NR):
            a(f'buffer_load_dwordx4 {vr(W[i],4)}, v{vO}, {sr(sQ,4)}, s{sJ} offen')
            if i < NR - 1: a(f's_add_u32 s{sJ}, s{sJ}, {8*7680}')
    def mod_fma(younger, acc=acc, vM=vM):
        a(f's_waitcnt vmcnt({NR + younger})')
        for i in range(NR): a(f'v_lshlrev_b32 v{C[i]}, 16, v{C[i]}')
        for i in range(NR): a(f'v_mul_f32 v{acc+i}, {hex(f2u(-1.4426950408889634))}, v{C[i]}')
        for i in range(NR): a(f'v_exp_f32 v{acc+i}, v{acc+i}')
        for i in range(NR): a(f'v_add_f32 v{acc+i}, 1.0, v{acc+i}')
        for i in range(NR): a(f'v_rcp_f32 v{acc+i}, v{acc+i}')
        for i in range(NR): a(f'v_mul_f32 v{C[i]}, v{C[i]}, v{acc+i}')
        for i in range(NR): a(f'v_cvt_pk_bf16_f32 v{C[i]}, v{C[i]}, v{C[i]}')
        for i in range(NR): a(f'v_and_b32 v{Cl[i]}, 0xffff, v{C[i]}\nv_and_b32 v{C[i]}, 0xffff0000, v{C[i]}')
        for i in range(NR):
            a(f's_waitcnt vmcnt({NR-1-i + younger})')
            for r in range(4):
                a(f'v_dot2_f32_bf16 v{acc+2*r}, v{W[i]+r}, v{Cl[i]}, {"v" + str(acc+2*r) if i else 0}')
                a(f'v_dot2_f32_bf16 v{acc+2*r+1}, v{W[i]+r}, v{C[i]}, {"v" + str(acc+2*r+1) if i else 0}')
        a('s_nop 0')
    def mod_partial(younger, acc, vM, sWave=sWave):
        mod_fma(younger, acc, vM)
        for e in range(8): a(f'v_add_f32_dpp v{acc+e}, v{acc+e}, v{acc+e} row_ror:8 row_mask:0xf bank_mask:0xf')
        a(f"""
        v_lshrrev_b32 v{vM}, 4, v{vLane}
        v_lshlrev_b32 v{vM}, 8, v{vM}
        v_and_b32 v{vR}, 7, v{vLane}
        v_lshl_add_u32 v{vM}, v{vR}, 5, v{vM}
        s_lshl_b32 s{sT}, s{sWave}, 10
        s_add_u32 s{sT}, s{sT}, {L_MPART}
        v_add_u32 v{vM}, s{sT}, v{vM}
        s_mov_b32 exec_lo, 0x00ff00ff
        s_mov_b32 exec_hi, 0x00ff00ff
        ds_write_b128 v{vM}, {vr(acc,4)}
        ds_write_b128 v{vM}, {vr(acc+4,4)} offset:16
        s_mov_b64 exec, -1
        """)
    def mod_final(R, vM, vR):
        a(f'v_lshlrev_b32 v{vM}, 2, v{vLane}\nv_add_u32 v{vR}, {L_MPART}, v{vM}')
        for i in range(16): a(f'ds_read_b32 v{R+i}, v{vR} offset:{256*i}')
        a(f"""
        s_and_b32 s{sT}, s{sK}, 3
        s_lshr_b32 s{sT2}, s{sK}, 2
        s_mul_i32 s{sJ}, s{sT2}, 26
        s_lshr_b32 s{sJ}, s{sJ}, 8
        s_bitcmp1_b32 0x12, s{sJ}
        s_cselect_b32 s{sJ}, 1.0, 0
        s_cmp_eq_u32 s{sT}, 0
        s_cselect_b32 s{sJ}, s{sJ}, 0
        s_mul_i32 s{sL}, s{sT}, {MODQ}
        s_lshl_b32 s{sSeg}, s{sT2}, 8
        s_add_u32 s{sL}, s{sL}, s{sSeg}
        s_add_u32 s{sL}, s{sL}, {WS_MODP}
        s_waitcnt lgkmcnt(0)
        """)
        for d in (8, 4, 2, 1):
            for i in range(d): a(f'v_add_f32 v{R+i}, v{R+i}, v{R+i+d}')
        a(f'v_add_f32 v{R}, s{sJ}, v{R}\nbuffer_store_dword v{R}, v{vM}, {WS}, s{sL} offen sc1')
    a(f"""
    s_mov_b32 s{sQ}, s{sP+2}
    s_mov_b32 s{sQ+1}, s{sP+3}
    """)
    srd(a, sQ, sQ, 640 * 7680); srd(a, sP, sP, 1280)
    def mod_addr(sWave=sWave):
        a(f"""
        s_and_b32 s{sT}, s{sK}, 3
        s_mul_i32 s{sT}, s{sT}, 160
        s_mul_i32 s{sT2}, s{sWave}, 40
        s_add_u32 s{sT}, s{sT}, s{sT2}
        v_lshrrev_b32 v{vR}, 3, v{vLane}
        v_add_u32 v{vR}, s{sT}, v{vR}
        v_mul_u32_u24 v{vO}, 7680, v{vR}
        v_and_b32 v{C[0]}, 7, v{vLane}
        v_lshl_add_u32 v{vO}, v{C[0]}, 4, v{vO}
        v_lshlrev_b32 v{vR}, 1, v{vR}
        s_lshr_b32 s{sJ}, s{sK}, 2
        s_lshl_b32 s{sJ}, s{sJ}, 7
        """)
    a(f"""
    s_cmp_ge_u32 s{sK}, 240
    s_cbranch_scc1 {xload}
    s_mov_b32 s{sRole}, {4 if MP else 3}
    s_cmp_ge_u32 s{sK}, 80
    s_cbranch_scc1 {xload}
    """)
    mod_addr(); mod_loads()
    a(f's_mov_b32 s{sRole}, 0\ns_branch {xload}\n{mod2}:')
    mod_partial(0, acc, vM)
    per = -(-N_CNT // 80)
    a(f"""
    s_mov_b64 exec, 1
    v_mov_b32 v{vS}, {L_MCNT}
    v_mov_b32 v{vS+1}, 1
    s_waitcnt lgkmcnt(0)
    ds_add_u32 v{vS}, v{vS+1}
    s_mov_b64 exec, -1
    """)
    tr(2)
    a(f"""
    s_mov_b32 s{sRole}, 3
    s_cmp_lg_u32 s{sWave}, 0
    s_cbranch_scc1 {xgo}
    s_mul_i32 s{sT}, s{sK}, {per}
    v_add_u32 v{vO}, s{sT}, v{vLane}
    v_min_u32 v{vO}, {N_CNT - 1}, v{vO}
    v_lshlrev_b32 v{vO}, 8, v{vO}
    v_mov_b32 v{vR}, 0
    s_mov_b32 s{sT}, {WS_FLAG}
    s_mov_b64 exec, {hex((1 << per) - 1)}
    buffer_store_dword v{vR}, v{vO}, {WS}, s{sT} offen sc1
    s_mov_b64 exec, -1
    """)
    lds_wait(a, vS, sT, L_MCNT, thr=4)
    mod_final(W[0], vM, vO)
    a(f"""
    s_lshl_b32 s{sW1}, s{sK}, 2
    s_add_u32 s{sW1}, s{sW1}, {F_MOD}
    s_mov_b32 s{sW0}, 0xff
    s_branch {flag3}
    """)
    pv, pst = L('pv', 'pst')
    a(f"""
    {wpack}:
    s_lshr_b32 s{sJ}, s{sWG}, 1
    s_lshl_b32 s{sJ}, s{sJ}, 1
    s_add_u32 s{sJ}, s{sJ}, s{sWave}
    s_sub_u32 s{sJ}, s{sJ}, 5
    s_cmp_ge_u32 s{sJ}, 240
    s_cbranch_scc1 {xload}
    s_setprio 3
    s_mul_i32 s{sT}, s{sJ}, 1093
    s_lshr_b32 s{sT}, s{sT}, 16
    s_mul_i32 s{sT2}, s{sT}, 60
    s_sub_u32 s{sJ}, s{sJ}, s{sT2}
    s_and_b32 s{sL}, s{sWG}, 1
    s_lshl_b32 s{sL}, s{sL}, 2
    s_add_u32 s{sL}, s{sL}, s{sT}
    s_lshl_b32 s{sW1}, s{sL}, 6
    s_add_u32 s{sW1}, s{sW1}, s{sJ}
    s_lshl_b32 s{sW1}, s{sW1}, 2
    s_add_u32 s{sW1}, s{sW1}, {F_PK}
    s_mul_i32 s{sSeg}, s{sJ}, 3277
    s_lshr_b32 s{sSeg}, s{sSeg}, 16
    s_mul_i32 s{sT2}, s{sSeg}, 20
    s_sub_u32 s{sJ}, s{sJ}, s{sT2}
    s_mul_i32 s{sW0}, s{sJ}, {32*3840}
    s_mul_i32 s{sT2}, s{sSeg}, 1280
    s_add_u32 s{sW0}, s{sW0}, s{sT2}
    s_mul_i32 s{sT2}, s{sL}, 160
    s_add_u32 s{sW0}, s{sW0}, s{sT2}
    s_mul_i32 s{sDst}, s{sL}, 15
    s_mul_i32 s{sT2}, s{sSeg}, 5
    s_add_u32 s{sDst}, s{sDst}, s{sT2}
    s_mul_i32 s{sDst}, s{sDst}, 20
    s_add_u32 s{sDst}, s{sDst}, s{sJ}
    s_lshl_b32 s{sDst}, s{sDst}, 10
    s_add_u32 s{sDst}, s{sDst}, {WS_PQKV}
    s_sub_u32 s{sL}, s{sWave}, 5
    s_mul_i32 s{sL}, s{sL}, {PACK5_LDS}
    s_add_u32 s{sL}, s{sL}, {L_PSTAGE}
    """)
    srd(a, sQ, sQ, 640 * 3840)
    mk = Scr.mark(); Scr.release(vS + 4)
    vD, vDt = Scr(), Scr()
    pack5_addr(a, vD, vLane, 3840, vDt)
    pack5_load(a, vD, sQ, sW0, sL, sT, sT2, lambda sD, g, jh: a(f's_mov_b32 s{sD}, {(8*g + 4*jh) * 3840}'))
    a(f's_mov_b32 s{sRole}, 1\ns_mov_b32 s{sW0}, 1\ns_branch {xload}\n{pack2}:')
    a(f's_cmp_eq_u32 s{sSeg}, 2\ns_cbranch_scc1 {pv}')
    pack5_store(a, Scr, vLane, ws, sL, 'qk', sDst, 20480, st)
    a(f's_branch {pst}\n{pv}:')
    pack5_store(a, Scr, vLane, ws, sL, 'natural', sDst, 20480, st)
    a(f'{pst}:')
    a(f'{flag3}:')
    tr(8)
    a(f"""
    s_add_u32 s{sT}, s{sNonce}, 1
    v_mov_b32 v{vS+1}, s{sT}
    v_lshlrev_b32 v{vS}, 10, v{vLane}
    s_waitcnt vmcnt(0)
    s_mov_b32 exec_lo, s{sW0}
    s_mov_b32 exec_hi, 0
    buffer_store_dword v{vS+1}, v{vS}, {WS}, s{sW1} offen sc1
    s_mov_b64 exec, -1
    """)
    tr(3)
    a(f's_setprio 0\ns_mov_b32 s{sRole}, 3\ns_branch {xgo}')
    a(f'{wconst}:\ns_mov_b32 s{sRole}, 2\ns_branch {xload}\n{const2}:')
    one = Scr(4, 4); vK = Scr()
    for r in range(4): a(f'v_mov_b32 v{one+r}, 0x3f803f80')
    a(f"""
    v_lshrrev_b32 v{vK}, 1, v{vLane}
    v_lshlrev_b32 v{vK}, 6, v{vK}
    v_and_b32 v{vS+2}, 1, v{vLane}
    v_add_u32 v{vK}, v{vK}, v{vS+2}
    v_mul_u32_u24 v{vK}, {KVT}, v{vK}
    s_lshl_b32 s{sT}, s{sCb}, 8
    s_lshl_b32 s{sT2}, s{sRb}, 1
    s_add_u32 s{sT}, s{sT}, s{sT2}
    s_mul_i32 s{sT}, s{sT}, {KVT}
    s_add_u32 s{sT}, s{sT}, {WS_KV + KV_ONE}
    s_mov_b64 exec, 0xff
    buffer_store_dwordx4 {vr(one,4)}, v{vK}, {WS}, s{sT} offen sc1
    s_mov_b64 exec, -1
    """)
    npf = ctx['code_prefetch'](Scr, sP, sT)
    a(f"""
    s_waitcnt vmcnt({1 + npf})
    s_branch {stats_}
    {xload}:
    """)
    if not opt.get('noba'): a('s_barrier')
    tr(11)
    a(f"""
    s_cmp_eq_u32 s{sRole}, 0
    s_cbranch_scc1 {mod2}
    s_cmp_eq_u32 s{sRole}, 1
    s_cbranch_scc1 {pack2}
    {xgo}:
    """)
    tr(12)
    ldX_all()
    addr_setup()
    if 'early' in ctx: ctx['early']()
    tr(13)
    a(f"""
    s_cmp_eq_u32 s{sRole}, 2
    s_cbranch_scc1 {const2}
    s_waitcnt vmcnt(0)
    {stats_}:
    """)
    tr(10)
    if MP:
        a(f's_cmp_lg_u32 s{sRole}, 4\ns_cbranch_scc1 {late2}')
        mod_addr(); mod_loads()
        a(f'{late2}:')
    x_stats()
    a(f"""
    {b1}:
    s_waitcnt lgkmcnt(0)
    s_barrier
    """)
    tr(4)
    a(f's_cmp_lg_u32 s{sWave}, 4\ns_cbranch_scc1 {b2}')
    sp = XF + 20
    a(f'v_mul_u32_u24 v{vM}, 80, v{vLane}\nv_add_u32 v{vM}, {L_SPART}, v{vM}')
    for i in range(5): a(f'ds_read_b128 {vr(sp+4*i,4)}, v{vM} offset:{16*i}')
    a(f'v_lshlrev_b32 v{vM}, 3, v{vLane}\nv_add_u32 v{vM}, {L_STAT}, v{vM}\ns_waitcnt lgkmcnt(0)')
    for i in range(1, 10): a(f'v_add_f32 v{sp}, v{sp}, v{sp+2*i}\nv_add_f32 v{sp+1}, v{sp+1}, v{sp+2*i+1}')
    a(f"""
    v_mul_f32 v{sp+2}, {hex(f2u(1/640))}, v{sp}
    v_mul_f32 v{sp+1}, {hex(f2u(1/640))}, v{sp+1}
    v_fma_f32 v{sp+1}, -v{sp+2}, v{sp+2}, v{sp+1}
    v_max_f32 v{sp+1}, 0, v{sp+1}
    v_add_f32 v{sp+1}, {hex(f2u(1e-5))}, v{sp+1}
    v_rsq_f32 v{sp}, v{sp+1}
    s_nop 0
    v_mul_f32_e64 v{sp+1}, -v{sp+2}, v{sp}
    ds_write_b64 v{vM}, {vr(sp,2)}
    {b2}:
    s_waitcnt lgkmcnt(0)
    s_barrier
    s_add_u32 s{sNonce}, s{sNonce}, 1
    """)
    tr(5)
    a(f"""
    s_lshl_b32 s{sT2}, s{sWave}, 2
    s_lshr_b32 s{sW0}, 0xeca47520, s{sT2}
    s_and_b32 s{sW0}, s{sW0}, 15
    s_lshr_b32 s{sW1}, 0xedb98631, s{sT2}
    s_and_b32 s{sW1}, s{sW1}, 15
    s_mul_i32 s{sT2}, s{sCb}, 15
    s_add_u32 s{sW0}, s{sW0}, s{sT2}
    s_add_u32 s{sW1}, s{sW1}, s{sT2}
    s_mul_i32 s{sW0}, s{sW0}, 20480
    s_mul_i32 s{sW1}, s{sW1}, 20480
    s_add_u32 s{sW0}, s{sW0}, {WS_PQKV}
    s_add_u32 s{sW1}, s{sW1}, {WS_PQKV}
    s_cmp_eq_u32 s{sWave}, 7
    s_cselect_b32 s{sW1}, 0x40000000, s{sW1}
    """)
    vm = Cnt(a, 'vmcnt', 63)
    def ldW(s_):
        vm.issue(('W', s_), f'buffer_load_dwordx4 {vr(WF+8*(s_%NW),4)}, v{vL16}, {WS}, s{sW0} offen offset:{1024*(s_&3)} {ld}')
        vm.issue(('W', s_), f'buffer_load_dwordx4 {vr(WF+8*(s_%NW)+4,4)}, v{vL16}, {WS}, s{sW1} offen offset:{1024*(s_&3)} {ld}')
        if s_ & 3 == 3 and s_ < 19: a(f's_add_u32 s{sW0}, s{sW0}, 4096\ns_add_u32 s{sW1}, s{sW1}, 4096')
    NPRE = opt.get('npre', 6 if MP else 8); NP0 = opt.get('np0', 4)
    w7, b3 = a.label('p0_w7'), a.label('p0_b3')
    tr(14)
    a(f's_cmp_eq_u32 s{sWave}, 7\ns_cbranch_scc1 {w7}')
    lds_wait(a, PR, sT, L_GO)
    a(f's_branch {b3}\n{w7}:')
    F = PR
    lp, out = a.label('p0_fp'), a.label('p0_fpo')
    a(f"""
    v_lshlrev_b32 v{vPa}, 2, v{vLane}
    v_min_u32 v{vPb}, 15, v{vLane}
    v_lshlrev_b32 v{vPb}, 2, v{vPb}
    v_min_u32 v{vXa}, 59, v{vLane}
    v_lshlrev_b32 v{vXa}, 2, v{vXa}
    s_and_b32 s{sT}, s{sWG}, 7
    s_lshl_b32 s{sT}, s{sT}, 10
    s_add_u32 s{sT}, s{sT}, {F_MOD}
    s_lshl_b32 s{sT2}, s{sCb}, 8
    s_add_u32 s{sT2}, s{sT2}, {F_PK}
    s_mov_b32 s{sJ}, {SPIN}
    {lp}:
    buffer_load_dword v{F}, v{vPa}, {WS}, s{sT} offen sc1
    buffer_load_dword v{F+1}, v{vPb}, {WS}, s{sT} offen offset:256 sc1
    buffer_load_dword v{F+2}, v{vXa}, {WS}, s{sT2} offen sc1
    s_sub_u32 s{sJ}, s{sJ}, 1
    s_cbranch_scc1 {out}
    s_waitcnt vmcnt(0)
    v_xor_b32 v{F}, s{sNonce}, v{F}
    v_xor_b32 v{F+1}, s{sNonce}, v{F+1}
    v_xor_b32 v{F+2}, s{sNonce}, v{F+2}
    v_or3_b32 v{F}, v{F}, v{F+1}, v{F+2}
    v_cmp_ne_u32 vcc, 0, v{F}
    s_nop 0
    s_cbranch_vccnz {lp}
    {out}:
    s_waitcnt vmcnt(0)
    v_mov_b32 v{F}, {L_GO}
    v_mov_b32 v{F+1}, 1
    ds_write_b32 v{F}, v{F+1}
    {b3}:
    """)
    tr(6)
    nt_ = a.label('p0_notab')
    TP = WF + 8 * NP0
    a(f's_cmp_ge_u32 s{sWave}, 5\ns_cselect_b32 s{sT}, 0x40000000, {WS_MODP}\ns_lshl_b32 s{sT2}, s{sWave}, 10\ns_add_u32 s{sT}, s{sT}, s{sT2}')
    for i in range(4):
        a(f'buffer_load_dwordx4 {vr(TP+4*i,4)}, v{vL16}, {WS}, s{sT} offen {ld}')
        if i < 3: a(f's_add_u32 s{sT}, s{sT}, {MODQ}')
    for s_ in range(NP0): ldW(s_)
    def rdS(n):
        a(f'ds_read_b64 {vr(PR+2*(n%3),2)}, v{vSa if n < 8 else vSb} offset:{64*(n&7)}')
    rdS(0); rdS(1)
    for n in range(10):
        pr = PR + 2 * (n % 3)
        for r in range(4):
            a(f'v_lshlrev_b32 v{XF+8*n+2*r}, 16, v{X+4*n+r}\nv_and_b32 v{XF+8*n+2*r+1}, 0xffff0000, v{X+4*n+r}')
        a(f's_waitcnt lgkmcnt({1 if n < 9 else 0})')
        for r in range(4):
            a(f'v_pk_fma_f32 {vr(XF+8*n+2*r,2)}, {vr(XF+8*n+2*r,2)}, {vr(pr,2)}, {vr(pr,2)} op_sel:[0,0,1] op_sel_hi:[1,0,1]')
        if n < 8: rdS(n + 2)
    a(f'''
    s_add_u32 s{sT2}, s{sT2}, {L_TAB}
    v_add_u32 v{PR}, s{sT2}, v{vL16}
    s_cmp_ge_u32 s{sWave}, 5
    s_cbranch_scc1 {nt_}
    s_waitcnt vmcnt({2*NP0})
    ''')
    for r in range(4): a(f'v_add_f32 v{TP+r}, v{TP+r}, v{TP+4+r}\nv_add_f32 v{TP+8+r}, v{TP+8+r}, v{TP+12+r}')
    for r in range(4): a(f'v_add_f32 v{TP+r}, v{TP+r}, v{TP+8+r}')
    a(f'ds_write_b128 v{PR}, {vr(TP,4)}\n{nt_}:\ns_waitcnt vmcnt({2*NP0}) lgkmcnt(0)\ns_barrier')
    stamp()
    tr(7)
    for b, ad in ((0, vX1), (1, vH2)):
        for h in range(2):
            a(f'ds_read_b128 {vr(CB[b]+4*h,4)}, v{ad} offset:{2560 + 16*h}')
            a(f'ds_read_b128 {vr(CB[b]+8+4*h,4)}, v{ad} offset:{16*h}')
    for n in range(10):
        c = CB[n >> 3]
        if n == 0: a('s_waitcnt lgkmcnt(4)')
        if n == 8: a('s_waitcnt lgkmcnt(8)')
        if NP0 + n < NPRE: ldW(NP0 + n)
        for r in range(4):
            a(f'v_pk_fma_f32 {vr(XF+8*n+2*r,2)}, {vr(XF+8*n+2*r,2)}, {vr(c+2*r,2)}, {vr(c+8+2*r,2)}')
        for r in range(4):
            a(f'v_cvt_pk_bf16_f32 v{XF+8*n+r}, v{XF+8*n+2*r}, v{XF+8*n+2*r+1}')
        if n == 8: a(f'v_mov_b32 v{vH1}, v{vT3}\nv_xor_b32 v{vH0}, 128, v{vT3}')
        a(f'ds_write_b128 v{vH0 if n & 1 else vH1}, {vr(XF+8*n,4)} offset:{1024*((n&7)>>1)}')
    V.release(m2)
    ACT = [V(16, 4), V(16, 4), V(16, 4)]; ACC = V(32, 4)
    lI, lG = V(), V()
    a(f'''
    v_and_b32 v{lI}, 15, v{vLane}
    v_lshrrev_b32 v{lG}, 4, v{vLane}
    v_xor_b32 v{vH0}, v{lI}, v{lG}
    v_lshlrev_b32 v{vH0}, 4, v{vH0}
    v_lshl_add_u32 v{vH0}, v{lG}, 8, v{vH0}
    v_xor_b32 v{vH1}, {12*16}, v{vH0}
    s_waitcnt lgkmcnt(0)
    s_barrier
    ''')
    stamp()
    if MP:
        assert NPRE <= 6
        nl = a.label('p0_nolate')
        a(f's_cmp_lg_u32 s{sRole}, 4\ns_cbranch_scc1 {nl}')
        mod_partial(len(vm.q), ACC, vT3)
        a(f'{nl}:')
    q0 = list(vm.q)
    lv, lv1, fin = [a.label(x) for x in ('qkv_v', 'qkv_v1', 'qkv_fin')]
    def loop(swap, nt):
        def rd(s_):
            vh = vH1 if s_ & 1 else vH0
            return [f'ds_read_b128 {vr(ACT[s_%3]+4*tt,4)}, v{vh} offset:{(s_&15)*4096 + tt*1024}' for tt in range(4)]
        a('\n'.join(rd(0) + rd(1)))
        vm.q = list(q0)
        for s_ in range(20):
            if opt.get('ladder', 1) and s_ % 5 == 0: a(f's_setprio {3 - s_ // 5}')
            n_ = vm.need(('W', s_))
            a(f's_waitcnt {"" if n_ is None else f"vmcnt({n_})"} lgkmcnt({4 if s_ < 19 else 0})')
            if s_ == 14: a(f'v_add_u32 v{vH0}, 65536, v{vH0}')
            if s_ == 15: a(f'v_add_u32 v{vH1}, 65536, v{vH1}')
            R_ = rd(s_ + 2) if s_ < 18 else []
            for tt in range(4):
                for t in range(nt):
                    A_, B_ = vr(WF + 8*(s_%NW) + 4*t, 4), vr(ACT[s_%3] + 4*tt, 4)
                    if swap: A_, B_ = B_, A_
                    c = vr(ACC + 16*t + 4*tt, 4)
                    a(f'v_mfma_f32_16x16x32_bf16 {c}, {A_}, {B_}, {c if s_ else 0}')
                    if t == 0 and R_: a(R_[tt])
                    if t == nt - 1 and tt == 1 and s_ + NPRE < 20: ldW(s_ + NPRE)
        a('s_nop 6')
        if 'stamp' in ctx: stamp.at(3)
    a(f's_cmp_ge_u32 s{sWave}, 5\ns_cbranch_scc1 {lv}')
    loop(False, 2)
    lk, lleft = a.label('qkv_st_k'), a.label('qkv_st_left')
    a(f'''
    v_bfe_u32 v{vT2}, v{lI}, 2, 2
    v_and_b32 v{vT3}, 3, v{lI}
    v_lshl_add_u32 v{vT2}, v{vT2}, 3, v{vT3}
    s_lshl_b32 s{sT}, s{sCb}, 8
    s_lshl_b32 s{sT2}, s{sRb}, 1
    s_add_u32 s{sT}, s{sT}, s{sT2}
    s_cmp_eq_u32 s{sWave}, 4
    s_cbranch_scc1 {lleft}
    s_and_b32 s{sT2}, s{sWave}, 1
    s_lshl_b32 s{sT2}, s{sT2}, 7
    s_add_u32 s{sT}, s{sT}, s{sT2}
    v_lshrrev_b32 v{vT}, 1, v{lG}
    v_and_b32 v{vT3}, 1, v{lG}
    s_cmp_ge_u32 s{sWave}, 2
    s_cbranch_scc1 {lk}
    s_mul_i32 s{sT}, s{sT}, {QT}
    s_add_u32 s{sT}, s{sT}, {WS_Q}
    v_mul_u32_u24 v{vT}, {64*QT}, v{vT}
    v_lshl_add_u32 v{vT}, v{vT3}, 9, v{vT}
    v_lshl_add_u32 v{vT}, v{lI}, 4, v{vT}
    s_mov_b32 s{sT2}, {hex(f2u(QSCALE))}
    ''')
    for r in range(32): a(f'v_mul_f32 v{ACC+r}, s{sT2}, v{ACC+r}')
    def st_main(stride, tokoff):
        for tt in range(4):
            d = ACT[0] + 4 * tt
            for t in range(2):
                for r in range(2): a(f'v_cvt_pk_bf16_f32 v{d+2*t+r}, v{ACC+16*t+4*tt+2*r}, v{ACC+16*t+4*tt+2*r+1}')
            a(f'buffer_store_dwordx4 {vr(d,4)}, v{vT}, {WS}, s{sT} offen offset:{(tt>>1)*stride + (tt&1)*tokoff} {st}')
    st_main(QT, 256)
    a(f'''
    s_branch {fin}
    {lk}:
    s_mul_i32 s{sT}, s{sT}, {KVT}
    s_add_u32 s{sT}, s{sT}, {WS_KV + KV_K1}
    v_mul_u32_u24 v{vT}, {64*KVT}, v{vT}
    v_lshl_add_u32 v{vT}, v{vT3}, 9, v{vT}
    v_lshl_add_u32 v{vT}, v{vT2}, 4, v{vT}
    ''')
    st_main(KVT, 64)
    a(f'''
    s_branch {fin}
    {lleft}:
    s_mul_i32 s{sL}, s{sT}, {KVT}
    s_add_u32 s{sL}, s{sL}, {WS_KV + KV_K2}
    s_mul_i32 s{sT}, s{sT}, {QT}
    s_add_u32 s{sT}, s{sT}, {WS_Q + 1024}
    v_mul_u32_u24 v{vT}, {64*QT}, v{lG}
    v_lshl_add_u32 v{vT}, v{lI}, 3, v{vT}
    v_mul_u32_u24 v{vT3}, {64*KVT}, v{lG}
    v_lshl_add_u32 v{vT3}, v{vT2}, 3, v{vT3}
    s_mov_b32 s{sT2}, {hex(f2u(QSCALE))}
    ''')
    for r in range(16): a(f'v_mul_f32 v{ACC+r}, s{sT2}, v{ACC+r}')
    for tt in range(4):
        d = ACT[0] + 4 * tt
        for t in range(2):
            for r in range(2): a(f'v_cvt_pk_bf16_f32 v{d+2*t+r}, v{ACC+16*t+4*tt+2*r}, v{ACC+16*t+4*tt+2*r+1}')
        a(f'buffer_store_dwordx2 {vr(d,2)}, v{vT}, {WS}, s{sT} offen offset:{(tt>>1)*QT + (tt&1)*128} {st}')
        a(f'buffer_store_dwordx2 {vr(d+2,2)}, v{vT3}, {WS}, s{sL} offen offset:{(tt>>1)*KVT + (tt&1)*32} {st}')
    a(f's_branch {fin}')
    def st_v(nt):
        a(f'''
        s_lshl_b32 s{sT}, s{sCb}, 8
        s_lshl_b32 s{sT2}, s{sRb}, 1
        s_add_u32 s{sT}, s{sT}, s{sT2}
        s_mul_i32 s{sT}, s{sT}, {KVT}
        s_add_u32 s{sT}, s{sT}, {WS_KV + KV_V}
        s_sub_u32 s{sT2}, s{sWave}, 5
        s_lshl_b32 s{sT2}, s{sT2}, 5
        ''')
        for t in range(nt):
            a(f'v_add_u32 v{vT2}, s{sT2}, v{lI}')
            if t: a(f'v_add_u32 v{vT2}, 16, v{vT2}')
            udiv(a, vT3, vT2, 20, 128)
            a(f'''
            v_mul_u32_u24 v{vT}, {64*KVT - 320}, v{vT3}
            v_lshl_add_u32 v{vT}, v{vT2}, 4, v{vT}
            v_mul_u32_u24 v{vT3}, 320, v{lG}
            v_add_u32 v{vT}, v{vT}, v{vT3}
            ''')
            for kt in range(2):
                d = ACT[0] + 8 * t + 4 * kt
                for h in range(2):
                    for r in range(2): a(f'v_cvt_pk_bf16_f32 v{d+2*h+r}, v{ACC+16*t+4*(2*kt+h)+2*r}, v{ACC+16*t+4*(2*kt+h)+2*r+1}')
                a(f'buffer_store_dwordx4 {vr(d,4)}, v{vT}, {WS}, s{sT} offen offset:{kt*KVT} {st}')
    a(f'''
    {lv}:
    s_cmp_eq_u32 s{sWave}, 7
    s_cbranch_scc1 {lv1}
    ''')
    loop(True, 2); st_v(2)
    a(f's_branch {fin}\n{lv1}:')
    loop(True, 1); st_v(1)
    a(f'{fin}:')
    def deferred(gate):
        nf, nob = a.label('qkv_nofin'), a.label('qkv_nob')
        a(f"""
        s_cmp_lt_u32 s{sK}, 80
        s_cbranch_scc1 {nf}
        s_cmp_ge_u32 s{sK}, 240
        s_cbranch_scc1 {nf}
        """)
        if MP: a(f's_cmp_lg_u32 s{sWave}, 4\ns_cbranch_scc1 {nf}')
        else:
            a(f"""
            s_load_dwordx4 s[{sP}:{sP+3}], s[0:1], {ARG_C}
            s_sub_u32 s{sW0}, s{sWave}, 4
            s_waitcnt lgkmcnt(0)
            s_mov_b32 s{sQ}, s{sP+2}
            s_mov_b32 s{sQ+1}, s{sP+3}
            """)
            srd(a, sQ, sQ, 640 * 7680); srd(a, sP, sP, 1280)
            mod_addr(sW0)
            gate(vS, sT2, sT)
            mod_loads()
            mod_partial(0, acc0, vM0, sW0)
            a(f"""
            s_mov_b64 exec, 1
            v_mov_b32 v{vS}, {L_MCNT}
            v_mov_b32 v{vS+1}, 1
            s_waitcnt lgkmcnt(0)
            ds_add_u32 v{vS}, v{vS+1}
            s_mov_b64 exec, -1
            s_cmp_lg_u32 s{sWave}, 4
            s_cbranch_scc1 {nf}
            """)
            lds_wait(a, vS, sT, L_MCNT, thr=4, sleep=2)
        acc, vM, vR = WF + 4, WF + 20, WF + 21
        mod_final(acc, vM, vR)
        a(f"""
        s_lshl_b32 s{ctx['sSig']}, s{sK}, 2
        s_add_u32 s{ctx['sSig']}, s{ctx['sSig']}, {F_MOD}
        s_sub_u32 s{sJ}, s{sT2}, 30
        s_cmp_ge_u32 s{sJ}, 20
        s_cbranch_scc1 {nob}
        s_cmp_ge_u32 s{sJ}, 10
        s_cselect_b32 s{sL}, 10, 0
        s_cselect_b32 s{sSeg}, 0, 128
        s_sub_u32 s{sJ}, s{sJ}, s{sL}
        s_lshl_b32 s{sJ}, s{sJ}, 11
        s_add_u32 s{sJ}, s{sJ}, s{sSeg}
        s_lshl_b32 s{sT}, s{sT}, 5
        s_add_u32 s{sJ}, s{sJ}, s{sT}
        s_add_u32 s{sJ}, s{sJ}, {WS_MODB}
        v_cvt_pk_bf16_f32 v{acc+1}, v{acc}, v{acc}
        v_lshrrev_b32 v{vM}, 3, v{vLane}
        v_and_b32 v{vR}, 7, v{vLane}
        v_and_b32 v{acc+2}, 0xffff0000, v{acc+1}
        v_lshlrev_b32 v{vM}, 8, v{vM}
        v_sub_f32 v{acc+2}, v{acc}, v{acc+2}
        v_lshl_add_u32 v{vM}, v{vR}, 1, v{vM}
        v_cvt_pk_bf16_f32 v{acc+2}, v{acc+2}, v{acc+2}
        buffer_store_short v{acc+1}, v{vM}, {WS}, s{sJ} offen sc1
        buffer_store_short v{acc+2}, v{vM}, {WS}, s{sJ} offen offset:16 sc1
        {nob}:
        s_mov_b64 exec, 0xff
        v_lshlrev_b32 v{vM}, 10, v{vLane}
        v_mov_b32 v{vR}, s{sNonce}
        s_waitcnt vmcnt(0)
        buffer_store_dword v{vR}, v{vM}, {WS}, s{ctx['sSig']} offen sc1
        s_mov_b64 exec, -1
        {nf}:
        """)
    ctx['deferred'].append(deferred)
    V.release(mv); Sg.release(ms)
```

```python
from asm import *
from layout import *
NSH, NREP = 8, 8
GRPB = NSH * NREP * 256
C_QKV, C_ATT, C_OP, C_GU = [WS_FLAG + i * 8 * GRPB for i in range(4)]
C_PO = WS_FLAG + 32 * GRPB
C_PD = C_PO + 8 * 256
C_PG = C_PD + 8 * 256
C_PW = C_PG + 32 * 256
C_END = C_PW + 32 * 256
N_CNT = (C_END - WS_FLAG) // 256
F_MOD = C_END
F_PK = F_MOD + 8192
assert F_PK + 2048 <= WS_U
import os
SPIN = int(os.environ.get('SPIN', 1 << 20))

def signal(a, ctx, sOff, vT, rep=1):
    a(f'''
    s_mov_b64 exec, {(1 << rep) - 1}
    v_mul_u32_u24 v{vT}, {NSH * 256}, v{ctx['vLane']}
    v_mov_b32 v{vT+1}, 1
    buffer_atomic_add v{vT+1}, v{vT}, {sr(ctx['sWS'],4)}, s{sOff} offen sc1
    s_mov_b64 exec, -1
    ''')

def poll(a, ctx, sOff, nsh, expect, vT, sCnt, last=None, sleep=0, extra=None):
    lp, out = a.label('poll'), a.label('poll_out')
    a(f'''
    s_mov_b64 exec, {(1 << (nsh + (1 if extra else 0))) - 1}
    v_lshlrev_b32 v{vT}, 8, v{ctx['vLane']}
    v_mov_b32 v{vT+1}, {expect}
    s_mov_b32 s{sCnt}, {SPIN}
    ''')
    if last is not None: a(f'v_writelane_b32 v{vT+1}, {last}, {nsh-1}')
    if extra:
        a(f's_sub_u32 s{extra[0]}, s{extra[0]}, s{sOff}\nv_writelane_b32 v{vT}, s{extra[0]}, {nsh}\nv_writelane_b32 v{vT+1}, {extra[1]}, {nsh}')
    depth = ctx.get('polldepth', 1) if not sleep else 1
    ld = lambda r: f"buffer_load_dword v{r}, v{vT}, {sr(ctx['sWS'],4)}, s{sOff} offen sc1"
    if depth == 1:
        a(f'''
        {lp}:
        {ld(vT+2)}
        s_sub_u32 s{sCnt}, s{sCnt}, 1
        s_cbranch_scc1 {out}
        s_waitcnt vmcnt(0)
        v_cmp_gt_u32 vcc, v{vT+1}, v{vT+2}
        {f's_sleep {sleep}' if sleep else 's_nop 0'}
        s_cbranch_vccnz {lp}
        ''')
    else:
        gap = ctx.get('pollgap', 4)
        a(f'''
        {ld(vT+2)}
        s_sleep {gap}
        {lp}:
        {ld(vT+3)}
        s_waitcnt vmcnt(1)
        v_cmp_gt_u32 vcc, v{vT+1}, v{vT+2}
        s_sub_u32 s{sCnt}, s{sCnt}, 1
        s_cbranch_vccz {out}
        s_cbranch_scc1 {out}
        {ld(vT+2)}
        s_waitcnt vmcnt(1)
        v_cmp_gt_u32 vcc, v{vT+1}, v{vT+3}
        s_nop 0
        s_cbranch_vccnz {lp}
        ''')
    a(f'''
    {out}:
    {'s_waitcnt vmcnt(0)' if depth == 1 else ''}
    s_mov_b64 exec, -1
    ''')

def cnt_sig(a, sD, base, sGrp, sSh, sT):
    a(f's_mul_i32 s{sD}, s{sGrp}, {GRPB}\ns_and_b32 s{sT}, s{sSh}, {NSH-1}\ns_lshl_b32 s{sT}, s{sT}, 8\ns_add_u32 s{sD}, s{sD}, s{sT}\ns_add_u32 s{sD}, s{sD}, {base}')
def cnt_poll(a, sD, base, sGrp, sT):
    a(f's_mul_i32 s{sD}, s{sGrp}, {GRPB}\ns_bfe_u32 s{sT}, s2, 0x30003\ns_mul_i32 s{sT}, s{sT}, {NSH*256}\ns_add_u32 s{sD}, s{sD}, s{sT}\ns_add_u32 s{sD}, s{sD}, {base}')
```

```python
from build import *
from attn import *
from qkv import *
from helpers import *
from proj import *
from gateup import *
from sync import *

L_STAGE = 106496
L_PART = L_STAGE + ATTN_LDS
L_WORD = L_PART + HLP_P
MEGA_LDS = 163840

def k_main(opt, code_bytes):
    k = Kernel(NAME + '_kernel', 256, 512, MEGA_LDS)
    a, V, Sg = k.a, k.V, k.S
    ctx = prologue(k, 256)
    ctx['sX'], ctx['sOut'], ctx['sSig'], ctx['sNonce'] = Sg(4), Sg(4), Sg(), Sg()
    sWave = ctx['sWave']
    a(f's_load_dwordx2 {sr(ctx["sX"],2)}, s[0:1], {ARG_X}\ns_load_dwordx2 {sr(ctx["sOut"],2)}, s[0:1], {ARG_OUT}')
    srd(a, ctx['sOut'], ctx['sOut'], S * 1280)
    ctx['st_flags'] = 'sc1'
    if 'dbg' in opt: ctx['stamp_dbg'] = opt['dbg']; ctx['dbg_cyc'] = opt.get('cyc', 0)
    ctx['warm'] = opt.get('warm', 0)
    ctx['hthr'] = opt.get('hthr', 4)
    for x in opt:
        if x.startswith('x_') or x in ('hprio', 'polldepth', 'pollgap'): ctx[x] = opt[x]
    ctx['ld_flags'] = 'sc1' if opt.get('sc1ld') else ''
    if opt.get('stamp'): ctx['stamp'] = Stamps(k, ctx, 1, 16); ctx['stamp']()
    stamp = ctx.get('stamp', lambda: None)
    if opt.get('trace'):
        tr = Stamps(k, ctx, 1, 16); tr()
        ctx['trace_phase'] = opt['trace']
        ctx['tr'] = lambda ph, i=None: (tr() if i is None else tr.at(i)) if ph == opt['trace'] and (i is not None or tr.i < 15) else None
    else: ctx['tr'] = lambda ph, i=None: None
    def code_prefetch(R, s, sT):
        if opt.get('nopf'): return 0
        per = -(-code_bytes // (32 * 1024))
        v = R(); d = R(4, 4)
        a(f'''
        s_getpc_b64 s[{s}:{s+1}]
        L_pc:
        s_sub_u32 s{s}, s{s}, L_pc-{k.name}
        s_subb_u32 s{s+1}, s{s+1}, 0
        s_lshr_b32 s{sT}, s2, 3
        s_mul_i32 s{sT}, s{sT}, {per*1024}
        v_lshlrev_b32 v{v}, 4, v{ctx['vLane']}
        v_add_u32 v{v}, s{sT}, v{v}
        v_min_u32 v{v}, {code_bytes - (per-1)*1024 - 16}, v{v}
        ''')
        for i in range(per): a(f'global_load_dwordx4 {vr(d,4)}, v{v}, s[{s}:{s+1}] offset:{1024*i}')
        return per
    ctx['code_prefetch'] = code_prefetch
    m, ms = V.mark(), Sg.mark()
    vS = V(4, 2); sT, sT2, sT3 = Sg(), Sg(), Sg()
    hl, nw0, go, p3 = a.label('helpers'), a.label('m_nw0'), a.label('m_go'), a.label('m_p3')
    mA = V.mark()
    H = Helpers(a, V, Sg, ctx, L_PART, L_COEF)
    mt = (V.mark(), Sg.mark())
    tv, ts = V(), Sg(11, 4)
    def early():
        H.setup(tv, ts)
    later = []
    gen_qkv(a, V, Sg, dict(ctx, early=early, deferred=later), opt)
    V.release(mt[0]); Sg.release(mt[1])
    a(f'''
    v_mov_b32 v{vS}, {L_WORD}
    v_mov_b32 v{vS+1}, 0
    ds_write_b32 v{vS}, v{vS+1}
    s_waitcnt vmcnt(0) lgkmcnt(0)
    s_barrier
    ''')
    if 'stamp' in ctx: stamp.at(4)
    a(f's_cmp_ge_u32 s{sWave}, 4\ns_cbranch_scc1 {hl}')
    def wait_qkv():
        a(f's_cmp_lg_u32 s{sWave}, 0\ns_cbranch_scc1 {nw0}')
        qkv_ids(a, 2, sT2, sT, sT3)
        cnt_sig(a, sT, C_QKV, sT, sT2, sT3)
        signal(a, ctx, sT, vS, NREP)
        a(f's_and_b32 s{sT}, s2, 7')
        cnt_poll(a, sT, C_QKV, sT, sT2)
        poll(a, ctx, sT, NSH, 4, vS, sT2)
        a(f'''
        v_mov_b32 v{vS}, {L_WORD}
        v_mov_b32 v{vS+1}, 1
        ds_write_b32 v{vS}, v{vS+1}
        s_branch {go}
        {nw0}:
        ''')
        lds_spin(vS, sT2)
        a(f'{go}:\ns_waitcnt lgkmcnt(0)')
    def lds_spin(v, s, thr='1', sleep=1):
        lp, out = a.label('m_spin'), a.label('m_spin_out')
        a(f'''
        v_mov_b32 v{v}, {L_WORD}
        s_mov_b32 s{s}, {SPIN * 8}
        {lp}:
        ds_read_b32 v{v+1}, v{v}
        s_sub_u32 s{s}, s{s}, 1
        s_cbranch_scc1 {out}
        s_waitcnt lgkmcnt(0)
        v_cmp_gt_u32 vcc, {thr}, v{v+1}
        s_sleep {sleep}
        s_cbranch_vccnz {lp}
        {out}:
        s_waitcnt lgkmcnt(0)
        ''')
    def helper_gate(v, s, sThr, sHw, job):
        base, per, perw = {'L': (opt.get('gL', 2), opt.get('gLp', 5), opt.get('gLw', 1)), 'B': (0, 0, 0), 'W': (opt.get('gW', 16), opt.get('gWp', 1), opt.get('gWw', 1))}[job]
        if base == 0: return
        if job == 'L':
            a(f's_lshl_b32 s{sThr}, s{sHw}, 2\ns_lshr_b32 s{sThr}, 0x3102, s{sThr}\ns_and_b32 s{sThr}, s{sThr}, 3\ns_mul_i32 s{sThr}, s{sThr}, {per}')
        else: a(f's_mul_i32 s{sThr}, s{sHw}, {per}')
        a(f's_bfe_u32 s{s}, s2, 0x20003\ns_mul_i32 s{s}, s{s}, {perw}\ns_add_u32 s{sThr}, s{sThr}, s{s}\ns_add_u32 s{sThr}, s{sThr}, {base}')
        lds_spin(v, s, f's{sThr}', 4)
    mh = V.mark(); V.release(mA)
    vP = V(2)
    a(f'v_mov_b32 v{vP}, {L_WORD}\nv_mov_b32 v{vP+1}, 0\ns_cmp_eq_u32 s{sWave}, 0\ns_cselect_b32 s{sT}, 1, 0\nv_writelane_b32 v{vP+1}, s{sT}, 0')
    c2 = dict(ctx, wait_inputs=wait_qkv, lds_base=L_STAGE, progress=vP)
    if 'stamp' in ctx: stamp.i = 5
    cold = gen_attn(a, V, Sg, c2, opt)
    V.release(mh)
    a(f's_branch {p3}\n{hl}:')
    a('s_setprio 2')
    def gateM(v, s, sThr):
        a(f's_bfe_u32 s{sThr}, s2, 0x30003\ns_mul_i32 s{sThr}, s{sThr}, {opt.get("gMw", 0)}\ns_add_u32 s{sThr}, s{sThr}, {opt.get("gM", 1)}')
        lds_spin(v, s, f's{sThr}', 4)
    later[0](gateM)
    if opt.get('nohelp'): a(f's_barrier\ns_branch {p3}')
    after = H.rest(helper_gate)
    a('s_barrier')
    after()
    a(f'{p3}:\ns_waitcnt vmcnt(0)\ns_barrier')
    if 'stamp' in ctx: stamp.at(8)
    ns = a.label('m_nosig')
    a(f'''
    s_cmp_lg_u32 s{sWave}, 0
    s_cbranch_scc1 {ns}
    s_lshr_b32 s{sT}, s2, 5
    ''')
    cnt_sig(a, sT, C_ATT, sT, 2, sT2)
    signal(a, ctx, sT, vS, NREP)
    a(f'{ns}:')
    def epoch(v):
        sk = a.label('m_noepoch')
        a(f'''
        s_cmp_lg_u32 s2, 0
        s_cbranch_scc1 {sk}
        s_mov_b64 exec, 1
        v_mov_b32 v{v}, {WS_EPOCH}
        v_mov_b32 v{v+1}, s{ctx['sNonce']}
        buffer_store_dword v{v+1}, v{v}, {sr(ctx['sWS'],4)}, 0 offen sc1
        s_mov_b64 exec, -1
        {sk}:
        ''')
    ctx['epoch'] = epoch
    V.release(m); Sg.release(ms)
    RES, GB = V(12, 4), V(12, 4)
    def gu_base(sB, sT, sT2):
        gu_ids(a, 2, sT, sB, sT2)
        a(f's_cmp_ge_u32 s{sB}, 31\ns_mul_i32 s{sB}, s{sB}, {140*1024}\ns_cselect_b32 s{sT}, 0x40000000, {WS_PGU}\ns_add_u32 s{sB}, s{sB}, s{sT}')
    def d_base(sB, sT, sT2):
        qkv_ids(a, 2, sT, sB, sT2)
        a(f's_mul_i32 s{sB}, s{sB}, {54*5120}\ns_add_u32 s{sB}, s{sB}, {WS_PWD}')
    ctx['gu_prefetch'] = Prefetch(a, V, Sg, ctx, GU_BASE, gu_base)
    ctx['d_prefetch'] = Prefetch(a, V, Sg, ctx, 0, d_base)
    gen_proj(a, V, Sg, ctx, 'o', RES, GB, opt)
    gen_gateup(a, V, Sg, ctx, opt)
    if 'stamp' in ctx: stamp.i = 14
    c5 = dict(ctx)
    if 'stamp' in ctx:
        n = [0]
        def st5():
            n[0] += 1
            if n[0] == 1: stamp()
        c5['stamp'] = st5
    gen_proj(a, V, Sg, c5, 'd', RES, GB, opt)
    if 'stamp' in ctx: stamp.flush()
    if opt.get('trace'): tr.i = 15; tr.flush()
    a('s_endpgm'); cold()
    epilogue(k, ctx); return k

def code_size(main):
    import subprocess, os
    open('sz.s', 'w').write('.amdgcn_target "amdgcn-amd-amdhsa--gfx950"\n.text\n' + main.name + ':\n' + main.a.text() + 's_endpgm\n')
    subprocess.run(['clang', '-x', 'assembler', '-target', 'amdgcn-amd-amdhsa', '-mcpu=gfx950', '-c', 'sz.s', '-o', 'sz.o'], check=True)
    subprocess.run(['llvm-objcopy', '-O', 'binary', '-j', '.text', 'sz.o', 'sz.bin'], check=True)
    return os.path.getsize('sz.bin') // 16 * 16

if __name__ == '__main__':
    opt = dict((x.split('=')[0], int(x.split('=')[1]) if '=' in x else 1) for x in sys.argv[2:])
    n = code_size(k_main(opt, 40000)) - 64
    main = k_main(opt, n)
    assert code_size(main) >= n
    print('main kernel code bytes', n, 'vgprs', main.V.hi, 'sgprs', main.S.hi)
    open(sys.argv[1], 'w').write(assemble([main], single=not opt.get('list')))
```

```python
import sys
from asm import *
from layout import *
NAME = 'adaLN_cond__mha_block__glu_gated_glu__prompt'
HEADER = open('cdna_kernels/' + NAME + '.s.ref').read().split('; Override launch geometry')[0]

def kd(name, vgpr, sgpr):
    vg = (vgpr + 7) // 8 * 8
    return f'''.amdhsa_kernel {name}
  .amdhsa_next_free_vgpr {vg}
  .amdhsa_next_free_sgpr {sgpr}
  .amdhsa_accum_offset {vg}
  .amdhsa_group_segment_fixed_size 0
  .amdhsa_kernarg_size 96
  .amdhsa_user_sgpr_count 2
  .amdhsa_user_sgpr_kernarg_segment_ptr 1
  .amdhsa_system_sgpr_workgroup_id_x 1
.end_amdhsa_kernel
'''

class Kernel:
    def __init__(self, name, grid, block, lds):
        self.name, self.grid, self.block, self.lds = name, grid, block, lds
        self.a = Asm(); self.a._lab = sum(map(ord, name)) % 1000 * 1000
        self.V = Regs('v', 1, 256); self.S = Regs('s', 4, 100)

def assemble(kernels, single=False):
    out = HEADER
    for k in kernels:
        out += f'; @launch {"" if single else "kernel=" + k.name + " "}grid=({k.grid},1,1) block=({k.block},1,1) lds={k.lds}\n'
    out += '.amdgcn_target "amdgcn-amd-amdhsa--gfx950"\n.text\n'
    seen = []
    for k in kernels:
        if k.name in seen: continue
        seen.append(k.name)
        out += f'.globl {k.name}\n.p2align 8\n.type {k.name},@function\n{k.name}:\n' + k.a.text() + '    s_endpgm\n'
    out += '.section .rodata,"a"\n'
    seen = []
    for k in kernels:
        if k.name in seen: continue
        seen.append(k.name)
        out += '.p2align 6\n' + kd(k.name, k.V.hi, min(102, k.S.hi + 2))
    return out

def srd(a, s, ptr, size):
    if s != ptr:
        a(f's_mov_b32 s{s}, s{ptr}\ns_mov_b32 s{s+1}, s{ptr+1}')
    a(f's_mov_b32 s{s+2}, {size}\ns_mov_b32 s{s+3}, 0x20000')

def prologue(k, nwg):
    a = k.a
    end = f'L_end_{k.name}'
    ctx = dict(sWG=2, end=end)
    ws = k.S(4); ctx['sWS'] = ws
    ctx['sTmp2'] = k.S(2)
    ctx['sWave'] = k.S(); ctx['vLane'] = k.V()
    a(f'''
    s_cmp_ge_u32 s2, {nwg}
    s_cbranch_scc1 {end}
    s_load_dwordx2 s[{ws}:{ws+1}], s[0:1], {ARG_WS}
    v_lshrrev_b32 v{ctx['vLane']}, 6, v0
    s_nop 0
    v_readfirstlane_b32 s{ctx['sWave']}, v{ctx['vLane']}
    v_and_b32 v{ctx['vLane']}, 63, v0
    ''')
    srd(a, ws, ws, WS_SIZE)
    return ctx
def epilogue(k, ctx):
    k.a(f'{ctx["end"]}:')

class Stamps:
    def __init__(self, k, ctx, kid, n=16):
        self.k, self.ctx, self.kid = k, ctx, kid
        self.s = k.S(4, 4); self.v = k.V(2); self.i = 0
        k.a(f'v_mov_b32 v{self.v}, 0\nv_mov_b32 v{self.v+1}, 0')
    def __call__(self):
        a, s, v = self.k.a, self.s, self.v
        a(f's_memrealtime s[{s}:{s+1}]\ns_memtime s[{s+2}:{s+3}]\ns_waitcnt lgkmcnt(0)\nv_writelane_b32 v{v}, s{s}, {self.i}\nv_writelane_b32 v{v+1}, s{s+2}, {self.i}')
        self.i += 1
    def at(self, i):
        save = self.i; self.i = i; self(); self.i = max(save, i + 1)
    def flush(self):
        k, a, c = self.k, self.k.a, self.ctx
        t = self.s
        a(f's_waitcnt vmcnt(0) lgkmcnt(0)')
        self()
        a(f's_lshl_b32 s{t}, s2, 3\ns_add_u32 s{t}, s{t}, s{c["sWave"]}\ns_lshl_b32 s{t}, s{t}, 7\ns_add_u32 s{t}, s{t}, {WS_STAMP + self.kid * 262144}')
        if c.get('stamp_dbg') is not None:
            sk = a.label('nodbg'); d = k.S(4, 4)
            a(f'''
            s_cmp_lg_u32 s2, {c['stamp_dbg']}
            s_cbranch_scc1 {sk}
            s_cmp_lg_u32 s{c["sWave"]}, 0
            s_cbranch_scc1 {sk}
            s_load_dwordx2 s[{d}:{d+1}], s[0:1], {ARG_DBG}
            v_readlane_b32 s{t+1}, v{self.v + c.get('dbg_cyc', 0)}, 0
            s_mov_b32 s{d+2}, 256
            s_mov_b32 s{d+3}, 0x20000
            v_lshlrev_b32 v0, 2, v{c["vLane"]}
            v_subrev_u32 v{self.v}, s{t+1}, v{self.v + c.get('dbg_cyc', 0)}
            s_waitcnt lgkmcnt(0)
            s_mov_b64 exec, 0xffff
            buffer_store_dword v{self.v}, v0, s[{d}:{d+3}], 0 offen
            {sk}:
            ''')
            return
        a(f'v_lshlrev_b32 v0, 3, v{c["vLane"]}\ns_mov_b64 exec, 0xffff\nbuffer_store_dwordx2 {vr(self.v,2)}, v0, {sr(c["sWS"],4)}, s{t} offen')
```

```python
from asm import *
from layout import *
import struct
def f2u(x): return struct.unpack('<I', struct.pack('<f', x))[0]

ATTN_LDS = 4 * 6144
OOB = 0x40000000

def gen_attn(a, V, Sg, ctx, opt=None):
    opt = opt or {}
    ws, sWG, sWave, vLane = ctx['sWS'], ctx['sWG'], ctx['sWave'], ctx['vLane']
    lds0 = ctx.get('lds_base', 0)
    st, ld = ctx.get('st_flags', ''), ctx.get('ld_flags', '')
    stamp = ctx.get('stamp', lambda: None)
    WS = sr(ws, 4)
    mv, ms = V.mark(), Sg.mark()
    sHead, sQb, sKV, sKV0, sKVe, sC, sT, sT2, sQ, sKh, sG, sO1, sO2, sX1, sX2 = [Sg() for _ in range(15)]
    sMHi = Sg(2)
    vL16, vAK2, vAV0, vAV1, vIdx, vT, vT2, vT3, vO1, vO2, vXw, vXr = [V() for _ in range(12)]
    NQ, NB = 4, opt.get('nb', 4)
    Q1, Q2 = [V(4) for _ in range(NQ)], [V(2) for _ in range(NQ)]
    K1, K2, V0, V1 = [V(4) for _ in range(NB)], [V(2) for _ in range(NB)], [V(4) for _ in range(NB)], [V(4) for _ in range(NB)]
    Sb = [V(16, 4), V(16, 4)]
    O = [V(16, 4) for _ in range(NQ)]
    E = lambda r: a(f'v_exp_f32 v{r}, v{r}' if not opt.get('noexp') else '')
    def QKa(q, b, d): a(f'v_mfma_f32_32x32x16_bf16 {vr(d,16)}, {vr(K1[b],4)}, {vr(Q1[q],4)}, 0')
    def QKb(q, b, d): a(f'v_mfma_f32_32x32x8bf16_1k {vr(d,16)}, {vr(K2[b],2)}, {vr(Q2[q],2)}, {vr(d,16)}')
    def SM(q, vv, p): a(f'v_smfmac_f32_32x32x32_bf16 {vr(O[q],16)}, {vr(vv,4)}, {vr(p,8)}, v{vIdx}')
    def ldK1(b, s=sKV): a(f'buffer_load_dwordx4 {vr(K1[b],4)}, v{vL16}, {WS}, s{s} offen {ld}')
    def ldK2(b, s=sKV): a(f'buffer_load_dwordx2 {vr(K2[b],2)}, v{vAK2}, {WS}, s{s} offen {ld}')
    def ldV0(b, s=sKV): a(f'buffer_load_dwordx4 {vr(V0[b],4)}, v{vAV0}, {WS}, s{s} offen {ld}')
    def ldV1(b, s=sKV): a(f'buffer_load_dwordx4 {vr(V1[b],4)}, v{vAV1}, {WS}, s{s} offen {ld}')
    def adv(): a(f's_add_u32 s{sKV}, s{sKV}, {KVT}')

    a(f'''
    s_and_b32 s{sHead}, s{sWG}, 7
    s_lshl_b32 s{sHead}, s{sHead}, 2
    s_lshr_b32 s{sT}, s{sWG}, 3
    s_and_b32 s{sT2}, s{sT}, 3
    s_add_u32 s{sHead}, s{sHead}, s{sT2}
    s_lshr_b32 s{sQb}, s{sT}, 2
    s_lshr_b32 s{sKh}, s{sWave}, 1
    s_and_b32 s{sG}, s{sWave}, 1
    s_mul_i32 s{sKV0}, s{sHead}, {64*KVT}
    s_add_u32 s{sKV0}, s{sKV0}, {WS_KV}
    s_mul_i32 s{sT}, s{sKh}, {32*KVT}
    s_add_u32 s{sKV}, s{sKV0}, s{sT}
    s_add_u32 s{sKVe}, s{sKV}, {31*KVT}
    s_lshl_b32 s{sT}, s{sHead}, 6
    s_lshl_b32 s{sT2}, s{sQb}, 3
    s_add_u32 s{sT}, s{sT}, s{sT2}
    s_lshl_b32 s{sT2}, s{sG}, 2
    s_add_u32 s{sT}, s{sT}, s{sT2}
    s_lshl_b32 s{sT2}, s{sKh}, 1
    s_add_u32 s{sQ}, s{sT}, s{sT2}
    s_xor_b32 s{sC}, s{sQ}, 2
    s_mul_i32 s{sQ}, s{sQ}, {QT}
    s_add_u32 s{sQ}, s{sQ}, {WS_Q}
    s_mul_i32 s{sC}, s{sC}, {QT}
    s_add_u32 s{sC}, s{sC}, {WS_Q}
    s_mov_b32 s{sMHi}, 0
    s_mov_b32 s{sMHi+1}, -1
    v_lshlrev_b32 v{vL16}, 4, v{vLane}
    v_and_b32 v{vT}, 31, v{vLane}
    v_lshrrev_b32 v{vT2}, 5, v{vLane}
    v_lshlrev_b32 v{vT3}, 3, v{vT}
    v_lshl_add_u32 v{vIdx}, v{vT2}, 30, v{vT3}
    ''')
    a(f'''
    s_lshl_b32 s{sT}, s{sQb}, 3
    s_lshl_b32 s{sT2}, s{sG}, 2
    s_add_u32 s{sT}, s{sT}, s{sT2}
    s_lshl_b32 s{sT2}, s{sKh}, 1
    s_add_u32 s{sT}, s{sT}, s{sT2}
    s_mul_i32 s{sT}, s{sT}, 40960
    s_add_u32 s{sT}, s{sT}, {WS_O}
    s_lshr_b32 s{sT2}, s{sHead}, 1
    s_lshl_b32 s{sO1}, s{sT2}, 10
    s_and_b32 s{sX1}, s{sHead}, 1
    s_lshl_b32 s{sX2}, s{sX1}, 9
    s_add_u32 s{sO1}, s{sO1}, s{sX2}
    s_add_u32 s{sO1}, s{sO1}, s{sT}
    s_and_b32 s{sT2}, s{sT2}, 3
    s_lshl_b32 s{sT2}, s{sT2}, 8
    s_lshl_b32 s{sX1}, s{sX1}, 3
    s_add_u32 s{sT2}, s{sT2}, s{sX1}
    s_lshr_b32 s{sX1}, s{sHead}, 3
    s_add_u32 s{sX1}, s{sX1}, 16
    s_lshl_b32 s{sX1}, s{sX1}, 10
    s_add_u32 s{sT2}, s{sT2}, s{sX1}
    s_add_u32 s{sO2}, s{sT2}, s{sT}
    s_mul_i32 s{sT}, s{sWave}, 6144
    s_add_u32 s{sT}, s{sT}, {lds0}
    s_xor_b32 s{sT2}, s{sWave}, 2
    s_mul_i32 s{sT2}, s{sT2}, 6144
    s_add_u32 s{sT2}, s{sT2}, {lds0}
    v_add_u32 v{vXw}, s{sT}, v{vL16}
    v_add_u32 v{vXr}, s{sT2}, v{vL16}
    ''')
    a(f'''
    v_bfe_u32 v{vAV0}, v{vLane}, 4, 1
    v_mul_u32_u24 v{vAV0}, 20480, v{vAV0}
    v_and_b32 v{vAV1}, 15, v{vLane}
    v_lshl_add_u32 v{vO2}, v{vAV1}, 4, v{vAV0}
    v_lshrrev_b32 v{vAV0}, 5, v{vLane}
    v_lshl_add_u32 v{vO1}, v{vAV0}, 8, v{vO2}
    v_lshl_add_u32 v{vO2}, v{vAV0}, 30, v{vO2}
    ''')
    vQ2 = Sb[0]
    a(f'''
    v_mov_b32 v{vQ2}, v{vIdx}
    v_add_u32 v{vT3}, {KV_K2}, v{vT3}
    v_mov_b32 v{vAK2}, {KV_ONE}
    v_cmp_gt_u32 vcc, 32, v{vLane}
    v_mul_u32_u24 v{vAV0}, 20, v{vT2}
    v_add_u32 v{vAV0}, v{vAV0}, v{vT}
    v_cndmask_b32 v{vAK2}, v{vAK2}, v{vT3}, vcc
    v_lshlrev_b32 v{vAV0}, 4, v{vAV0}
    v_add_u32 v{vAV0}, {KV_V}, v{vAV0}
    v_add_u32 v{vAV1}, 640, v{vAV0}
    v_mov_b32 v{vT3}, {KV_ONE}
    v_mov_b32 v{vT2}, {OOB}
    v_cmp_eq_u32 vcc, 20, v{vT}
    v_mov_b32 v{vIdx}, 0xdddd
    s_nop 0
    v_cndmask_b32 v{vT3}, v{vT2}, v{vT3}, vcc
    v_cmp_gt_u32 vcc, 20, v{vT}
    s_nop 1
    v_cndmask_b32 v{vAV0}, v{vT3}, v{vAV0}, vcc
    v_cndmask_b32 v{vAV1}, v{vT3}, v{vAV1}, vcc
    ''')
    for r in range(8, 16): a(f'v_mov_b32 v{Sb[1]+r}, 0')
    for r in range(4): a(f'v_mov_b32 v{V1[NB-1]+r}, 0')
    if 'wait_inputs' in ctx: ctx['wait_inputs']()
    ldK1(NB-1, sKV0); ldK2(NB-1, sKV0)
    for q in range(NQ):
        sq = sQ if q < 2 else sC
        a(f'buffer_load_dwordx4 {vr(Q1[q],4)}, v{vL16}, {WS}, s{sq} offen offset:{(q&1)*QT} {ld}')
        a(f'buffer_load_dwordx2 {vr(Q2[q],2)}, v{vQ2}, {WS}, s{sq} offen offset:{(q&1)*QT+1024} {ld}')
    a(f's_mov_b32 s{sC}, 0')
    for b in range(2):
        ldK1(b); ldV1(b); ldK2(b); ldV0(b); adv()
    a('s_waitcnt vmcnt(8)')
    stamp()
    for q in range(NQ):
        QKa(q, NB-1, O[q]); QKb(q, NB-1, O[q])
    for b in range(2, NB - 1):
        ldK1(b); ldV1(b); ldK2(b); ldV0(b); adv()
    def rowmax(dst, src, first):
        if first:
            a(f'v_max3_f32 v{dst}, v{src}, v{src+1}, v{src+2}')
            a(f'v_max_f32 v{dst}, v{dst}, v{src+3}')
            rest = range(4, 16, 2)
        else:
            rest = range(0, 16, 2)
        for r in rest: a(f'v_max3_f32 v{dst}, v{dst}, v{src+r}, v{src+r+1}')
    for q in range(NQ):
        if q == NQ - 1: a('s_nop 3')
        rowmax(vT, O[q], True)
        a(f'''
        v_mov_b32 v{vT2}, v{vT}
        v_mov_b32 v{O[q]}, 0
        v_mov_b32 v{O[q]+1}, 0
        v_permlane32_swap_b32 v{vT}, v{vT2}
        ''')
        for r in range(2, 16): a(f'v_mov_b32 v{O[q]+r}, 0')
        a(f'''
        v_max_f32 v{vT}, v{vT}, v{vT2}
        v_sub_f32 v{vT}, {hex(f2u(-MBIAS))}, v{vT}
        v_cvt_pk_bf16_f32 v{vT}, v{vT}, 0
        s_mov_b64 exec, {sr(sMHi,2)}
        v_mov_b32 v{Q2[q]}, v{vT}
        s_mov_b64 exec, -1
        ''')
    a(f's_waitcnt vmcnt({4*(NB-2)})')
    QKa(0, 0, Sb[0]); QKb(0, 0, Sb[0])
    a('s_nop 10')
    loop = a.label('attn_loop')
    stamp()
    ctx.get('tr', lambda *x: 0)(2, 1)
    ctx.get('tr', lambda *x: 0)(6, 1)
    a('.p2align 6')
    a(f'{loop}:')
    for i in range(NB):
        b, nb, pb = i, (i + 1) % NB, (i - 1) % NB
        for q in range(NQ):
            c, n = Sb[q & 1], Sb[(q + 1) & 1]
            E(c); E(c + 1)
            SM((q - 1) % NQ, V1[b if q else pb], n + 8)
            if q == 0: ldK1(pb)
            if q == 1: ldK2(pb)
            if q == 2: adv(); a(f's_min_u32 s{sKV}, s{sKV}, s{sKVe}')
            if q == 3: a(f's_waitcnt vmcnt({4*(NB-2)})')
            for r in range(2, 6): E(c + r)
            nq, kb = (q + 1) % NQ, (b if q < NQ - 1 else nb)
            QKa(nq, kb, n)
            if i == NB - 1 and q == 2: a(f's_add_u32 s{sC}, s{sC}, 1')
            if i == NB - 1 and q == 3: a(f's_cmp_lt_u32 s{sC}, {32 // NB}')
            for r in range(6, 10): E(c + r)
            QKb(nq, kb, n)
            for r in range(10, 14): E(c + r)
            SM(q, V0[b], c)
            if q == 0: ldV1(pb)
            if q == 1: ldV0(pb)
            if q == 2 and 'progress' in ctx: a(f'ds_add_u32 v{ctx["progress"]}, v{ctx["progress"]+1}')
            E(c + 14); E(c + 15)
    if opt.get('trace') == 6:
        st_ = ctx['trobj']
        a(f's_cselect_b32 s{sT}, 1, 0\ns_memrealtime s[{st_.s}:{st_.s+1}]\ns_memtime s[{st_.s+2}:{st_.s+3}]\ns_add_u32 s{sT2}, s{sC}, 1\ns_mov_b32 m0, s{sT2}\ns_waitcnt lgkmcnt(0)\nv_writelane_b32 v{st_.v}, s{st_.s}, m0\nv_writelane_b32 v{st_.v+1}, s{st_.s+2}, m0\ns_cmp_lg_u32 s{sT}, 0')
    a(f's_cbranch_scc1 {loop}')
    stamp()
    ctx.get('tr', lambda *x: 0)(2, 10)
    a('s_nop 1')
    SM(NQ - 1, V1[NB - 1], Sb[1] + 8)
    if ctx.get('pre_combine_barrier'): a('s_barrier')
    for j in range(2):
        if j == 1: a('s_nop 8')
        for r in range(3): a(f'ds_write_b128 v{vXw}, {vr(O[2+j]+4*r,4)} offset:{3072*j + 1024*r}')
    a(f'''
    s_waitcnt lgkmcnt(0)
    s_barrier
    ''')
    ctx.get('tr', lambda *x: 0)(2, 11)
    for j in range(2):
        for r in range(3): a(f'ds_read_b128 {vr(O[2+j]+4*r,4)}, v{vXr} offset:{3072*j + 1024*r}')
    tmp = ctx['sTmp2']
    slows = []
    for j in range(2):
        Oq = O[j]
        fin, slow = a.label('attn_fin'), a.label('attn_slow')
        slows.append((j, fin, slow))
        a(f's_waitcnt lgkmcnt({3 - 3*j})')
        for r in range(12): a(f'v_add_f32 v{Oq+r}, v{Oq+r}, v{O[2+j]+r}')
        a(f'''
        v_mov_b32 v{vT}, v{Oq+8}
        v_mov_b32 v{vT2}, v{Oq+8}
        v_max3_f32 v{vT3}, abs(v{Oq}), abs(v{Oq+1}), abs(v{Oq+2})
        s_nop 0
        v_permlane32_swap_b32 v{vT}, v{vT2}
        ''')
        for r in range(3, 11, 2): a(f'v_max3_f32 v{vT3}, v{vT3}, abs(v{Oq+r}), abs(v{Oq+r+1})')
        a(f'''
        v_max_f32_e64 v{vT3}, v{vT3}, abs(v{Oq+11})
        s_mov_b32 s{sT}, {hex(f2u(2.0**120))}
        s_mov_b32 s{sC}, 0x7f800000
        v_cmp_nlt_f32_e64 {sr(tmp,2)}, v{vT2}, s{sT}
        v_cmp_nlt_f32_e64 vcc, v{vT3}, s{sC}
        s_or_b64 vcc, vcc, {sr(tmp,2)}
        ''')
        if opt.get('force_slow'): a(f's_branch {slow}')
        a(f's_cbranch_vccnz {slow}')
        a(f'{fin}:')
        a(f'v_rcp_f32 v{vT2}, v{vT2}\ns_nop 0')
        for r in range(12): a(f'v_mul_f32 v{Oq+r}, v{Oq+r}, v{vT2}')
        for r in range(6): a(f'v_cvt_pk_bf16_f32 v{Oq+r}, v{Oq+2*r}, v{Oq+2*r+1}')
        a(f'buffer_store_dwordx4 {vr(Oq,4)}, v{vO1}, {WS}, s{sO1} offen {st}')
        a(f'buffer_store_dwordx2 {vr(Oq+4,2)}, v{vO2}, {WS}, s{sO2} offen {st}')
        if j == 0: a(f's_add_u32 s{sO1}, s{sO1}, 40960\ns_add_u32 s{sO2}, s{sO2}, 40960')
    ctx.get('tr', lambda *x: 0)(2, 12)
    def cold():
        for j, fin, slow in slows:
            Oq = O[j]
            l1, l2 = a.label('slow1'), a.label('slow2')
            a(f'''
            {slow}:
            s_waitcnt vmcnt(0) lgkmcnt(0)
            s_mov_b64 exec, {sr(sMHi,2)}
            v_mov_b32 v{Q2[j]}, 0
            s_mov_b64 exec, -1
            v_mov_b32 v{vT}, 0xff800000
            s_mov_b32 s{sKV}, s{sKV0}
            s_mov_b32 s{sC}, 0
            {l1}:
            ''')
            ldK1(0); ldK2(0); a('s_waitcnt vmcnt(0)')
            QKa(j, 0, Sb[0]); QKb(j, 0, Sb[0])
            a('s_nop 15')
            rowmax(vT, Sb[0], False)
            adv()
            a(f'''
            s_add_u32 s{sC}, s{sC}, 1
            s_cmp_lt_u32 s{sC}, 64
            s_cbranch_scc1 {l1}
            v_mov_b32 v{vT2}, v{vT}
            s_nop 1
            v_permlane32_swap_b32 v{vT}, v{vT2}
            s_nop 1
            v_max_f32 v{vT3}, v{vT}, v{vT2}
            ''')
            for r in range(16): a(f'v_mov_b32 v{Oq+r}, 0')
            a(f's_mov_b32 s{sKV}, s{sKV0}\ns_mov_b32 s{sC}, 0\n{l2}:')
            ldK1(0); ldK2(0); ldV0(0); ldV1(0); a('s_waitcnt vmcnt(0)')
            QKa(j, 0, Sb[0]); QKb(j, 0, Sb[0])
            a('s_nop 15')
            for r in range(16): a(f'v_sub_f32 v{Sb[0]+r}, v{Sb[0]+r}, v{vT3}')
            for r in range(16): a(f'v_exp_f32 v{Sb[0]+r}, v{Sb[0]+r}')
            a('s_nop 1')
            SM(j, V0[0], Sb[0]); SM(j, V1[0], Sb[0] + 8)
            adv()
            a(f'''
            s_add_u32 s{sC}, s{sC}, 1
            s_cmp_lt_u32 s{sC}, 64
            s_cbranch_scc1 {l2}
            s_nop 15
            v_mov_b32 v{vT}, v{Oq+8}
            v_mov_b32 v{vT2}, v{Oq+8}
            s_nop 1
            v_permlane32_swap_b32 v{vT}, v{vT2}
            s_nop 1
            s_branch {fin}
            ''')
    V.release(mv); Sg.release(ms)
    return cold
```

```python
from asm import *
from layout import *
from build import srd
from pack import *
from sync import *
from qkv import qkv_ids, gu_ids

HLP_Q = 25600
HLP_P = 4096
OOBS = 0x40000000

class Helpers:
    def __init__(self, a, V, Sg, ctx, ldsP, ldsC, ldsU):
        self.a, self.V, self.Sg, self.ctx, self.ldsP, self.ldsC, self.ldsU = a, V, Sg, ctx, ldsP, ldsC, ldsU
        self.sA, self.sB, self.sC = Sg(4), Sg(4), Sg(4)
        (self.sHw, self.sT, self.sT2, self.sL, self.sSrcG, self.sDstG, self.sCntG, self.sId, self.sSrcC, self.sDstC, self.sCntB, self.sA1, self.sA0, self.sBb) = [Sg() for _ in range(14)]
        self.vL16 = V(); self.vDG = V(); self.vDB = V(); self.vS = V(4, 2)

    def setup(self, tv, ts):
        a, c = self.a, self.ctx
        sWG, sWave, vLane = c['sWG'], c['sWave'], c['vLane']
        sA, sB, sC, sHw, sT, sT2, sL, sId = self.sA, self.sB, self.sC, self.sHw, self.sT, self.sT2, self.sL, self.sId
        sP, sPd, sJ, sA1, sA0, sBb = ts, ts + 8, ts + 10, self.sA1, self.sA0, self.sBb
        isd, go = a.label('hlp_isd'), a.label('hlp_go')
        a(f'''
        s_load_dwordx8 s[{sP}:{sP+7}], s[0:1], {ARG_WO}
        s_load_dwordx2 s[{sPd}:{sPd+1}], s[0:1], {ARG_WD}
        s_sub_u32 s{sHw}, s{sWave}, 4
        s_mul_i32 s{sL}, s{sHw}, {HLP_Q}
        s_lshl_b32 s{sId}, s{sHw}, 8
        s_add_u32 s{sId}, s{sId}, s{sWG}
        v_lshlrev_b32 v{self.vL16}, 4, v{vLane}
        s_mul_i32 s{self.sDstG}, s{sId}, 7168
        s_add_u32 s{self.sDstG}, s{self.sDstG}, {WS_PGU}
        s_mul_i32 s{sT}, s{sId}, 3277
        s_lshr_b32 s{sT}, s{sT}, 16
        s_mul_i32 s{sT2}, s{sT}, 20
        s_sub_u32 s{sT2}, s{sId}, s{sT2}
        s_lshl_b32 s{self.sCntG}, s{sT}, 8
        s_add_u32 s{self.sCntG}, s{self.sCntG}, {C_PW}
        s_mul_i32 s{sT}, s{sT}, 112
        s_min_u32 s{sT}, s{sT}, {1672*2}
        s_mul_i32 s{sT2}, s{sT2}, {32*3456}
        s_add_u32 s{self.sSrcG}, s{sT}, s{sT2}
        s_cmp_ge_u32 s{sId}, 620
        s_cselect_b32 s{self.sSrcG}, {OOBS}, s{self.sSrcG}
        ''')
        d = self.vDG
        a(f'''
        v_lshrrev_b32 v{d}, 5, v{vLane}
        v_bfe_u32 v{tv}, v{vLane}, 3, 2
        v_lshl_add_u32 v{d}, v{d}, 3, v{tv}
        v_mul_u32_u24 v{d}, 3456, v{d}
        v_and_b32 v{tv}, 7, v{vLane}
        v_lshl_add_u32 v{d}, v{tv}, 4, v{d}
        v_cmp_eq_u32 vcc, 7, v{tv}
        v_mov_b32 v{tv}, {OOBS}
        s_nop 0
        v_cndmask_b32 v{d}, v{d}, v{tv}, vcc
        ''')
        pack5_addr(a, self.vDB, vLane, 1280, tv)
        a(f'''
        s_sub_u32 s{sJ}, s{sId}, 432
        s_max_i32 s{sJ}, s{sJ}, 0
        s_waitcnt lgkmcnt(0)
        s_mov_b32 s{sA}, s{sP+4}
        s_mov_b32 s{sA+1}, s{sP+5}
        s_mov_b32 s{sB}, s{sP+6}
        s_mov_b32 s{sB+1}, s{sP+7}
        ''')
        srd(a, sA, sA, 640 * 3456); srd(a, sB, sB, 640 * 3456)
        a(f'''
        s_cmp_ge_u32 s{sJ}, 160
        s_cbranch_scc1 {isd}
        s_mul_i32 s{self.sDstC}, s{sJ}, 5120
        s_add_u32 s{self.sDstC}, s{self.sDstC}, {WS_PWO}
        s_mul_i32 s{sT}, s{sJ}, 3277
        s_lshr_b32 s{sT}, s{sT}, 16
        s_mul_i32 s{sT2}, s{sT}, 20
        s_sub_u32 s{sJ}, s{sJ}, s{sT2}
        s_mul_i32 s{self.sSrcC}, s{sT}, 160
        s_lshl_b32 s{self.sCntB}, s{sT}, 8
        s_add_u32 s{self.sCntB}, s{self.sCntB}, {C_PO}
        s_mul_i32 s{sT}, s{sJ}, {40*1280}
        s_sub_u32 s{sT2}, s{sJ}, 16
        s_mul_i32 s{sT2}, s{sT2}, {160*1280}
        s_add_u32 s{sT2}, s{sT2}, {16*1280}
        s_cmp_ge_u32 s{sJ}, 16
        s_cselect_b32 s{sT}, s{sT2}, s{sT}
        s_cselect_b32 s{sA1}, 80, 20
        s_cselect_b32 s{sA0}, 40, 4
        s_cselect_b32 s{sBb}, 20, 8
        s_add_u32 s{self.sSrcC}, s{self.sSrcC}, s{sT}
        s_mov_b32 s{sC}, s{sP}
        s_mov_b32 s{sC+1}, s{sP+1}
        s_mov_b32 s{sC+2}, {640*1280}
        s_branch {go}
        {isd}:
        s_sub_u32 s{sJ}, s{sJ}, 160
        s_mul_i32 s{self.sDstC}, s{sJ}, 5120
        s_add_u32 s{self.sDstC}, s{self.sDstC}, {WS_PWD}
        s_mul_i32 s{sT}, s{sJ}, 1214
        s_lshr_b32 s{sT}, s{sT}, 16
        s_mul_i32 s{sT2}, s{sT}, 54
        s_sub_u32 s{sJ}, s{sJ}, s{sT2}
        s_mul_i32 s{self.sSrcC}, s{sT}, 160
        s_lshl_b32 s{self.sCntB}, s{sT}, 8
        s_add_u32 s{self.sCntB}, s{self.sCntB}, {C_PD}
        s_mul_i32 s{sT}, s{sJ}, {32*1280}
        s_add_u32 s{self.sSrcC}, s{self.sSrcC}, s{sT}
        s_mov_b32 s{sA1}, 16
        s_mov_b32 s{sA0}, 8
        s_mov_b32 s{sBb}, 4
        s_mov_b32 s{sC}, s{sPd}
        s_mov_b32 s{sC+1}, s{sPd+1}
        s_mov_b32 s{sC+2}, {1728*1280}
        {go}:
        s_mov_b32 s{sC+3}, 0x20000
        s_mul_i32 s{sA1}, s{sA1}, 1280
        s_mul_i32 s{sA0}, s{sA0}, 1280
        s_mul_i32 s{sBb}, s{sBb}, 1280
        s_cmp_lt_u32 s{sId}, 432
        s_cselect_b32 s{self.sSrcC}, {OOBS}, s{self.sSrcC}
        ''')

    def loads(self, sT3):
        a, sT, sT2, sL = self.a, self.sT, self.sT2, self.sL
        def rowoff(sD, g, jh):
            a(f's_mov_b32 s{sD}, 0')
            if g >> 1: a(f's_add_u32 s{sD}, s{sD}, s{self.sA1}')
            if g & 1: a(f's_add_u32 s{sD}, s{sD}, s{self.sA0}')
            if jh: a(f's_add_u32 s{sD}, s{sD}, s{self.sBb}')
        a(f's_add_u32 s{sT3}, s{sL}, 8192')
        pack5_load(a, self.vDB, self.sC, self.sSrcC, sT3, sT, sT2, rowoff)
        for m_, sr_ in enumerate((self.sA, self.sB)):
            for i in range(4):
                a(f's_add_u32 s{sT}, s{sL}, {4096*m_ + 1024*i}\ns_mov_b32 m0, s{sT}\ns_add_u32 s{sT2}, s{self.sSrcG}, {(16*(i&1) + 4*(i>>1)) * 3456}')
                a(f'buffer_load_dwordx4 v{self.vDG}, {sr(sr_,4)}, s{sT2} offen lds')

    def rest(self, gate):
        a, V, Sg, ctx, ldsP = self.a, self.V, self.Sg, self.ctx, self.ldsP
        sWG, sWave, vLane, WS = ctx['sWG'], ctx['sWave'], ctx['vLane'], sr(ctx['sWS'], 4)
        st, ld, TH = 'sc1', ctx['ld_flags'], ctx.get('hthr')
        if ctx.get('x_nost'):
            a0 = a
            class F:
                def __call__(s_, t=''): a0('\n'.join(l for l in t.split('\n') if not ('buffer_store_dwordx4' in l and 'offset' in l)))
                def label(s_, b): return a0.label(b)
            a = F()
        sHw, sT, sT2, sL, sId, vL16, vS = self.sHw, self.sT, self.sT2, self.sL, self.sId, self.vL16, self.vS
        mv, ms = V.mark(), Sg.mark()
        sJ, sTile, sFb = Sg(), Sg(), Sg()
        vT, vT2, vB1, vB2, vG1, vG2, vG3, vCf, vPw = [V() for _ in range(9)]
        Fr = V(28, 4); Cf = V(20, 4); acc = V(4, 4)
        def finishU():
            a(f'''
            v_and_b32 v{vT}, 15, v{vLane}
            v_lshrrev_b32 v{vT2}, 4, v{vLane}
            v_lshlrev_b32 v{vT2}, 10, v{vT2}
            v_lshl_add_u32 v{vT2}, v{vT}, 2, v{vT2}
            v_add_u32 v{vT2}, {ldsP}, v{vT2}
            ''')
            for n in range(16): a(f'ds_read_b32 v{Cf+n}, v{vT2} offset:{64*n}')
            u1, u2, t1, t2 = acc, acc + 2, acc + 1, acc + 3
            a('s_waitcnt lgkmcnt(0)')
            for d in (4, 2):
                for i in range(d): a(f'v_add_f32 v{Cf+i}, v{Cf+i}, v{Cf+i+d}\nv_add_f32 v{Cf+8+i}, v{Cf+8+i}, v{Cf+8+i+d}')
            a(f'''
            v_add_f32 v{u1}, v{Cf}, v{Cf+1}
            v_add_f32 v{u2}, v{Cf+8}, v{Cf+9}
            v_mov_b32 v{t1}, v{u1}
            v_mov_b32 v{t2}, v{u2}
            s_nop 1
            v_permlane32_swap_b32 v{u1}, v{t1}
            v_permlane32_swap_b32 v{u2}, v{t2}
            s_nop 0
            v_add_f32 v{u1}, v{u1}, v{t1}
            v_add_f32 v{u2}, v{u2}, v{t2}
            v_mov_b32 v{t1}, v{u1}
            v_mov_b32 v{t2}, v{u2}
            s_nop 1
            v_permlane16_swap_b32 v{u1}, v{t1}
            v_permlane16_swap_b32 v{u2}, v{t2}
            s_nop 0
            v_add_f32 v{u1}, v{u1}, v{t1}
            v_add_f32 v{u2}, v{u2}, v{t2}
            v_cvt_pk_bf16_f32 v{Fr}, v{u1}, v{u1}
            v_cvt_pk_bf16_f32 v{Fr+4}, v{u2}, v{u2}
            v_and_b32 v{t1}, 0xffff0000, v{Fr}
            v_and_b32 v{t2}, 0xffff0000, v{Fr+4}
            v_sub_f32 v{u1}, v{u1}, v{t1}
            v_sub_f32 v{u2}, v{u2}, v{t2}
            v_cvt_pk_bf16_f32 v{Fr+1}, v{u1}, v{t2}
            v_cvt_pk_bf16_f32 v{Fr+2}, v{t2}, v{u2}
            v_mov_b32 v{Fr+3}, 0
            v_lshlrev_b32 v{vT}, 4, v{vT}
            s_lshl_b32 s{sT}, s{sTile}, 8
            s_add_u32 s{sT}, s{sT}, {WS_U}
            s_mov_b64 exec, 0xffff
            buffer_store_dwordx4 {vr(Fr,4)}, v{vT}, {WS}, s{sT} offen {st}
            s_mov_b64 exec, -1
            s_lshl_b32 s{sT}, s{sFb}, 8
            s_add_u32 s{sT}, s{sT}, {C_PG}
            s_waitcnt vmcnt(0)
            ''')
            signal(a, ctx, sT, vS)
        lB, lG, lU = a.label('hlp_noB'), a.label('hlp_noG'), a.label('hlp_noU')
        a(f'''
        s_setprio {ctx.get('hprio', 2)}
        v_lshrrev_b32 v{vT}, 2, v{vLane}
        v_and_b32 v{vT2}, 3, v{vLane}
        v_lshlrev_b32 v{vB1}, 8, v{vT}
        s_add_u32 s{sT}, s{sL}, 8192
        v_add_u32 v{vB1}, s{sT}, v{vB1}
        v_lshl_add_u32 v{vB2}, v{vT2}, 3, v{vB1}
        v_lshl_add_u32 v{vB1}, v{vT2}, 4, v{vB1}
        v_lshlrev_b32 v{vG1}, 7, v{vT}
        v_add_u32 v{vG1}, s{sL}, v{vG1}
        v_lshl_add_u32 v{vG2}, v{vT2}, 3, v{vG1}
        v_bfe_u32 v{vT}, v{vLane}, 1, 1
        v_mul_u32_u24 v{vT}, {4096 - 16}, v{vT}
        v_add_u32 v{vG3}, v{vG2}, v{vT}
        v_lshl_add_u32 v{vG1}, v{vT2}, 4, v{vG1}
        v_and_b32 v{vT}, 15, v{vLane}
        v_lshlrev_b32 v{vT}, 6, v{vT}
        v_lshrrev_b32 v{vT2}, 4, v{vLane}
        v_lshl_add_u32 v{vT}, v{vT2}, 4, v{vT}
        s_lshl_b32 s{sT}, s{sHw}, 10
        s_add_u32 s{sT}, s{sT}, {ldsP}
        v_add_u32 v{vPw}, s{sT}, v{vT}
        s_and_b32 s{sTile}, s{sWG}, 3
        s_mul_i32 s{sTile}, s{sTile}, 56
        s_bfe_u32 s{sT}, s{sWG}, 0x10002
        s_mul_i32 s{sT}, s{sT}, 28
        s_add_u32 s{sTile}, s{sTile}, s{sT}
        s_lshr_b32 s{sT}, s{sWG}, 3
        s_add_u32 s{sTile}, s{sTile}, s{sT}
        s_cmp_ge_u32 s{sT}, 28
        s_cselect_b32 s{sTile}, 255, s{sTile}
        s_mul_i32 s{sFb}, s{sTile}, 9363
        s_lshr_b32 s{sFb}, s{sFb}, 16
        ''')
        gate(vS, sT2, sT, sHw, 'L')
        tr = lambda i: ctx['tr'](2, i)
        tr(2)
        if not ctx.get('x_noload'): self.loads(sJ)
        tr(3)
        a('s_waitcnt vmcnt(0)')
        tr(4)
        gate(vS, sT2, sT, sHw, 'B')
        a(f's_cmp_lt_u32 s{sId}, 432\ns_cbranch_scc1 {lB}')
        for i, (r, o) in enumerate(((vB1, 0), (vB1, 8), (vB1, 64), (vB1, 72), (vB2, 128))):
            for h in range(2): a(f'ds_read_b64_tr_b16 {vr(Fr+4*i+2*h,2)}, v{r} offset:{o + h*4096}')
        for i in range(5):
            a(f's_waitcnt lgkmcnt({8-2*i})')
            if i == 4: a(f's_add_u32 s{self.sDstC}, s{self.sDstC}, 4096')
            a(f'buffer_store_dwordx4 {vr(Fr+4*i,4)}, v{vL16}, {WS}, s{self.sDstC} offen offset:{1024*(i&3)} {st}')
        a('s_waitcnt vmcnt(0)')
        signal(a, ctx, self.sCntB, vS)
        a(f'{lB}:')
        tr(5)
        a(f's_cmp_ge_u32 s{sId}, 620\ns_cbranch_scc1 {lG}')
        for i, (r, o) in enumerate(((vG1, 0), (vG1, 8), (vG1, 4096), (vG1, 4104), (vG2, 64), (vG2, 4160), (vG3, 96))):
            for h in range(2): a(f'ds_read_b64_tr_b16 {vr(Fr+4*i+2*h,2)}, v{r} offset:{o + h*2048}')
        for i in range(7):
            a(f's_waitcnt lgkmcnt({12-2*i})')
            if i == 4: a(f's_add_u32 s{self.sDstG}, s{self.sDstG}, 4096')
            a(f'buffer_store_dwordx4 {vr(Fr+4*i,4)}, v{vL16}, {WS}, s{self.sDstG} offen offset:{1024*(i&3)} {st}')
        a('s_waitcnt vmcnt(0)')
        signal(a, ctx, self.sCntG, vS)
        a(f'{lG}:')
        tr(6)
        lpm, outm = a.label('hlp_fm'), a.label('hlp_fmo')
        a(f'''
        v_lshlrev_b32 v{vT}, 2, v{vLane}
        v_min_u32 v{vT2}, 31, v{vLane}
        v_lshlrev_b32 v{vT2}, 2, v{vT2}
        s_and_b32 s{sT}, s{sWG}, 7
        s_lshl_b32 s{sT}, s{sT}, 10
        s_add_u32 s{sT}, s{sT}, {F_MOD}
        s_mov_b32 s{sT2}, {SPIN}
        {lpm}:
        buffer_load_dword v{vS}, v{vT}, {WS}, s{sT} offen offset:320 sc1
        buffer_load_dword v{vS+1}, v{vT}, {WS}, s{sT} offen offset:576 sc1
        buffer_load_dword v{vS+2}, v{vT2}, {WS}, s{sT} offen offset:832 sc1
        s_sub_u32 s{sT2}, s{sT2}, 1
        s_cbranch_scc1 {outm}
        s_waitcnt vmcnt(0)
        v_xor_b32 v{vS}, s{ctx['sNonce']}, v{vS}
        v_xor_b32 v{vS+1}, s{ctx['sNonce']}, v{vS+1}
        v_xor_b32 v{vS+2}, s{ctx['sNonce']}, v{vS+2}
        v_or3_b32 v{vS}, v{vS}, v{vS+1}, v{vS+2}
        v_cmp_ne_u32 vcc, 0, v{vS}
        s_sleep 8
        s_cbranch_vccnz {lpm}
        {outm}:
        s_waitcnt vmcnt(0)
        ''')
        nco = a.label('hlp_nocoef')
        qkv_ids(a, sWG, sT2, sJ, sT)
        a(f'''
        s_cmp_lg_u32 s{sHw}, 1
        s_cbranch_scc1 {nco}
        s_mul_i32 s{sT}, s{sJ}, 320
        s_add_u32 s{sT}, s{sT}, {WS_MODP + 1280*4}
        v_mul_u32_u24 v{vT}, 13, v{vLane}
        v_lshrrev_b32 v{vT}, 8, v{vT}
        v_min_u32 v{vT2}, 1, v{vT}
        v_add_u32 v{vT2}, v{vT2}, v{vT}
        v_mul_u32_u24 v{vT2}, 2560, v{vT2}
        v_mul_u32_u24 v{vT}, 320, v{vT}
        v_sub_u32 v{vT}, v{vL16}, v{vT}
        v_add_u32 v{vT}, v{vT}, v{vT2}
        ''')
        for p in range(4):
            a(f'buffer_load_dwordx4 {vr(Fr+4*p,4)}, v{vT}, {WS}, s{sT} offen {ld}')
            if p < 3: a(f's_add_u32 s{sT}, s{sT}, {MODQ}')
        a(f'v_add_u32 v{vT2}, {self.ldsC}, v{vL16}\ns_waitcnt vmcnt(0)')
        for r in range(4): a(f'v_add_f32 v{Fr+r}, v{Fr+r}, v{Fr+4+r}\nv_add_f32 v{Fr+8+r}, v{Fr+8+r}, v{Fr+12+r}')
        for r in range(4): a(f'v_add_f32 v{Fr+r}, v{Fr+r}, v{Fr+8+r}')
        a(f'ds_write_b128 v{vT2}, {vr(Fr,4)}\n{nco}:')
        gate(vS, sT2, sT, sHw, 'W')
        qkv_ids(a, sWG, sT2, sJ, sT)
        a(f's_lshl_b32 s{sT}, s{sJ}, 8\ns_add_u32 s{sT}, s{sT}, {C_PO}')
        poll(a, ctx, sT, 1, 20, vS, sT2, sleep=16)
        tr(7)
        lp = a.label('hlp_wo')
        a(f'''
        s_mul_i32 s{sJ}, s{sJ}, 102400
        s_add_u32 s{sJ}, s{sJ}, {WS_PWO}
        s_add_u32 s{sJ}, s{sJ}, s{sL}
        s_add_u32 s{sT}, s{sL}, {HLP_Q}
        {lp}:
        s_mov_b32 m0, s{sL}
        s_add_u32 s{sL}, s{sL}, 1024
        {'s_nop 0' if ctx.get('x_nowo') else f'buffer_load_dwordx4 v{vL16}, {WS}, s{sJ} offen {ld} lds'}
        s_add_u32 s{sJ}, s{sJ}, 1024
        {f's_waitcnt vmcnt({TH})' if TH is not None else ''}
        s_cmp_lt_u32 s{sL}, s{sT}
        s_cbranch_scc1 {lp}
        s_cmp_ge_u32 s{sTile}, 217
        s_cbranch_scc1 {lU}
        s_lshl_b32 s{sT}, s{sFb}, 8
        s_add_u32 s{sT}, s{sT}, {C_PW}
        ''')
        tr(8)
        poll(a, ctx, sT, 1, 20, vS, sT2, sleep=16)
        a(f'''
        s_mul_i32 s{sT}, s{sFb}, {140 - 7}
        s_add_u32 s{sT}, s{sT}, s{sTile}
        s_mul_i32 s{sT2}, s{sHw}, 35
        s_add_u32 s{sT}, s{sT}, s{sT2}
        s_lshl_b32 s{sT}, s{sT}, 10
        s_add_u32 s{sT}, s{sT}, {WS_PGU}
        s_mul_i32 s{sT2}, s{sHw}, 5120
        s_add_u32 s{sT2}, s{sT2}, {WS_MODB}
        ''')
        for i in range(5):
            a(f'''
            buffer_load_dwordx4 {vr(Fr+4*i,4)}, v{vL16}, {WS}, s{sT} offen {ld}
            buffer_load_dwordx4 {vr(Cf+4*i,4)}, v{vL16}, {WS}, s{sT2} offen {ld}
            s_add_u32 s{sT}, s{sT}, 7168
            s_add_u32 s{sT2}, s{sT2}, 1024
            ''')
        a('s_waitcnt vmcnt(0)')
        for i in range(5):
            a(f'v_mfma_f32_16x16x32_bf16 {vr(acc,4)}, {vr(Fr+4*i,4)}, {vr(Cf+4*i,4)}, {vr(acc,4) if i else 0}')
        a(f'''
        s_nop 7
        ds_write_b128 v{vPw}, {vr(acc,4)}
        s_mov_b64 exec, 1
        v_mov_b32 v{vS}, {self.ldsU}
        v_mov_b32 v{vS+1}, 1
        s_waitcnt lgkmcnt(0)
        ds_add_rtn_u32 v{vS+1}, v{vS}, v{vS+1}
        s_waitcnt lgkmcnt(0)
        v_readfirstlane_b32 s{sT}, v{vS+1}
        s_mov_b64 exec, -1
        s_cmp_lg_u32 s{sT}, 3
        s_cbranch_scc1 {lU}
        ''')
        finishU()
        a(f'{lU}:')
        ng0 = a.label('hlp_nogu0')
        gu_ids(a, sWG, sT2, sJ, sT)
        a(f's_cmp_ge_u32 s{sJ}, 31\ns_cbranch_scc1 {ng0}\ns_cmp_lg_u32 s{sHw}, 1\ns_cbranch_scc1 {ng0}\ns_lshl_b32 s{sT}, s{sJ}, 8\ns_add_u32 s{sT}, s{sT}, {C_PW}')
        poll(a, ctx, sT, 1, 20, vS, sT2, sleep=16)
        a(f'{ng0}:')
        if ctx.get('warm'):
            def touch(sBase, npieces, total):
                lp_ = a.label('hlp_touch')
                a(f'''
                s_mul_i32 s{sT}, s{sHw}, {npieces}
                s_add_u32 s{sT2}, s{sT2}, s{sT}
                s_min_u32 s{sT2}, s{sT2}, {total - npieces}
                s_lshl_b32 s{sT2}, s{sT2}, 10
                s_add_u32 s{sBase}, s{sBase}, s{sT2}
                s_mov_b32 s{sT}, {npieces}
                {lp_}:
                buffer_load_dwordx4 {vr(Fr,4)}, v{vL16}, {WS}, s{sBase} offen {ld}
                s_add_u32 s{sBase}, s{sBase}, 1024
                s_sub_u32 s{sT}, s{sT}, 1
                {f's_waitcnt vmcnt({TH})' if TH is not None else ''}
                s_cmp_lg_u32 s{sT}, 0
                s_cbranch_scc1 {lp_}
                ''')
            ng = a.label('hlp_nogu')
            gu_ids(a, sWG, sT2, sJ, sT)
            a(f's_cmp_ge_u32 s{sJ}, 31\ns_cbranch_scc1 {ng}\ns_lshl_b32 s{sT}, s{sJ}, 8\ns_add_u32 s{sT}, s{sT}, {C_PW}')
            poll(a, ctx, sT, 1, 20, vS, sT2, sleep=16)
            a(f's_mul_i32 s{sJ}, s{sJ}, {140*1024}\ns_add_u32 s{sJ}, s{sJ}, {WS_PGU}\ns_bfe_u32 s{sT2}, s{sWG}, 0x20003\ns_mul_i32 s{sT2}, s{sT2}, 36')
            touch(sJ, 9, 140)
            a(f'{ng}:')
            if ctx['warm'] > 1:
                qkv_ids(a, sWG, sT2, sJ, sT)
                a(f's_lshl_b32 s{sT}, s{sJ}, 8\ns_add_u32 s{sT}, s{sT}, {C_PD}')
                poll(a, ctx, sT, 1, 54, vS, sT2, sleep=16)
                a(f's_mul_i32 s{sJ}, s{sJ}, {270*1024}\ns_add_u32 s{sJ}, s{sJ}, {WS_PWD}\ns_lshr_b32 s{sT2}, s{sWG}, 5\ns_mul_i32 s{sT2}, s{sT2}, 36')
                touch(sJ, 9, 270)
        a('s_waitcnt vmcnt(0) lgkmcnt(0)\ns_setprio 0')
        tr(9)
        V.release(mv); Sg.release(ms)
```

```python
from asm import *
from layout import *
from attn import f2u
from build import srd
from pack import *
from sync import *

QKV_H, QKV_C = 0, 81920
QKV_LDS = QKV_C + 6144

def qkv_ids(a, sWG, sRb, sCb, sT):
    a(f'''
    s_bfe_u32 s{sRb}, s{sWG}, 0x20001
    s_lshl_b32 s{sRb}, s{sRb}, 3
    s_lshr_b32 s{sT}, s{sWG}, 5
    s_add_u32 s{sRb}, s{sRb}, s{sT}
    s_and_b32 s{sCb}, s{sWG}, 1
    s_lshl_b32 s{sCb}, s{sCb}, 2
    s_bfe_u32 s{sT}, s{sWG}, 0x20003
    s_add_u32 s{sCb}, s{sCb}, s{sT}
    ''')

def gu_ids(a, sWG, sRb, sFb, sT):
    a(f'''
    s_bfe_u32 s{sRb}, s{sWG}, 0x10002
    s_lshl_b32 s{sRb}, s{sRb}, 2
    s_bfe_u32 s{sT}, s{sWG}, 0x20003
    s_add_u32 s{sRb}, s{sRb}, s{sT}
    s_and_b32 s{sFb}, s{sWG}, 3
    s_lshl_b32 s{sFb}, s{sFb}, 3
    s_lshr_b32 s{sT}, s{sWG}, 5
    s_add_u32 s{sFb}, s{sFb}, s{sT}
    ''')

L_TAB, L_STAT, L_SPART, L_W0, L_GO, L_MCNT, L_MPART, L_PSTAGE = 81920, 87040, 87552, 140032, 140036, 140040, 140288, 97024

def lds_wait(a, v, sCnt, addr, sleep=1, thr=1):
    lp, out = a.label('spin'), a.label('spin_out')
    a(f"""
    v_mov_b32 v{v}, {addr}
    s_mov_b32 s{sCnt}, {SPIN * 8}
    {lp}:
    ds_read_b32 v{v+1}, v{v}
    s_sub_u32 s{sCnt}, s{sCnt}, 1
    s_cbranch_scc1 {out}
    s_waitcnt lgkmcnt(0)
    v_cmp_gt_u32 vcc, {thr}, v{v+1}
    s_sleep {sleep}
    s_cbranch_vccnz {lp}
    {out}:
    s_waitcnt lgkmcnt(0)
    """)

def gen_qkv(a, V, Sg, ctx, opt=None):
    opt = opt or {}
    ws, sWG, sWave, vLane = ctx['sWS'], ctx['sWG'], ctx['sWave'], ctx['vLane']
    st, ld = 'sc1', ctx['ld_flags']
    stamp = ctx.get('stamp', lambda: None)
    tr = lambda i: ctx['tr'](1, i)
    WS = sr(ws, 4)
    sX, sNonce = ctx['sX'], ctx['sNonce']
    mv, ms = V.mark(), Sg.mark()
    sP, sQ = Sg(4), Sg(4)
    sRb, sCb, sT, sT2, sK_, sW0, sW1, sA, sB, sI2, sTg, sJ, sL, sSeg, sDst, sRole = [Sg() for _ in range(16)]
    sK = sWG
    vT, vT2, vT3, vH0, vH1, vL16 = [V() for _ in range(6)]
    NW = 10
    WF = V(8 * NW, 4)
    m2 = V.mark()
    X = V(40, 4); XF = V(80, 4); PR = V(6, 2)
    vXa, vX1, vH2, vSa, vSb, vPa, vPb = [V() for _ in range(7)]
    CB = [X, X + 16]
    Scr = Regs('v', WF, WF + 8 * NW)
    vS = Scr(4, 2)
    wmod, wpack, wconst, xload, nomod = [a.label(x) for x in ('p0_mod', 'p0_pack', 'p0_const', 'p0_x', 'p0_nomod')]
    a(f"""
    s_load_dwordx4 s[{sP}:{sP+3}], s[0:1], {ARG_C}
    s_load_dwordx2 s[{sQ}:{sQ+1}], s[0:1], {ARG_WQKV}
    v_mov_b32 v{vS}, {L_W0}
    v_mov_b32 v{vS+2}, 0
    v_mov_b32 v{vS+3}, 0
    ds_write_b64 v{vS}, {vr(vS+2,2)}
    ds_write_b32 v{vS}, v{vS+2} offset:8
    """)
    qkv_ids(a, sWG, sRb, sCb, sT)
    a(f"""
    v_lshrrev_b32 v{vT}, 3, v{vLane}
    v_and_b32 v{vT2}, 7, v{vLane}
    v_mul_u32_u24 v{vXa}, 1280, v{vT}
    v_lshl_add_u32 v{vXa}, v{vT2}, 4, v{vXa}
    v_lshlrev_b32 v{vL16}, 4, v{vLane}
    s_mul_i32 s{sT}, s{sRb}, {64*1280}
    s_lshl_b32 s{sT2}, s{sWave}, 7
    s_add_u32 s{sA}, s{sT}, s{sT2}
    s_lshr_b32 s{sI2}, s{sWave}, 2
    s_add_u32 s{sI2}, s{sI2}, 8
    s_and_b32 s{sTg}, s{sWave}, 3
    s_lshl_b32 s{sTg}, s{sTg}, 1
    s_mul_i32 s{sB}, s{sTg}, {8*1280}
    s_add_u32 s{sB}, s{sB}, s{sT}
    s_lshl_b32 s{sT2}, s{sI2}, 7
    s_add_u32 s{sB}, s{sB}, s{sT2}
    s_waitcnt lgkmcnt(0)
    s_load_dword s{sNonce}, s[{ws}:{ws+1}], {WS_EPOCH}
    s_barrier
    """)
    srd(a, sX, sX, S * 1280)
    tr(1)
    def ldX_all():
        for n in range(10):
            if n == 8: a(f's_mov_b32 s{sA}, s{sB}')
            a(f'buffer_load_dwordx4 {vr(X+4*n,4)}, v{vXa}, {sr(sX,4)}, s{sA} offen')
            if n < 9: a(f's_add_u32 s{sA}, s{sA}, {8*1280}')
    def addr_setup():
        vA0, vA1 = XF, XF + 1
        a(f"""
        v_and_b32 v{vA0}, 3, v{vT2}
        v_lshrrev_b32 v{vA1}, 2, v{vT2}
        v_mul_u32_u24 v{vT3}, 12, v{vA1}
        v_add_u32 v{vT3}, v{vT3}, v{vA0}
        v_xor_b32 v{vT3}, v{vT3}, v{vT}
        v_lshlrev_b32 v{vT3}, 4, v{vT3}
        v_lshl_add_u32 v{vT3}, v{vA0}, 8, v{vT3}
        v_lshl_add_u32 v{vT3}, v{vA1}, 12, v{vT3}
        s_lshl_b32 s{sT}, s{sWave}, 13
        v_add_u32 v{vH1}, s{sT}, v{vT3}
        s_lshl_b32 s{sT}, s{sI2}, 13
        s_lshl_b32 s{sT2}, s{sTg}, 9
        s_add_u32 s{sT}, s{sT}, s{sT2}
        v_add_u32 v{vT3}, s{sT}, v{vT3}
        v_lshlrev_b32 v{vA0}, 5, v{vT2}
        s_lshl_b32 s{sT}, s{sWave}, 8
        s_add_u32 s{sT}, s{sT}, {L_TAB}
        v_add_u32 v{vX1}, s{sT}, v{vA0}
        s_lshl_b32 s{sT}, s{sI2}, 8
        s_add_u32 s{sT}, s{sT}, {L_TAB}
        v_add_u32 v{vH2}, s{sT}, v{vA0}
        v_lshlrev_b32 v{vSa}, 3, v{vT}
        v_add_u32 v{vSa}, {L_STAT}, v{vSa}
        s_lshl_b32 s{sT}, s{sTg}, 6
        v_add_u32 v{vSb}, s{sT}, v{vSa}
        v_xor_b32 v{vH0}, 128, v{vH1}
        v_mul_u32_u24 v{vA0}, 80, v{vT}
        s_lshl_b32 s{sT}, s{sWave}, 3
        s_add_u32 s{sT}, s{sT}, {L_SPART}
        v_add_u32 v{vPa}, s{sT}, v{vA0}
        s_mul_i32 s{sT}, s{sTg}, 640
        s_lshl_b32 s{sT2}, s{sI2}, 3
        s_add_u32 s{sT}, s{sT}, s{sT2}
        s_add_u32 s{sT}, s{sT}, {L_SPART}
        v_add_u32 v{vPb}, s{sT}, v{vA0}
        """)
    def x_stats():
        a(f's_mov_b32 s{sT}, 0x3f803f80')
        for n in range(10):
            p = XF + 2 * n
            a(f'v_dot2_f32_bf16 v{p}, v{X+4*n}, s{sT}, 0\nv_dot2_f32_bf16 v{p+1}, v{X+4*n}, v{X+4*n}, 0')
            for r in range(1, 4):
                a(f'v_dot2_f32_bf16 v{p}, v{X+4*n+r}, s{sT}, v{p}\nv_dot2_f32_bf16 v{p+1}, v{X+4*n+r}, v{X+4*n+r}, v{p+1}')
        a('s_nop 0')
        for dpp in ('quad_perm:[1,0,3,2]', 'quad_perm:[2,3,0,1]', 'row_half_mirror'):
            for e in range(20): a(f'v_add_f32_dpp v{XF+e}, v{XF+e}, v{XF+e} {dpp} row_mask:0xf bank_mask:0xf')
        a('s_mov_b32 exec_lo, 0x01010101\ns_mov_b32 exec_hi, 0x01010101')
        for n in range(10): a(f'ds_write_b64 v{vPa if n < 8 else vPb}, {vr(XF+2*n,2)} offset:{640*(n&7)}')
        a('s_mov_b64 exec, -1')
    L = lambda *n: [a.label('p0_' + x) for x in n]
    b1, mod2, pack2, const2, late2, none2, stats_, flag3, xgo, b2, const1 = L('b1', 'mod2', 'pack2', 'const2', 'late2', 'none2', 'stats', 'flag3', 'xgo', 'b2', 'const1')
    a(f"""
    s_mov_b32 s{sRole}, 3
    s_cmp_eq_u32 s{sWave}, 7
    s_cbranch_scc1 {wconst}
    s_cmp_ge_u32 s{sWave}, 5
    s_cbranch_scc1 {wpack}
    s_cmp_eq_u32 s{sWave}, 4
    s_cbranch_scc1 {xload}
    """)
    NR = 5
    MP = opt.get('mpos', 0)
    acc = Scr(8); vM = Scr(); acc0, vM0 = acc, vM
    if MP: Scr.release(WF + 48)
    W = [Scr(4) for _ in range(NR)]; C = [Scr() for _ in range(NR)]; vR, vO = Scr(), Scr(); Cl = [Scr() for _ in range(NR)]
    def mod_loads():
        for i in range(NR):
            a(f'buffer_load_ushort v{C[i]}, v{vR}, {sr(sP,4)}, 0 offen offset:{16*i}')
        for i in range(NR):
            a(f'buffer_load_dwordx4 {vr(W[i],4)}, v{vO}, {sr(sQ,4)}, s{sJ} offen')
            if i < NR - 1: a(f's_add_u32 s{sJ}, s{sJ}, {8*7680}')
    def mod_fma(younger, acc=acc, vM=vM):
        a(f's_waitcnt vmcnt({NR + younger})')
        for i in range(NR): a(f'v_lshlrev_b32 v{C[i]}, 16, v{C[i]}')
        for i in range(NR): a(f'v_mul_f32 v{acc+i}, {hex(f2u(-1.4426950408889634))}, v{C[i]}')
        for i in range(NR): a(f'v_exp_f32 v{acc+i}, v{acc+i}')
        for i in range(NR): a(f'v_add_f32 v{acc+i}, 1.0, v{acc+i}')
        for i in range(NR): a(f'v_rcp_f32 v{acc+i}, v{acc+i}')
        for i in range(NR): a(f'v_mul_f32 v{C[i]}, v{C[i]}, v{acc+i}')
        for i in range(NR): a(f'v_cvt_pk_bf16_f32 v{C[i]}, v{C[i]}, v{C[i]}')
        for i in range(NR): a(f'v_and_b32 v{Cl[i]}, 0xffff, v{C[i]}\nv_and_b32 v{C[i]}, 0xffff0000, v{C[i]}')
        for i in range(NR):
            a(f's_waitcnt vmcnt({NR-1-i + younger})')
            for r in range(4):
                a(f'v_dot2_f32_bf16 v{acc+2*r}, v{W[i]+r}, v{Cl[i]}, {"v" + str(acc+2*r) if i else 0}')
                a(f'v_dot2_f32_bf16 v{acc+2*r+1}, v{W[i]+r}, v{C[i]}, {"v" + str(acc+2*r+1) if i else 0}')
        a('s_nop 0')
    def mod_partial(younger, acc, vM, sWave=sWave):
        mod_fma(younger, acc, vM)
        for e in range(8): a(f'v_add_f32_dpp v{acc+e}, v{acc+e}, v{acc+e} row_ror:8 row_mask:0xf bank_mask:0xf')
        a(f"""
        v_lshrrev_b32 v{vM}, 4, v{vLane}
        v_lshlrev_b32 v{vM}, 8, v{vM}
        v_and_b32 v{vR}, 7, v{vLane}
        v_lshl_add_u32 v{vM}, v{vR}, 5, v{vM}
        s_lshl_b32 s{sT}, s{sWave}, 10
        s_add_u32 s{sT}, s{sT}, {L_MPART}
        v_add_u32 v{vM}, s{sT}, v{vM}
        s_mov_b32 exec_lo, 0x00ff00ff
        s_mov_b32 exec_hi, 0x00ff00ff
        ds_write_b128 v{vM}, {vr(acc,4)}
        ds_write_b128 v{vM}, {vr(acc+4,4)} offset:16
        s_mov_b64 exec, -1
        """)
    def mod_final(R, vM, vR):
        a(f'v_lshlrev_b32 v{vM}, 2, v{vLane}\nv_add_u32 v{vR}, {L_MPART}, v{vM}')
        for i in range(16): a(f'ds_read_b32 v{R+i}, v{vR} offset:{256*i}')
        a(f"""
        s_and_b32 s{sT}, s{sK}, 3
        s_lshr_b32 s{sT2}, s{sK}, 2
        s_mul_i32 s{sJ}, s{sT2}, 26
        s_lshr_b32 s{sJ}, s{sJ}, 8
        s_bitcmp1_b32 0x12, s{sJ}
        s_cselect_b32 s{sJ}, 1.0, 0
        s_cmp_eq_u32 s{sT}, 0
        s_cselect_b32 s{sJ}, s{sJ}, 0
        s_mul_i32 s{sL}, s{sT}, {MODQ}
        s_lshl_b32 s{sSeg}, s{sT2}, 8
        s_add_u32 s{sL}, s{sL}, s{sSeg}
        s_add_u32 s{sL}, s{sL}, {WS_MODP}
        s_waitcnt lgkmcnt(0)
        """)
        for d in (8, 4, 2, 1):
            for i in range(d): a(f'v_add_f32 v{R+i}, v{R+i}, v{R+i+d}')
        a(f'v_add_f32 v{R}, s{sJ}, v{R}\nbuffer_store_dword v{R}, v{vM}, {WS}, s{sL} offen sc1')
    a(f"""
    s_mov_b32 s{sQ}, s{sP+2}
    s_mov_b32 s{sQ+1}, s{sP+3}
    """)
    srd(a, sQ, sQ, 640 * 7680); srd(a, sP, sP, 1280)
    def mod_addr(sWave=sWave):
        a(f"""
        s_and_b32 s{sT}, s{sK}, 3
        s_mul_i32 s{sT}, s{sT}, 160
        s_mul_i32 s{sT2}, s{sWave}, 40
        s_add_u32 s{sT}, s{sT}, s{sT2}
        v_lshrrev_b32 v{vR}, 3, v{vLane}
        v_add_u32 v{vR}, s{sT}, v{vR}
        v_mul_u32_u24 v{vO}, 7680, v{vR}
        v_and_b32 v{C[0]}, 7, v{vLane}
        v_lshl_add_u32 v{vO}, v{C[0]}, 4, v{vO}
        v_lshlrev_b32 v{vR}, 1, v{vR}
        s_lshr_b32 s{sJ}, s{sK}, 2
        s_lshl_b32 s{sJ}, s{sJ}, 7
        """)
    a(f"""
    s_cmp_ge_u32 s{sK}, 240
    s_cbranch_scc1 {xload}
    s_mov_b32 s{sRole}, {4 if MP else 3}
    s_cmp_ge_u32 s{sK}, 80
    s_cbranch_scc1 {xload}
    """)
    mod_addr(); mod_loads()
    a(f's_mov_b32 s{sRole}, 0\ns_branch {xload}\n{mod2}:')
    mod_partial(0, acc, vM)
    per = -(-N_CNT // 80)
    a(f"""
    s_mov_b64 exec, 1
    v_mov_b32 v{vS}, {L_MCNT}
    v_mov_b32 v{vS+1}, 1
    s_waitcnt lgkmcnt(0)
    ds_add_u32 v{vS}, v{vS+1}
    s_mov_b64 exec, -1
    """)
    tr(2)
    a(f"""
    s_mov_b32 s{sRole}, 3
    s_cmp_lg_u32 s{sWave}, 0
    s_cbranch_scc1 {xgo}
    s_mul_i32 s{sT}, s{sK}, {per}
    v_add_u32 v{vO}, s{sT}, v{vLane}
    v_min_u32 v{vO}, {N_CNT - 1}, v{vO}
    v_lshlrev_b32 v{vO}, 8, v{vO}
    v_mov_b32 v{vR}, 0
    s_mov_b32 s{sT}, {WS_FLAG}
    s_mov_b64 exec, {hex((1 << per) - 1)}
    buffer_store_dword v{vR}, v{vO}, {WS}, s{sT} offen sc1
    s_mov_b64 exec, -1
    """)
    lds_wait(a, vS, sT, L_MCNT, thr=4)
    mod_final(W[0], vM, vO)
    a(f"""
    s_lshl_b32 s{sW1}, s{sK}, 2
    s_add_u32 s{sW1}, s{sW1}, {F_MOD}
    s_mov_b32 s{sW0}, 0xff
    s_branch {flag3}
    """)
    pv, pst = L('pv', 'pst')
    a(f"""
    {wpack}:
    s_lshr_b32 s{sJ}, s{sWG}, 1
    s_lshl_b32 s{sJ}, s{sJ}, 1
    s_add_u32 s{sJ}, s{sJ}, s{sWave}
    s_sub_u32 s{sJ}, s{sJ}, 5
    s_cmp_ge_u32 s{sJ}, 240
    s_cbranch_scc1 {xload}
    s_setprio 3
    s_mul_i32 s{sT}, s{sJ}, 1093
    s_lshr_b32 s{sT}, s{sT}, 16
    s_mul_i32 s{sT2}, s{sT}, 60
    s_sub_u32 s{sJ}, s{sJ}, s{sT2}
    s_and_b32 s{sL}, s{sWG}, 1
    s_lshl_b32 s{sL}, s{sL}, 2
    s_add_u32 s{sL}, s{sL}, s{sT}
    s_lshl_b32 s{sW1}, s{sL}, 6
    s_add_u32 s{sW1}, s{sW1}, s{sJ}
    s_lshl_b32 s{sW1}, s{sW1}, 2
    s_add_u32 s{sW1}, s{sW1}, {F_PK}
    s_mul_i32 s{sSeg}, s{sJ}, 3277
    s_lshr_b32 s{sSeg}, s{sSeg}, 16
    s_mul_i32 s{sT2}, s{sSeg}, 20
    s_sub_u32 s{sJ}, s{sJ}, s{sT2}
    s_mul_i32 s{sW0}, s{sJ}, {32*3840}
    s_mul_i32 s{sT2}, s{sSeg}, 1280
    s_add_u32 s{sW0}, s{sW0}, s{sT2}
    s_mul_i32 s{sT2}, s{sL}, 160
    s_add_u32 s{sW0}, s{sW0}, s{sT2}
    s_mul_i32 s{sDst}, s{sL}, 15
    s_mul_i32 s{sT2}, s{sSeg}, 5
    s_add_u32 s{sDst}, s{sDst}, s{sT2}
    s_mul_i32 s{sDst}, s{sDst}, 20
    s_add_u32 s{sDst}, s{sDst}, s{sJ}
    s_lshl_b32 s{sDst}, s{sDst}, 10
    s_add_u32 s{sDst}, s{sDst}, {WS_PQKV}
    s_sub_u32 s{sL}, s{sWave}, 5
    s_mul_i32 s{sL}, s{sL}, {PACK5_LDS}
    s_add_u32 s{sL}, s{sL}, {L_PSTAGE}
    """)
    srd(a, sQ, sQ, 640 * 3840)
    mk = Scr.mark(); Scr.release(vS + 4)
    vD, vDt = Scr(), Scr()
    pack5_addr(a, vD, vLane, 3840, vDt)
    pack5_load(a, vD, sQ, sW0, sL, sT, sT2, lambda sD, g, jh: a(f's_mov_b32 s{sD}, {(8*g + 4*jh) * 3840}'))
    a(f's_mov_b32 s{sRole}, 1\ns_mov_b32 s{sW0}, 1\ns_branch {xload}\n{pack2}:')
    a(f's_cmp_eq_u32 s{sSeg}, 2\ns_cbranch_scc1 {pv}')
    pack5_store(a, Scr, vLane, ws, sL, 'qk', sDst, 20480, st)
    a(f's_branch {pst}\n{pv}:')
    pack5_store(a, Scr, vLane, ws, sL, 'natural', sDst, 20480, st)
    a(f'{pst}:')
    a(f'{flag3}:')
    tr(8)
    a(f"""
    s_add_u32 s{sT}, s{sNonce}, 1
    v_mov_b32 v{vS+1}, s{sT}
    v_lshlrev_b32 v{vS}, 10, v{vLane}
    s_waitcnt vmcnt(0)
    s_mov_b32 exec_lo, s{sW0}
    s_mov_b32 exec_hi, 0
    buffer_store_dword v{vS+1}, v{vS}, {WS}, s{sW1} offen sc1
    s_mov_b64 exec, -1
    """)
    tr(3)
    a(f's_setprio 0\ns_mov_b32 s{sRole}, 3\ns_branch {xgo}')
    a(f'{wconst}:\ns_mov_b32 s{sRole}, 2\ns_branch {xload}\n{const2}:')
    one = Scr(4, 4); vK = Scr()
    for r in range(4): a(f'v_mov_b32 v{one+r}, 0x3f803f80')
    a(f"""
    v_lshrrev_b32 v{vK}, 1, v{vLane}
    v_lshlrev_b32 v{vK}, 6, v{vK}
    v_and_b32 v{vS+2}, 1, v{vLane}
    v_add_u32 v{vK}, v{vK}, v{vS+2}
    v_mul_u32_u24 v{vK}, {KVT}, v{vK}
    s_lshl_b32 s{sT}, s{sCb}, 8
    s_lshl_b32 s{sT2}, s{sRb}, 1
    s_add_u32 s{sT}, s{sT}, s{sT2}
    s_mul_i32 s{sT}, s{sT}, {KVT}
    s_add_u32 s{sT}, s{sT}, {WS_KV + KV_ONE}
    s_mov_b64 exec, 0xff
    buffer_store_dwordx4 {vr(one,4)}, v{vK}, {WS}, s{sT} offen sc1
    s_mov_b64 exec, -1
    """)
    npf = ctx['code_prefetch'](Scr, sP, sT)
    a(f"""
    s_waitcnt vmcnt({1 + npf})
    s_branch {stats_}
    {xload}:
    """)
    if not opt.get('noba'): a('s_barrier')
    tr(11)
    a(f"""
    s_cmp_eq_u32 s{sRole}, 0
    s_cbranch_scc1 {mod2}
    s_cmp_eq_u32 s{sRole}, 1
    s_cbranch_scc1 {pack2}
    {xgo}:
    """)
    tr(12)
    XD = opt.get('xdma', 0)
    if XD:
        nx, lx = L('nox', 'lx')
        a(f"""
        s_cmp_eq_u32 s{sWave}, 4
        s_cselect_b32 s{sT}, 0, 5
        s_cmp_lt_u32 s{sWave}, 4
        s_cbranch_scc1 {nx}
        s_bitcmp1_b32 0x60, s{sWave}
        s_cbranch_scc1 {nx}
        s_mul_i32 s{sA}, s{sRb}, {64*1280}
        s_lshl_b32 s{sT2}, s{sT}, 7
        s_add_u32 s{sA}, s{sA}, s{sT2}
        s_lshl_b32 s{sT}, s{sT}, 13
        s_mov_b32 s{sB}, 5
        {lx}:
        """)
        for n in range(8):
            a(f's_mov_b32 m0, s{sT}\ns_add_u32 s{sT}, s{sT}, 1024\nbuffer_load_dwordx4 v{vXa}, {sr(sX,4)}, s{sA} offen lds\ns_add_u32 s{sA}, s{sA}, {8*1280 if n < 7 else (128 - 7*8*1280) & 0xffffffff}')
        a(f's_sub_u32 s{sB}, s{sB}, 1\ns_cmp_lg_u32 s{sB}, 0\ns_cbranch_scc1 {lx}\n{nx}:')
    else: ldX_all()
    addr_setup()
    if 'early' in ctx: ctx['early']()
    tr(13)
    a(f"""
    s_cmp_eq_u32 s{sRole}, 2
    s_cbranch_scc1 {const2}
    s_waitcnt vmcnt(0)
    {stats_}:
    """)
    if XD:
        a(f"""
        s_lshl_b32 s{sT}, s{sWave}, 13
        v_add_u32 v{XF}, s{sT}, v{vL16}
        s_lshl_b32 s{sT}, s{sI2}, 13
        s_lshl_b32 s{sT2}, s{sTg}, 10
        s_add_u32 s{sT}, s{sT}, s{sT2}
        v_add_u32 v{XF+1}, s{sT}, v{vL16}
        s_barrier
        """)
        for n in range(10): a(f'ds_read_b128 {vr(X+4*n,4)}, v{XF + (n >> 3)} offset:{1024*(n&7)}')
        a('s_waitcnt lgkmcnt(0)')
    tr(10)
    if MP:
        a(f's_cmp_lg_u32 s{sRole}, 4\ns_cbranch_scc1 {late2}')
        mod_addr(); mod_loads()
        a(f'{late2}:')
    x_stats()
    a(f"""
    {b1}:
    s_waitcnt lgkmcnt(0)
    s_barrier
    """)
    tr(4)
    a(f's_cmp_lg_u32 s{sWave}, 4\ns_cbranch_scc1 {b2}')
    sp = XF + 20
    a(f'v_mul_u32_u24 v{vM}, 80, v{vLane}\nv_add_u32 v{vM}, {L_SPART}, v{vM}')
    for i in range(5): a(f'ds_read_b128 {vr(sp+4*i,4)}, v{vM} offset:{16*i}')
    a(f'v_lshlrev_b32 v{vM}, 3, v{vLane}\nv_add_u32 v{vM}, {L_STAT}, v{vM}\ns_waitcnt lgkmcnt(0)')
    for i in range(1, 10): a(f'v_add_f32 v{sp}, v{sp}, v{sp+2*i}\nv_add_f32 v{sp+1}, v{sp+1}, v{sp+2*i+1}')
    a(f"""
    v_mul_f32 v{sp+2}, {hex(f2u(1/640))}, v{sp}
    v_mul_f32 v{sp+1}, {hex(f2u(1/640))}, v{sp+1}
    v_fma_f32 v{sp+1}, -v{sp+2}, v{sp+2}, v{sp+1}
    v_max_f32 v{sp+1}, 0, v{sp+1}
    v_add_f32 v{sp+1}, {hex(f2u(1e-5))}, v{sp+1}
    v_rsq_f32 v{sp}, v{sp+1}
    s_nop 0
    v_mul_f32_e64 v{sp+1}, -v{sp+2}, v{sp}
    ds_write_b64 v{vM}, {vr(sp,2)}
    {b2}:
    s_waitcnt lgkmcnt(0)
    s_barrier
    s_add_u32 s{sNonce}, s{sNonce}, 1
    """)
    tr(5)
    def normalise():
        def rdS(n):
            a(f'ds_read_b64 {vr(PR+2*(n%3),2)}, v{vSa if n < 8 else vSb} offset:{64*(n&7)}')
        rdS(0); rdS(1)
        for n in range(10):
            pr = PR + 2 * (n % 3)
            for r in range(4):
                a(f'v_lshlrev_b32 v{XF+8*n+2*r}, 16, v{X+4*n+r}\nv_and_b32 v{XF+8*n+2*r+1}, 0xffff0000, v{X+4*n+r}')
            a(f's_waitcnt lgkmcnt({1 if n < 9 else 0})')
            for r in range(4):
                a(f'v_pk_fma_f32 {vr(XF+8*n+2*r,2)}, {vr(XF+8*n+2*r,2)}, {vr(pr,2)}, {vr(pr,2)} op_sel:[0,0,1] op_sel_hi:[1,0,1]')
            if n < 8: rdS(n + 2)
    if opt.get('normfirst', 0): normalise()
    a(f"""
    s_lshl_b32 s{sT2}, s{sWave}, 2
    s_lshr_b32 s{sW0}, 0xeca47520, s{sT2}
    s_and_b32 s{sW0}, s{sW0}, 15
    s_lshr_b32 s{sW1}, 0xedb98631, s{sT2}
    s_and_b32 s{sW1}, s{sW1}, 15
    s_mul_i32 s{sT2}, s{sCb}, 15
    s_add_u32 s{sW0}, s{sW0}, s{sT2}
    s_add_u32 s{sW1}, s{sW1}, s{sT2}
    s_mul_i32 s{sW0}, s{sW0}, 20480
    s_mul_i32 s{sW1}, s{sW1}, 20480
    s_add_u32 s{sW0}, s{sW0}, {WS_PQKV}
    s_add_u32 s{sW1}, s{sW1}, {WS_PQKV}
    s_cmp_eq_u32 s{sWave}, 7
    s_cselect_b32 s{sW1}, 0x40000000, s{sW1}
    """)
    vm = Cnt(a, 'vmcnt', 63)
    def ldW(s_):
        vm.issue(('W', s_), f'buffer_load_dwordx4 {vr(WF+8*(s_%NW),4)}, v{vL16}, {WS}, s{sW0} offen offset:{1024*(s_&3)} {ld}')
        vm.issue(('W', s_), f'buffer_load_dwordx4 {vr(WF+8*(s_%NW)+4,4)}, v{vL16}, {WS}, s{sW1} offen offset:{1024*(s_&3)} {ld}')
        if s_ & 3 == 3 and s_ < 19: a(f's_add_u32 s{sW0}, s{sW0}, 4096\ns_add_u32 s{sW1}, s{sW1}, 4096')
    NPRE = opt.get('npre', 6 if MP else 8); NP0 = opt.get('np0', 4)
    w7, b3 = a.label('p0_w7'), a.label('p0_b3')
    tr(14)
    a(f's_cmp_eq_u32 s{sWave}, 7\ns_cbranch_scc1 {w7}')
    lds_wait(a, PR, sT, L_GO)
    a(f's_branch {b3}\n{w7}:')
    F = PR
    lp, out = a.label('p0_fp'), a.label('p0_fpo')
    a(f"""
    v_lshlrev_b32 v{vPa}, 2, v{vLane}
    v_min_u32 v{vPb}, 15, v{vLane}
    v_lshlrev_b32 v{vPb}, 2, v{vPb}
    v_min_u32 v{vXa}, 59, v{vLane}
    v_lshlrev_b32 v{vXa}, 2, v{vXa}
    s_and_b32 s{sT}, s{sWG}, 7
    s_lshl_b32 s{sT}, s{sT}, 10
    s_add_u32 s{sT}, s{sT}, {F_MOD}
    s_lshl_b32 s{sT2}, s{sCb}, 8
    s_add_u32 s{sT2}, s{sT2}, {F_PK}
    s_mov_b32 s{sJ}, {SPIN}
    {lp}:
    buffer_load_dword v{F}, v{vPa}, {WS}, s{sT} offen sc1
    buffer_load_dword v{F+1}, v{vPb}, {WS}, s{sT} offen offset:256 sc1
    buffer_load_dword v{F+2}, v{vXa}, {WS}, s{sT2} offen sc1
    s_sub_u32 s{sJ}, s{sJ}, 1
    s_cbranch_scc1 {out}
    s_waitcnt vmcnt(0)
    v_xor_b32 v{F}, s{sNonce}, v{F}
    v_xor_b32 v{F+1}, s{sNonce}, v{F+1}
    v_xor_b32 v{F+2}, s{sNonce}, v{F+2}
    v_or3_b32 v{F}, v{F}, v{F+1}, v{F+2}
    v_cmp_ne_u32 vcc, 0, v{F}
    s_nop 0
    s_cbranch_vccnz {lp}
    {out}:
    s_waitcnt vmcnt(0)
    v_mov_b32 v{F}, {L_GO}
    v_mov_b32 v{F+1}, 1
    ds_write_b32 v{F}, v{F+1}
    {b3}:
    """)
    tr(6)
    nt_ = a.label('p0_notab')
    TP = WF + 8 * NP0
    a(f's_cmp_ge_u32 s{sWave}, 5\ns_cselect_b32 s{sT}, 0x40000000, {WS_MODP}\ns_lshl_b32 s{sT2}, s{sWave}, 10\ns_add_u32 s{sT}, s{sT}, s{sT2}')
    for i in range(4):
        a(f'buffer_load_dwordx4 {vr(TP+4*i,4)}, v{vL16}, {WS}, s{sT} offen {ld}')
        if i < 3: a(f's_add_u32 s{sT}, s{sT}, {MODQ}')
    for s_ in range(NP0): ldW(s_)
    if not opt.get('normfirst', 0): normalise()
    a(f'''
    s_add_u32 s{sT2}, s{sT2}, {L_TAB}
    v_add_u32 v{PR}, s{sT2}, v{vL16}
    s_cmp_ge_u32 s{sWave}, 5
    s_cbranch_scc1 {nt_}
    s_waitcnt vmcnt({2*NP0})
    ''')
    for r in range(4): a(f'v_add_f32 v{TP+r}, v{TP+r}, v{TP+4+r}\nv_add_f32 v{TP+8+r}, v{TP+8+r}, v{TP+12+r}')
    for r in range(4): a(f'v_add_f32 v{TP+r}, v{TP+r}, v{TP+8+r}')
    a(f'ds_write_b128 v{PR}, {vr(TP,4)}\n{nt_}:\ns_waitcnt vmcnt({2*NP0}) lgkmcnt(0)\ns_barrier')
    stamp()
    tr(7)
    for b, ad in ((0, vX1), (1, vH2)):
        for h in range(2):
            a(f'ds_read_b128 {vr(CB[b]+4*h,4)}, v{ad} offset:{2560 + 16*h}')
            a(f'ds_read_b128 {vr(CB[b]+8+4*h,4)}, v{ad} offset:{16*h}')
    for n in range(10):
        c = CB[n >> 3]
        if n == 0: a('s_waitcnt lgkmcnt(4)')
        if n == 8: a('s_waitcnt lgkmcnt(8)')
        if NP0 + n < NPRE: ldW(NP0 + n)
        for r in range(4):
            a(f'v_pk_fma_f32 {vr(XF+8*n+2*r,2)}, {vr(XF+8*n+2*r,2)}, {vr(c+2*r,2)}, {vr(c+8+2*r,2)}')
        for r in range(4):
            a(f'v_cvt_pk_bf16_f32 v{XF+8*n+r}, v{XF+8*n+2*r}, v{XF+8*n+2*r+1}')
        if n == 8: a(f'v_mov_b32 v{vH1}, v{vT3}\nv_xor_b32 v{vH0}, 128, v{vT3}')
        a(f'ds_write_b128 v{vH0 if n & 1 else vH1}, {vr(XF+8*n,4)} offset:{1024*((n&7)>>1)}')
    V.release(m2)
    ACT = [V(16, 4), V(16, 4), V(16, 4)]; ACC = V(32, 4)
    lI, lG = V(), V()
    a(f'''
    v_and_b32 v{lI}, 15, v{vLane}
    v_lshrrev_b32 v{lG}, 4, v{vLane}
    v_xor_b32 v{vH0}, v{lI}, v{lG}
    v_lshlrev_b32 v{vH0}, 4, v{vH0}
    v_lshl_add_u32 v{vH0}, v{lG}, 8, v{vH0}
    v_xor_b32 v{vH1}, {12*16}, v{vH0}
    s_waitcnt lgkmcnt(0)
    s_barrier
    ''')
    stamp()
    if MP:
        assert NPRE <= 6
        nl = a.label('p0_nolate')
        a(f's_cmp_lg_u32 s{sRole}, 4\ns_cbranch_scc1 {nl}')
        mod_partial(len(vm.q), ACC, vT3)
        a(f'{nl}:')
    q0 = list(vm.q)
    lv, lv1, fin = [a.label(x) for x in ('qkv_v', 'qkv_v1', 'qkv_fin')]
    def loop(swap, nt):
        def rd(s_):
            vh = vH1 if s_ & 1 else vH0
            return [f'ds_read_b128 {vr(ACT[s_%3]+4*tt,4)}, v{vh} offset:{(s_&15)*4096 + tt*1024}' for tt in range(4)]
        a('\n'.join(rd(0) + rd(1)))
        vm.q = list(q0)
        for s_ in range(20):
            if opt.get('ladder', 1) and s_ % 5 == 0: a(f's_setprio {3 - s_ // 5}')
            n_ = vm.need(('W', s_))
            a(f's_waitcnt {"" if n_ is None else f"vmcnt({n_})"} lgkmcnt({4 if s_ < 19 else 0})')
            if s_ == 14: a(f'v_add_u32 v{vH0}, 65536, v{vH0}')
            if s_ == 15: a(f'v_add_u32 v{vH1}, 65536, v{vH1}')
            R_ = rd(s_ + 2) if s_ < 18 else []
            if nt == 1 and s_ == opt.get('mtouch', -1):
                a(f'''
                s_mov_b32 s{sQ}, s{sP+2}
                s_mov_b32 s{sQ+1}, s{sP+3}
                s_mov_b32 s{sQ+2}, {640 * 7680}
                s_mov_b32 s{sQ+3}, 0x20000
                s_and_b32 s{sT}, s{sK}, 3
                s_mul_i32 s{sT}, s{sT}, {160 * 7680}
                s_lshr_b32 s{sT2}, s{sK}, 2
                s_lshl_b32 s{sT2}, s{sT2}, 7
                s_add_u32 s{sT}, s{sT}, s{sT2}
                s_sub_u32 s{sT2}, s{sK}, 80
                s_cmp_ge_u32 s{sT2}, 160
                s_cselect_b32 s{sT}, 0x40000000, s{sT}
                v_lshrrev_b32 v{vT}, 1, v{vLane}
                v_mul_u32_u24 v{vT}, 7680, v{vT}
                v_and_b32 v{vT2}, 1, v{vLane}
                v_lshl_add_u32 v{vT}, v{vT2}, 6, v{vT}
                ''')
                for i in range(5):
                    vm.issue('M', f'buffer_load_dword v{vT3}, v{vT}, {sr(sQ,4)}, s{sT} offen')
                    if i < 4: a(f's_add_u32 s{sT}, s{sT}, {32 * 7680}')
            for tt in range(4):
                for t in range(nt):
                    A_, B_ = vr(WF + 8*(s_%NW) + 4*t, 4), vr(ACT[s_%3] + 4*tt, 4)
                    if swap: A_, B_ = B_, A_
                    c = vr(ACC + 16*t + 4*tt, 4)
                    a(f'v_mfma_f32_16x16x32_bf16 {c}, {A_}, {B_}, {c if s_ else 0}')
                    if t == 0 and R_: a(R_[tt])
                    if t == nt - 1 and tt == 1 and s_ + NPRE < 20: ldW(s_ + NPRE)
        a('s_nop 6')
        if 'stamp' in ctx: stamp.at(3)
    a(f's_cmp_ge_u32 s{sWave}, 5\ns_cbranch_scc1 {lv}')
    loop(False, 2)
    lk, lleft = a.label('qkv_st_k'), a.label('qkv_st_left')
    a(f'''
    v_bfe_u32 v{vT2}, v{lI}, 2, 2
    v_and_b32 v{vT3}, 3, v{lI}
    v_lshl_add_u32 v{vT2}, v{vT2}, 3, v{vT3}
    s_lshl_b32 s{sT}, s{sCb}, 8
    s_lshl_b32 s{sT2}, s{sRb}, 1
    s_add_u32 s{sT}, s{sT}, s{sT2}
    s_cmp_eq_u32 s{sWave}, 4
    s_cbranch_scc1 {lleft}
    s_and_b32 s{sT2}, s{sWave}, 1
    s_lshl_b32 s{sT2}, s{sT2}, 7
    s_add_u32 s{sT}, s{sT}, s{sT2}
    v_lshrrev_b32 v{vT}, 1, v{lG}
    v_and_b32 v{vT3}, 1, v{lG}
    s_cmp_ge_u32 s{sWave}, 2
    s_cbranch_scc1 {lk}
    s_mul_i32 s{sT}, s{sT}, {QT}
    s_add_u32 s{sT}, s{sT}, {WS_Q}
    v_mul_u32_u24 v{vT}, {64*QT}, v{vT}
    v_lshl_add_u32 v{vT}, v{vT3}, 9, v{vT}
    v_lshl_add_u32 v{vT}, v{lI}, 4, v{vT}
    s_mov_b32 s{sT2}, {hex(f2u(QSCALE))}
    ''')
    for r in range(32): a(f'v_mul_f32 v{ACC+r}, s{sT2}, v{ACC+r}')
    def st_main(stride, tokoff):
        for tt in range(4):
            d = ACT[0] + 4 * tt
            for t in range(2):
                for r in range(2): a(f'v_cvt_pk_bf16_f32 v{d+2*t+r}, v{ACC+16*t+4*tt+2*r}, v{ACC+16*t+4*tt+2*r+1}')
            a(f'buffer_store_dwordx4 {vr(d,4)}, v{vT}, {WS}, s{sT} offen offset:{(tt>>1)*stride + (tt&1)*tokoff} {st}')
    st_main(QT, 256)
    a(f'''
    s_branch {fin}
    {lk}:
    s_mul_i32 s{sT}, s{sT}, {KVT}
    s_add_u32 s{sT}, s{sT}, {WS_KV + KV_K1}
    v_mul_u32_u24 v{vT}, {64*KVT}, v{vT}
    v_lshl_add_u32 v{vT}, v{vT3}, 9, v{vT}
    v_lshl_add_u32 v{vT}, v{vT2}, 4, v{vT}
    ''')
    st_main(KVT, 64)
    a(f'''
    s_branch {fin}
    {lleft}:
    s_mul_i32 s{sL}, s{sT}, {KVT}
    s_add_u32 s{sL}, s{sL}, {WS_KV + KV_K2}
    s_mul_i32 s{sT}, s{sT}, {QT}
    s_add_u32 s{sT}, s{sT}, {WS_Q + 1024}
    v_mul_u32_u24 v{vT}, {64*QT}, v{lG}
    v_lshl_add_u32 v{vT}, v{lI}, 3, v{vT}
    v_mul_u32_u24 v{vT3}, {64*KVT}, v{lG}
    v_lshl_add_u32 v{vT3}, v{vT2}, 3, v{vT3}
    s_mov_b32 s{sT2}, {hex(f2u(QSCALE))}
    ''')
    for r in range(16): a(f'v_mul_f32 v{ACC+r}, s{sT2}, v{ACC+r}')
    for tt in range(4):
        d = ACT[0] + 4 * tt
        for t in range(2):
            for r in range(2): a(f'v_cvt_pk_bf16_f32 v{d+2*t+r}, v{ACC+16*t+4*tt+2*r}, v{ACC+16*t+4*tt+2*r+1}')
        a(f'buffer_store_dwordx2 {vr(d,2)}, v{vT}, {WS}, s{sT} offen offset:{(tt>>1)*QT + (tt&1)*128} {st}')
        a(f'buffer_store_dwordx2 {vr(d+2,2)}, v{vT3}, {WS}, s{sL} offen offset:{(tt>>1)*KVT + (tt&1)*32} {st}')
    a(f's_branch {fin}')
    def st_v(nt):
        a(f'''
        s_lshl_b32 s{sT}, s{sCb}, 8
        s_lshl_b32 s{sT2}, s{sRb}, 1
        s_add_u32 s{sT}, s{sT}, s{sT2}
        s_mul_i32 s{sT}, s{sT}, {KVT}
        s_add_u32 s{sT}, s{sT}, {WS_KV + KV_V}
        s_sub_u32 s{sT2}, s{sWave}, 5
        s_lshl_b32 s{sT2}, s{sT2}, 5
        ''')
        for t in range(nt):
            a(f'v_add_u32 v{vT2}, s{sT2}, v{lI}')
            if t: a(f'v_add_u32 v{vT2}, 16, v{vT2}')
            udiv(a, vT3, vT2, 20, 128)
            a(f'''
            v_mul_u32_u24 v{vT}, {64*KVT - 320}, v{vT3}
            v_lshl_add_u32 v{vT}, v{vT2}, 4, v{vT}
            v_mul_u32_u24 v{vT3}, 320, v{lG}
            v_add_u32 v{vT}, v{vT}, v{vT3}
            ''')
            for kt in range(2):
                d = ACT[0] + 8 * t + 4 * kt
                for h in range(2):
                    for r in range(2): a(f'v_cvt_pk_bf16_f32 v{d+2*h+r}, v{ACC+16*t+4*(2*kt+h)+2*r}, v{ACC+16*t+4*(2*kt+h)+2*r+1}')
                a(f'buffer_store_dwordx4 {vr(d,4)}, v{vT}, {WS}, s{sT} offen offset:{kt*KVT} {st}')
    a(f'''
    {lv}:
    s_cmp_eq_u32 s{sWave}, 7
    s_cbranch_scc1 {lv1}
    ''')
    loop(True, 2); st_v(2)
    a(f's_branch {fin}\n{lv1}:')
    loop(True, 1); st_v(1)
    a(f'{fin}:')
    def deferred(gate):
        nf, nob = a.label('qkv_nofin'), a.label('qkv_nob')
        a(f"""
        s_cmp_lt_u32 s{sK}, 80
        s_cbranch_scc1 {nf}
        s_cmp_ge_u32 s{sK}, 240
        s_cbranch_scc1 {nf}
        """)
        if MP: a(f's_cmp_lg_u32 s{sWave}, 4\ns_cbranch_scc1 {nf}')
        else:
            a(f"""
            s_load_dwordx4 s[{sP}:{sP+3}], s[0:1], {ARG_C}
            s_sub_u32 s{sW0}, s{sWave}, 4
            s_waitcnt lgkmcnt(0)
            s_mov_b32 s{sQ}, s{sP+2}
            s_mov_b32 s{sQ+1}, s{sP+3}
            """)
            srd(a, sQ, sQ, 640 * 7680); srd(a, sP, sP, 1280)
            mod_addr(sW0)
            gate(vS, sT2, sT)
            mod_loads()
            mod_partial(0, acc0, vM0, sW0)
            a(f"""
            s_mov_b64 exec, 1
            v_mov_b32 v{vS}, {L_MCNT}
            v_mov_b32 v{vS+1}, 1
            s_waitcnt lgkmcnt(0)
            ds_add_u32 v{vS}, v{vS+1}
            s_mov_b64 exec, -1
            s_cmp_lg_u32 s{sWave}, 4
            s_cbranch_scc1 {nf}
            """)
            lds_wait(a, vS, sT, L_MCNT, thr=4, sleep=2)
        acc, vM, vR = WF + 4, WF + 20, WF + 21
        mod_final(acc, vM, vR)
        a(f"""
        s_lshl_b32 s{ctx['sSig']}, s{sK}, 2
        s_add_u32 s{ctx['sSig']}, s{ctx['sSig']}, {F_MOD}
        s_sub_u32 s{sJ}, s{sT2}, 30
        s_cmp_ge_u32 s{sJ}, 20
        s_cbranch_scc1 {nob}
        s_cmp_ge_u32 s{sJ}, 10
        s_cselect_b32 s{sL}, 10, 0
        s_cselect_b32 s{sSeg}, 0, 128
        s_sub_u32 s{sJ}, s{sJ}, s{sL}
        s_lshl_b32 s{sJ}, s{sJ}, 11
        s_add_u32 s{sJ}, s{sJ}, s{sSeg}
        s_lshl_b32 s{sT}, s{sT}, 5
        s_add_u32 s{sJ}, s{sJ}, s{sT}
        s_add_u32 s{sJ}, s{sJ}, {WS_MODB}
        v_cvt_pk_bf16_f32 v{acc+1}, v{acc}, v{acc}
        v_lshrrev_b32 v{vM}, 3, v{vLane}
        v_and_b32 v{vR}, 7, v{vLane}
        v_and_b32 v{acc+2}, 0xffff0000, v{acc+1}
        v_lshlrev_b32 v{vM}, 8, v{vM}
        v_sub_f32 v{acc+2}, v{acc}, v{acc+2}
        v_lshl_add_u32 v{vM}, v{vR}, 1, v{vM}
        v_cvt_pk_bf16_f32 v{acc+2}, v{acc+2}, v{acc+2}
        buffer_store_short v{acc+1}, v{vM}, {WS}, s{sJ} offen sc1
        buffer_store_short v{acc+2}, v{vM}, {WS}, s{sJ} offen offset:16 sc1
        {nob}:
        s_mov_b64 exec, 0xff
        v_lshlrev_b32 v{vM}, 10, v{vLane}
        v_mov_b32 v{vR}, s{sNonce}
        s_waitcnt vmcnt(0)
        buffer_store_dword v{vR}, v{vM}, {WS}, s{ctx['sSig']} offen sc1
        s_mov_b64 exec, -1
        {nf}:
        """)
    ctx['deferred'].append(deferred)
    V.release(mv); Sg.release(ms)
```

```python
from build import *
from attn import *
from qkv import *
from helpers import *
from proj import *
from gateup import *
from sync import *

L_STAGE = 106496
L_PART = L_STAGE + ATTN_LDS
L_WORD = L_PART + HLP_P
MEGA_LDS = 163840

def k_main(opt, code_bytes):
    k = Kernel(NAME + '_kernel', 256, 512, MEGA_LDS)
    a, V, Sg = k.a, k.V, k.S
    ctx = prologue(k, 256)
    ctx['sX'], ctx['sOut'], ctx['sSig'], ctx['sNonce'] = Sg(4), Sg(4), Sg(), Sg()
    sWave = ctx['sWave']
    a(f's_load_dwordx2 {sr(ctx["sX"],2)}, s[0:1], {ARG_X}\ns_load_dwordx2 {sr(ctx["sOut"],2)}, s[0:1], {ARG_OUT}')
    srd(a, ctx['sOut'], ctx['sOut'], S * 1280)
    ctx['st_flags'] = 'sc1'
    if 'dbg' in opt: ctx['stamp_dbg'] = opt['dbg']; ctx['dbg_cyc'] = opt.get('cyc', 0)
    ctx['warm'] = opt.get('warm', 0)
    ctx['hthr'] = opt.get('hthr', 4)
    for x in opt:
        if x.startswith('x_') or x in ('hprio', 'polldepth', 'pollgap'): ctx[x] = opt[x]
    ctx['ld_flags'] = 'sc1' if opt.get('sc1ld') else ''
    if opt.get('stamp'): ctx['stamp'] = Stamps(k, ctx, 1, 16); ctx['stamp']()
    stamp = ctx.get('stamp', lambda: None)
    if opt.get('trace'):
        tr = Stamps(k, ctx, 1, 16); tr()
        ctx['trace_phase'] = opt['trace']; ctx['trobj'] = tr
        ctx['tr'] = lambda ph, i=None: (tr() if i is None else tr.at(i)) if ph == opt['trace'] and (i is not None or tr.i < 15) else None
    else: ctx['tr'] = lambda ph, i=None: None
    def code_prefetch(R, s, sT):
        if opt.get('nopf'): return 0
        per = -(-code_bytes // (32 * 1024))
        v = R(); d = R(4, 4)
        a(f'''
        s_getpc_b64 s[{s}:{s+1}]
        L_pc:
        s_sub_u32 s{s}, s{s}, L_pc-{k.name}
        s_subb_u32 s{s+1}, s{s+1}, 0
        s_lshr_b32 s{sT}, s2, 3
        s_mul_i32 s{sT}, s{sT}, {per*1024}
        v_lshlrev_b32 v{v}, 4, v{ctx['vLane']}
        v_add_u32 v{v}, s{sT}, v{v}
        v_min_u32 v{v}, {code_bytes - (per-1)*1024 - 16}, v{v}
        ''')
        for i in range(per): a(f'global_load_dwordx4 {vr(d,4)}, v{v}, s[{s}:{s+1}] offset:{1024*i}')
        return per
    ctx['code_prefetch'] = code_prefetch
    m, ms = V.mark(), Sg.mark()
    vS = V(4, 2); sT, sT2, sT3 = Sg(), Sg(), Sg()
    hl, nw0, go, p3 = a.label('helpers'), a.label('m_nw0'), a.label('m_go'), a.label('m_p3')
    mA = V.mark()
    H = Helpers(a, V, Sg, ctx, L_PART, L_COEF, L_WORD + 4)
    mt = (V.mark(), Sg.mark())
    tv, ts = V(), Sg(11, 4)
    def early():
        H.setup(tv, ts)
    later = []
    gen_qkv(a, V, Sg, dict(ctx, early=early, deferred=later), opt)
    V.release(mt[0]); Sg.release(mt[1])
    a(f'''
    v_mov_b32 v{vS}, {L_WORD}
    v_mov_b32 v{vS+2}, 0
    v_mov_b32 v{vS+3}, 0
    ds_write_b64 v{vS}, {vr(vS+2,2)}
    s_waitcnt vmcnt(0) lgkmcnt(0)
    s_barrier
    ''')
    if 'stamp' in ctx: stamp.at(4)
    a(f's_cmp_ge_u32 s{sWave}, 4\ns_cbranch_scc1 {hl}')
    def wait_qkv():
        a(f's_cmp_lg_u32 s{sWave}, 0\ns_cbranch_scc1 {nw0}')
        qkv_ids(a, 2, sT2, sT, sT3)
        cnt_sig(a, sT, C_QKV, sT, sT2, sT3)
        signal(a, ctx, sT, vS, NREP)
        a(f's_and_b32 s{sT}, s2, 7')
        cnt_poll(a, sT, C_QKV, sT, sT2)
        poll(a, ctx, sT, NSH, 4, vS, sT2)
        a(f'''
        v_mov_b32 v{vS}, {L_WORD}
        v_mov_b32 v{vS+1}, 1
        ds_write_b32 v{vS}, v{vS+1}
        s_branch {go}
        {nw0}:
        ''')
        lds_spin(vS, sT2)
        a(f'{go}:\ns_waitcnt lgkmcnt(0)')
    def lds_spin(v, s, thr='1', sleep=1):
        lp, out = a.label('m_spin'), a.label('m_spin_out')
        a(f'''
        v_mov_b32 v{v}, {L_WORD}
        s_mov_b32 s{s}, {SPIN * 8}
        {lp}:
        ds_read_b32 v{v+1}, v{v}
        s_sub_u32 s{s}, s{s}, 1
        s_cbranch_scc1 {out}
        s_waitcnt lgkmcnt(0)
        v_cmp_gt_u32 vcc, {thr}, v{v+1}
        s_sleep {sleep}
        s_cbranch_vccnz {lp}
        {out}:
        s_waitcnt lgkmcnt(0)
        ''')
    def helper_gate(v, s, sThr, sHw, job):
        base, per, perw = {'L': (opt.get('gL', 2), opt.get('gLp', 4), opt.get('gLw', 1)), 'B': (0, 0, 0), 'W': (opt.get('gW', 12), opt.get('gWp', 1), opt.get('gWw', 1))}[job]
        if base == 0: return
        if job == 'L':
            a(f's_lshl_b32 s{sThr}, s{sHw}, 2\ns_lshr_b32 s{sThr}, 0x3102, s{sThr}\ns_and_b32 s{sThr}, s{sThr}, 3\ns_mul_i32 s{sThr}, s{sThr}, {per}')
        else: a(f's_mul_i32 s{sThr}, s{sHw}, {per}')
        a(f's_bfe_u32 s{s}, s2, 0x20003\ns_mul_i32 s{s}, s{s}, {perw}\ns_add_u32 s{sThr}, s{sThr}, s{s}\ns_add_u32 s{sThr}, s{sThr}, {base}')
        lds_spin(v, s, f's{sThr}', 4)
    mh = V.mark(); V.release(mA)
    vP = V(2)
    a(f'v_mov_b32 v{vP}, {L_WORD}\nv_mov_b32 v{vP+1}, 0\ns_cmp_eq_u32 s{sWave}, 0\ns_cselect_b32 s{sT}, 1, 0\nv_writelane_b32 v{vP+1}, s{sT}, 0')
    c2 = dict(ctx, wait_inputs=wait_qkv, lds_base=L_STAGE, progress=vP)
    if 'stamp' in ctx: stamp.i = 5
    cold = gen_attn(a, V, Sg, c2, opt)
    V.release(mh)
    a(f's_branch {p3}\n{hl}:')
    a('s_setprio 2')
    def gateM(v, s, sThr):
        a(f's_bfe_u32 s{sThr}, s2, 0x30003\ns_mul_i32 s{sThr}, s{sThr}, {opt.get("gMw", 0)}\ns_add_u32 s{sThr}, s{sThr}, {opt.get("gM", 1)}')
        lds_spin(v, s, f's{sThr}', 4)
    later[0](gateM)
    if opt.get('nohelp'): a(f's_barrier\ns_branch {p3}')
    H.rest(helper_gate)
    a('s_barrier')
    a(f'{p3}:\ns_waitcnt vmcnt(0)')
    ctx['tr'](2, 13)
    a('s_barrier')
    ctx['tr'](2, 14)
    if 'stamp' in ctx: stamp.at(8)
    ns = a.label('m_nosig')
    a(f'''
    s_cmp_lg_u32 s{sWave}, 0
    s_cbranch_scc1 {ns}
    s_lshr_b32 s{sT}, s2, 5
    ''')
    cnt_sig(a, sT, C_ATT, sT, 2, sT2)
    signal(a, ctx, sT, vS, NREP)
    a(f'{ns}:')
    def epoch(v):
        sk = a.label('m_noepoch')
        a(f'''
        s_cmp_lg_u32 s2, 0
        s_cbranch_scc1 {sk}
        s_mov_b64 exec, 1
        v_mov_b32 v{v}, {WS_EPOCH}
        v_mov_b32 v{v+1}, s{ctx['sNonce']}
        buffer_store_dword v{v+1}, v{v}, {sr(ctx['sWS'],4)}, 0 offen sc1
        s_mov_b64 exec, -1
        {sk}:
        ''')
    ctx['epoch'] = epoch
    V.release(m); Sg.release(ms)
    RES, GB = V(12, 4), V(12, 4)
    def gu_base(sB, sT, sT2):
        gu_ids(a, 2, sT, sB, sT2)
        a(f's_cmp_ge_u32 s{sB}, 31\ns_mul_i32 s{sB}, s{sB}, {140*1024}\ns_cselect_b32 s{sT}, 0x40000000, {WS_PGU}\ns_add_u32 s{sB}, s{sB}, s{sT}')
    def d_base(sB, sT, sT2):
        qkv_ids(a, 2, sT, sB, sT2)
        a(f's_mul_i32 s{sB}, s{sB}, {54*5120}\ns_add_u32 s{sB}, s{sB}, {WS_PWD}')
    ctx['gu_prefetch'] = Prefetch(a, V, Sg, ctx, GU_BASE, gu_base)
    ctx['d_prefetch'] = Prefetch(a, V, Sg, ctx, 0, d_base)
    gen_proj(a, V, Sg, ctx, 'o', RES, GB, opt)
    gen_gateup(a, V, Sg, ctx, opt)
    if 'stamp' in ctx: stamp.i = 14
    c5 = dict(ctx)
    if 'stamp' in ctx:
        n = [0]
        def st5():
            n[0] += 1
            if n[0] == 1: stamp()
        c5['stamp'] = st5
    gen_proj(a, V, Sg, c5, 'd', RES, GB, opt)
    if opt.get('probe'):
        t = Sg()
        a(f's_lshl_b32 s{t}, s2, 3\ns_add_u32 s{t}, s{t}, s{sWave}\ns_lshl_b32 s{t}, s{t}, 15\ns_add_u32 s{t}, s{t}, {opt["probe"] << 20}\nv_lshlrev_b32 v0, 4, v{ctx["vLane"]}')
        for i in range(32): a(f'buffer_load_dwordx4 v[{16+4*i}:{19+4*i}], v0, {sr(ctx["sWS"],4)}, s{t} offen\ns_add_u32 s{t}, s{t}, 1024')
        a('s_waitcnt vmcnt(0)')
    if 'stamp' in ctx: stamp.flush()
    if opt.get('trace'): tr.i = 15; tr.flush()
    a('s_endpgm'); cold()
    epilogue(k, ctx); return k

def code_size(main):
    import subprocess, os
    open('sz.s', 'w').write('.amdgcn_target "amdgcn-amd-amdhsa--gfx950"\n.text\n' + main.name + ':\n' + main.a.text() + 's_endpgm\n')
    subprocess.run(['clang', '-x', 'assembler', '-target', 'amdgcn-amd-amdhsa', '-mcpu=gfx950', '-c', 'sz.s', '-o', 'sz.o'], check=True)
    subprocess.run(['llvm-objcopy', '-O', 'binary', '-j', '.text', 'sz.o', 'sz.bin'], check=True)
    return os.path.getsize('sz.bin') // 16 * 16

if __name__ == '__main__':
    opt = dict((x.split('=')[0], int(x.split('=')[1]) if '=' in x else 1) for x in sys.argv[2:])
    n = code_size(k_main(opt, 40000)) - 64
    main = k_main(opt, n)
    assert code_size(main) >= n
    print('main kernel code bytes', n, 'vgprs', main.V.hi, 'sgprs', main.S.hi)
    open(sys.argv[1], 'w').write(assemble([main], single=not opt.get('list')))
```

```python
from asm import *
from layout import *
import struct
def f2u(x): return struct.unpack('<I', struct.pack('<f', x))[0]

ATTN_LDS = 4 * 6144
OOB = 0x40000000

def gen_attn(a, V, Sg, ctx, opt=None):
    opt = opt or {}
    ws, sWG, sWave, vLane = ctx['sWS'], ctx['sWG'], ctx['sWave'], ctx['vLane']
    lds0 = ctx.get('lds_base', 0)
    st, ld = ctx.get('st_flags', ''), ctx.get('ld_flags', '')
    stamp = ctx.get('stamp', lambda: None)
    WS = sr(ws, 4)
    mv, ms = V.mark(), Sg.mark()
    sHead, sQb, sKV, sKV0, sKVe, sC, sT, sT2, sQ, sKh, sG, sO1, sO2, sX1, sX2 = [Sg() for _ in range(15)]
    sMHi = Sg(2)
    vL16, vAK2, vAV0, vAV1, vIdx, vT, vT2, vT3, vO1, vO2, vXw, vXr, vAK1 = [V() for _ in range(13)]
    NQ, NB = 4, opt.get('nb', 4)
    Q1, Q2 = [V(4) for _ in range(NQ)], [V(2) for _ in range(NQ)]
    K1, K2, V0, V1 = [V(4) for _ in range(NB)], [V(2) for _ in range(NB)], [V(4) for _ in range(NB)], [V(4) for _ in range(NB)]
    Sb = [V(16, 4), V(16, 4)]
    O = [V(16, 4) for _ in range(NQ)]
    E = lambda r: a(f'v_exp_f32 v{r}, v{r}' if not opt.get('noexp') else '')
    def QKa(q, b, d): a(f'v_mfma_f32_32x32x16_bf16 {vr(d,16)}, {vr(K1[b],4)}, {vr(Q1[q],4)}, 0')
    def QKb(q, b, d): a(f'v_mfma_f32_32x32x8bf16_1k {vr(d,16)}, {vr(K2[b],2)}, {vr(Q2[q],2)}, {vr(d,16)}')
    def SM(q, vv, p): a(f'v_smfmac_f32_32x32x32_bf16 {vr(O[q],16)}, {vr(vv,4)}, {vr(p,8)}, v{vIdx}')
    def ldK1(b, s=sKV): a(f'buffer_load_dwordx4 {vr(K1[b],4)}, v{vAK1}, {WS}, s{s} offen {ld}')
    def ldK2(b, s=sKV): a(f'buffer_load_dwordx2 {vr(K2[b],2)}, v{vAK2}, {WS}, s{s} offen {ld}')
    def ldV0(b, s=sKV): a(f'buffer_load_dwordx4 {vr(V0[b],4)}, v{vAV0}, {WS}, s{s} offen {ld}')
    def ldV1(b, s=sKV): a(f'buffer_load_dwordx4 {vr(V1[b],4)}, v{vAV1}, {WS}, s{s} offen {ld}')
    def adv(): a(f's_add_u32 s{sKV}, s{sKV}, {KVT}')

    a(f'''
    s_and_b32 s{sHead}, s{sWG}, 7
    s_lshl_b32 s{sHead}, s{sHead}, 2
    s_lshr_b32 s{sT}, s{sWG}, 3
    s_and_b32 s{sT2}, s{sT}, 3
    s_add_u32 s{sHead}, s{sHead}, s{sT2}
    s_lshr_b32 s{sQb}, s{sT}, 2
    s_lshr_b32 s{sKh}, s{sWave}, 1
    s_and_b32 s{sG}, s{sWave}, 1
    s_lshr_b32 s{sKV0}, s{sHead}, 2
    s_mul_i32 s{sKV0}, s{sKV0}, {64*KVT}
    s_add_u32 s{sKV0}, s{sKV0}, {WS_KV}
    s_mul_i32 s{sT}, s{sKh}, {32*KVT}
    s_add_u32 s{sKV}, s{sKV0}, s{sT}
    s_add_u32 s{sKVe}, s{sKV}, {31*KVT}
    s_lshl_b32 s{sT}, s{sHead}, 6
    s_lshl_b32 s{sT2}, s{sQb}, 3
    s_add_u32 s{sT}, s{sT}, s{sT2}
    s_lshl_b32 s{sT2}, s{sG}, 2
    s_add_u32 s{sT}, s{sT}, s{sT2}
    s_lshl_b32 s{sT2}, s{sKh}, 1
    s_add_u32 s{sQ}, s{sT}, s{sT2}
    s_xor_b32 s{sC}, s{sQ}, 2
    s_mul_i32 s{sQ}, s{sQ}, {QT}
    s_add_u32 s{sQ}, s{sQ}, {WS_Q}
    s_mul_i32 s{sC}, s{sC}, {QT}
    s_add_u32 s{sC}, s{sC}, {WS_Q}
    s_mov_b32 s{sMHi}, 0
    s_mov_b32 s{sMHi+1}, -1
    v_lshlrev_b32 v{vL16}, 4, v{vLane}
    v_and_b32 v{vT}, 31, v{vLane}
    v_lshrrev_b32 v{vT2}, 5, v{vLane}
    v_lshlrev_b32 v{vT3}, 3, v{vT}
    v_lshl_add_u32 v{vIdx}, v{vT2}, 30, v{vT3}
    ''')
    a(f'''
    s_lshl_b32 s{sT}, s{sQb}, 3
    s_lshl_b32 s{sT2}, s{sG}, 2
    s_add_u32 s{sT}, s{sT}, s{sT2}
    s_lshl_b32 s{sT2}, s{sKh}, 1
    s_add_u32 s{sT}, s{sT}, s{sT2}
    s_mul_i32 s{sT}, s{sT}, 40960
    s_add_u32 s{sT}, s{sT}, {WS_O}
    s_lshr_b32 s{sT2}, s{sHead}, 1
    s_lshl_b32 s{sO1}, s{sT2}, 10
    s_and_b32 s{sX1}, s{sHead}, 1
    s_lshl_b32 s{sX2}, s{sX1}, 9
    s_add_u32 s{sO1}, s{sO1}, s{sX2}
    s_add_u32 s{sO1}, s{sO1}, s{sT}
    s_lshl_b32 s{sT2}, s{sHead}, 7
    s_add_u32 s{sT2}, s{sT2}, 16384
    s_add_u32 s{sO2}, s{sT2}, s{sT}
    s_mul_i32 s{sT}, s{sWave}, 6144
    s_add_u32 s{sT}, s{sT}, {lds0}
    s_xor_b32 s{sT2}, s{sWave}, 2
    s_mul_i32 s{sT2}, s{sT2}, 6144
    s_add_u32 s{sT2}, s{sT2}, {lds0}
    v_add_u32 v{vXw}, s{sT}, v{vL16}
    v_add_u32 v{vXr}, s{sT2}, v{vL16}
    ''')
    a(f'''
    v_bfe_u32 v{vAV0}, v{vLane}, 4, 1
    v_mul_u32_u24 v{vAV0}, 20480, v{vAV0}
    v_and_b32 v{vAV1}, 15, v{vLane}
    v_lshl_add_u32 v{vO1}, v{vAV1}, 4, v{vAV0}
    v_lshl_add_u32 v{vO2}, v{vAV1}, 3, v{vAV0}
    v_lshrrev_b32 v{vAV0}, 5, v{vLane}
    v_lshl_add_u32 v{vO1}, v{vAV0}, 8, v{vO1}
    v_lshl_add_u32 v{vO2}, v{vAV0}, 30, v{vO2}
    ''')
    vQ2 = Sb[0]
    a(f'''
    v_mov_b32 v{vQ2}, v{vIdx}
    s_and_b32 s{sT}, s{sHead}, 3
    s_lshl_b32 s{sT2}, s{sT}, 10
    v_add_u32 v{vAK1}, s{sT2}, v{vL16}
    s_lshl_b32 s{sT2}, s{sT}, 8
    s_add_u32 s{sT2}, s{sT2}, {KV_K2}
    v_add_u32 v{vT3}, s{sT2}, v{vT3}
    s_mul_i32 s{sT}, s{sT}, 320
    s_add_u32 s{sT}, s{sT}, {KV_V}
    v_mov_b32 v{vAK2}, {KV_ONE}
    v_cmp_gt_u32 vcc, 32, v{vLane}
    v_mul_u32_u24 v{vAV0}, 80, v{vT2}
    v_add_u32 v{vAV0}, v{vAV0}, v{vT}
    v_cndmask_b32 v{vAK2}, v{vAK2}, v{vT3}, vcc
    v_lshlrev_b32 v{vAV0}, 4, v{vAV0}
    v_add_u32 v{vAV0}, s{sT}, v{vAV0}
    v_add_u32 v{vAV1}, 2560, v{vAV0}
    v_mov_b32 v{vT3}, {KV_ONE}
    v_mov_b32 v{vT2}, {OOB}
    v_cmp_eq_u32 vcc, 20, v{vT}
    v_mov_b32 v{vIdx}, 0xdddd
    s_nop 0
    v_cndmask_b32 v{vT3}, v{vT2}, v{vT3}, vcc
    v_cmp_gt_u32 vcc, 20, v{vT}
    s_nop 1
    v_cndmask_b32 v{vAV0}, v{vT3}, v{vAV0}, vcc
    v_cndmask_b32 v{vAV1}, v{vT3}, v{vAV1}, vcc
    ''')
    for r in range(8, 16): a(f'v_mov_b32 v{Sb[1]+r}, 0')
    for r in range(4): a(f'v_mov_b32 v{V1[NB-1]+r}, 0')
    if 'wait_inputs' in ctx: ctx['wait_inputs']()
    ldK1(NB-1, sKV0); ldK2(NB-1, sKV0)
    for q in range(NQ):
        sq = sQ if q < 2 else sC
        a(f'buffer_load_dwordx4 {vr(Q1[q],4)}, v{vL16}, {WS}, s{sq} offen offset:{(q&1)*QT} {ld}')
        a(f'buffer_load_dwordx2 {vr(Q2[q],2)}, v{vQ2}, {WS}, s{sq} offen offset:{(q&1)*QT+1024} {ld}')
    a(f's_mov_b32 s{sC}, 0')
    for b in range(2):
        ldK1(b); ldV1(b); ldK2(b); ldV0(b); adv()
    a('s_waitcnt vmcnt(8)')
    stamp()
    for q in range(NQ):
        QKa(q, NB-1, O[q]); QKb(q, NB-1, O[q])
    for b in range(2, NB - 1):
        ldK1(b); ldV1(b); ldK2(b); ldV0(b); adv()
    def rowmax(dst, src, first):
        if first:
            a(f'v_max3_f32 v{dst}, v{src}, v{src+1}, v{src+2}')
            a(f'v_max_f32 v{dst}, v{dst}, v{src+3}')
            rest = range(4, 16, 2)
        else:
            rest = range(0, 16, 2)
        for r in rest: a(f'v_max3_f32 v{dst}, v{dst}, v{src+r}, v{src+r+1}')
    for q in range(NQ):
        if q == NQ - 1: a('s_nop 3')
        rowmax(vT, O[q], True)
        a(f'''
        v_mov_b32 v{vT2}, v{vT}
        v_mov_b32 v{O[q]}, 0
        v_mov_b32 v{O[q]+1}, 0
        v_permlane32_swap_b32 v{vT}, v{vT2}
        ''')
        for r in range(2, 16): a(f'v_mov_b32 v{O[q]+r}, 0')
        a(f'''
        v_max_f32 v{vT}, v{vT}, v{vT2}
        v_sub_f32 v{vT}, {hex(f2u(-MBIAS))}, v{vT}
        v_cvt_pk_bf16_f32 v{vT}, v{vT}, 0
        s_mov_b64 exec, {sr(sMHi,2)}
        v_mov_b32 v{Q2[q]}, v{vT}
        s_mov_b64 exec, -1
        ''')
    a(f's_waitcnt vmcnt({4*(NB-2)})')
    QKa(0, 0, Sb[0]); QKb(0, 0, Sb[0])
    a('s_nop 10')
    loop = a.label('attn_loop')
    stamp()
    ctx.get('tr', lambda *x: 0)(2, 1)
    ctx.get('tr', lambda *x: 0)(6, 1)
    a('.p2align 6')
    a(f'{loop}:')
    for i in range(NB):
        b, nb, pb = i, (i + 1) % NB, (i - 1) % NB
        for q in range(NQ):
            c, n = Sb[q & 1], Sb[(q + 1) & 1]
            E(c); E(c + 1)
            SM((q - 1) % NQ, V1[b if q else pb], n + 8)
            if q == 0: ldK1(pb)
            if q == 1: ldK2(pb)
            if q == 2:
                adv()
                if opt.get('twice'): a(f's_cmp_gt_u32 s{sKV}, s{sKVe}\ns_cselect_b32 s{sT}, {32*KVT}, 0\ns_sub_u32 s{sKV}, s{sKV}, s{sT}')
                else: a(f's_min_u32 s{sKV}, s{sKV}, s{sKVe}')
            if q == 3: a(f's_waitcnt vmcnt({4*(NB-2)})')
            for r in range(2, 6): E(c + r)
            nq, kb = (q + 1) % NQ, (b if q < NQ - 1 else nb)
            QKa(nq, kb, n)
            if i == NB - 1 and q == 2: a(f's_add_u32 s{sC}, s{sC}, 1')
            if i == NB - 1 and q == 3: a(f's_cmp_lt_u32 s{sC}, {32 // NB * (2 if opt.get("twice") else 1)}')
            for r in range(6, 10): E(c + r)
            QKb(nq, kb, n)
            for r in range(10, 14): E(c + r)
            SM(q, V0[b], c)
            if q == 0: ldV1(pb)
            if q == 1: ldV0(pb)
            if q == 2 and 'progress' in ctx: a(f'ds_add_u32 v{ctx["progress"]}, v{ctx["progress"]+1}')
            E(c + 14); E(c + 15)
    if opt.get('trace') == 6:
        st_ = ctx['trobj']
        a(f's_cselect_b32 s{sT}, 1, 0\ns_memrealtime s[{st_.s}:{st_.s+1}]\ns_memtime s[{st_.s+2}:{st_.s+3}]\ns_add_u32 s{sT2}, s{sC}, 1\ns_mov_b32 m0, s{sT2}\ns_waitcnt lgkmcnt(0)\nv_writelane_b32 v{st_.v}, s{st_.s}, m0\nv_writelane_b32 v{st_.v+1}, s{st_.s+2}, m0\ns_cmp_lg_u32 s{sT}, 0')
    a(f's_cbranch_scc1 {loop}')
    stamp()
    ctx.get('tr', lambda *x: 0)(2, 10)
    a('s_nop 1')
    SM(NQ - 1, V1[NB - 1], Sb[1] + 8)
    if ctx.get('pre_combine_barrier'): a('s_barrier')
    for j in range(2):
        if j == 1: a('s_nop 8')
        for r in range(3): a(f'ds_write_b128 v{vXw}, {vr(O[2+j]+4*r,4)} offset:{3072*j + 1024*r}')
    a(f'''
    s_waitcnt lgkmcnt(0)
    s_barrier
    ''')
    ctx.get('tr', lambda *x: 0)(2, 11)
    for j in range(2):
        for r in range(3): a(f'ds_read_b128 {vr(O[2+j]+4*r,4)}, v{vXr} offset:{3072*j + 1024*r}')
    tmp = ctx['sTmp2']
    slows = []
    for j in range(2):
        Oq = O[j]
        fin, slow = a.label('attn_fin'), a.label('attn_slow')
        slows.append((j, fin, slow))
        a(f's_waitcnt lgkmcnt({3 - 3*j})')
        for r in range(12): a(f'v_add_f32 v{Oq+r}, v{Oq+r}, v{O[2+j]+r}')
        a(f'''
        v_mov_b32 v{vT}, v{Oq+8}
        v_mov_b32 v{vT2}, v{Oq+8}
        v_max3_f32 v{vT3}, abs(v{Oq}), abs(v{Oq+1}), abs(v{Oq+2})
        s_nop 0
        v_permlane32_swap_b32 v{vT}, v{vT2}
        ''')
        for r in range(3, 11, 2): a(f'v_max3_f32 v{vT3}, v{vT3}, abs(v{Oq+r}), abs(v{Oq+r+1})')
        a(f'''
        v_max_f32_e64 v{vT3}, v{vT3}, abs(v{Oq+11})
        s_mov_b32 s{sT}, {hex(f2u(2.0**120))}
        s_mov_b32 s{sC}, 0x7f800000
        v_cmp_nlt_f32_e64 {sr(tmp,2)}, v{vT2}, s{sT}
        v_cmp_nlt_f32_e64 vcc, v{vT3}, s{sC}
        s_or_b64 vcc, vcc, {sr(tmp,2)}
        ''')
        if opt.get('force_slow'): a(f's_branch {slow}')
        a(f's_cbranch_vccnz {slow}')
        a(f'{fin}:')
        a(f'v_rcp_f32 v{vT2}, v{vT2}\ns_nop 0')
        for r in range(12): a(f'v_mul_f32 v{Oq+r}, v{Oq+r}, v{vT2}')
        for r in range(6): a(f'v_cvt_pk_bf16_f32 v{Oq+r}, v{Oq+2*r}, v{Oq+2*r+1}')
        a(f'buffer_store_dwordx4 {vr(Oq,4)}, v{vO1}, {WS}, s{sO1} offen {st}')
        a(f'buffer_store_dwordx2 {vr(Oq+4,2)}, v{vO2}, {WS}, s{sO2} offen {st}')
        if j == 0: a(f's_add_u32 s{sO1}, s{sO1}, 40960\ns_add_u32 s{sO2}, s{sO2}, 40960')
    ctx.get('tr', lambda *x: 0)(2, 12)
    def cold():
        for j, fin, slow in slows:
            Oq = O[j]
            l1, l2 = a.label('slow1'), a.label('slow2')
            a(f'''
            {slow}:
            s_waitcnt vmcnt(0) lgkmcnt(0)
            s_mov_b64 exec, {sr(sMHi,2)}
            v_mov_b32 v{Q2[j]}, 0
            s_mov_b64 exec, -1
            v_mov_b32 v{vT}, 0xff800000
            s_mov_b32 s{sKV}, s{sKV0}
            s_mov_b32 s{sC}, 0
            {l1}:
            ''')
            ldK1(0); ldK2(0); a('s_waitcnt vmcnt(0)')
            QKa(j, 0, Sb[0]); QKb(j, 0, Sb[0])
            a('s_nop 15')
            rowmax(vT, Sb[0], False)
            adv()
            a(f'''
            s_add_u32 s{sC}, s{sC}, 1
            s_cmp_lt_u32 s{sC}, 64
            s_cbranch_scc1 {l1}
            v_mov_b32 v{vT2}, v{vT}
            s_nop 1
            v_permlane32_swap_b32 v{vT}, v{vT2}
            s_nop 1
            v_max_f32 v{vT3}, v{vT}, v{vT2}
            ''')
            for r in range(16): a(f'v_mov_b32 v{Oq+r}, 0')
            a(f's_mov_b32 s{sKV}, s{sKV0}\ns_mov_b32 s{sC}, 0\n{l2}:')
            ldK1(0); ldK2(0); ldV0(0); ldV1(0); a('s_waitcnt vmcnt(0)')
            QKa(j, 0, Sb[0]); QKb(j, 0, Sb[0])
            a('s_nop 15')
            for r in range(16): a(f'v_sub_f32 v{Sb[0]+r}, v{Sb[0]+r}, v{vT3}')
            for r in range(16): a(f'v_exp_f32 v{Sb[0]+r}, v{Sb[0]+r}')
            a('s_nop 1')
            SM(j, V0[0], Sb[0]); SM(j, V1[0], Sb[0] + 8)
            adv()
            a(f'''
            s_add_u32 s{sC}, s{sC}, 1
            s_cmp_lt_u32 s{sC}, 64
            s_cbranch_scc1 {l2}
            s_nop 15
            v_mov_b32 v{vT}, v{Oq+8}
            v_mov_b32 v{vT2}, v{Oq+8}
            s_nop 1
            v_permlane32_swap_b32 v{vT}, v{vT2}
            s_nop 1
            s_branch {fin}
            ''')
    V.release(mv); Sg.release(ms)
    return cold
```

```python
from asm import *
from layout import *
from attn import f2u
from sync import *
from proj import Feed
from qkv import qkv_ids, gu_ids

GU_BASE = 20480

class Prefetch:
    def __init__(self, a, V, Sg, ctx, lds0, base_fn):
        self.a, self.ctx, self.lds0, self.base_fn = a, ctx, lds0, base_fn
        self.sSrc, self.sM, self.sBase, self.sT = Sg(), Sg(), Sg(), Sg()
        self.vL16 = V()
        self.feed = Feed(a, ctx, self.sSrc, self.sM, self.vL16, Cnt(a, 'vmcnt', 63), ctx['ld_flags'])
    def init(self):
        self.a(f'v_lshlrev_b32 v{self.vL16}, 4, v{self.ctx["vLane"]}')
        self.base_fn(self.sBase, self.sT, self.sSrc)
    def start(self, n0, n1, w0):
        self.n1 = n1
        self.feed.start(self.sBase, n0, w0, self.sT, self.lds0)
    def rounds(self, k=None):
        n = 0
        while self.feed.n < self.n1 and (k is None or n < k):
            self.feed.round(self.n1, 'W'); n += 1
        return n

def gen_gateup(a, V, Sg, ctx, opt=None):
    opt = opt or {}
    ws, sWG, sWave, vLane = ctx['sWS'], ctx['sWG'], ctx['sWave'], ctx['vLane']
    st, ld = 'sc1', ctx['ld_flags']
    stamp = ctx.get('stamp', lambda: None)
    WS = sr(ws, 4)
    mv, ms = V.mark(), Sg.mark()
    sRb, sFb, sT, sT2, sW, sM, sA0, sA1, sTile, sBase, sIdle = [Sg() for _ in range(11)]
    vL16, vW, vT, vT2, lI, lG = [V() for _ in range(6)]
    vS = V(4, 2)
    NR = opt.get('gu_ring', 9)
    PRE = opt.get('gu_pre', 6)
    ACT = V(8 * NR, 4); WF = [V(28, 4), V(28, 4)]; ACC = V(56, 4)
    STT = V(16, 4); EXT = V(8, 4); SD = V(4, 2)
    vm, lg = Cnt(a, 'vmcnt', 63), Cnt(a, 'lgkmcnt', 15)
    idle, tail = a.label('gu_idle'), a.label('gu_tail')
    gu_ids(a, sWG, sRb, sFb, sT)
    a(f'''
    v_lshlrev_b32 v{vL16}, 4, v{vLane}
    v_and_b32 v{lI}, 15, v{vLane}
    v_lshrrev_b32 v{lG}, 4, v{vLane}
    ''')
    pg, pd = ctx['gu_prefetch'], ctx['d_prefetch']
    ctx['tr'](7, 9)
    g1 = pg.rounds(opt.get('g1', 3))
    w0b, w0c = a.label('gu_w0b'), a.label('gu_w0c')
    a(f'''
    s_waitcnt vmcnt({g1})
    s_barrier
    s_cmp_eq_u32 s{sWave}, 0
    s_cbranch_scc1 {w0b}
    ''')
    ctx['tr'](3, 11)
    pg.start(pg.feed.n, pg.n1, 1); pg.rounds()
    ctx['tr'](3, 12)
    a(f'''
    s_waitcnt vmcnt(0)
    s_branch {w0c}
    {w0b}:
    ''')
    ctx['tr'](3, 11); ctx['tr'](7, 5)
    signal(a, ctx, ctx['sSig'], vS, NREP)
    qkv_ids(a, sWG, sT, sW, sT2)
    a(f's_lshl_b32 s{sW}, s{sW}, 8\ns_add_u32 s{sW}, s{sW}, {C_PD}')
    cnt_poll(a, sT, C_OP, sRb, sT2)
    poll(a, ctx, sT, NSH, 4, vS, sT2, extra=(sW, '0' if opt.get('nohelp') else '54'))
    ctx['tr'](3, 12); ctx['tr'](7, 6)
    a(f'''
    {w0c}:
    v_add_u32 v{vW}, {GU_BASE}, v{vL16}
    s_lshl_b32 s{sTile}, s{sRb}, 3
    s_add_u32 s{sTile}, s{sTile}, s{sWave}
    s_lshl_b32 s{sTile}, s{sTile}, 1
    s_mul_i32 s{sA0}, s{sTile}, 20480
    s_add_u32 s{sA0}, s{sA0}, {WS_X1A}
    s_add_u32 s{sA1}, s{sA0}, 20480
    v_lshlrev_b32 v{vT}, 3, v{lI}
    v_lshl_add_u32 v{vT}, v{lG}, 9, v{vT}
    s_lshl_b32 s{sT}, s{sTile}, 11
    s_add_u32 s{sT}, s{sT}, {WS_ST}
    s_barrier
    s_cmp_ge_u32 s{sFb}, 31
    s_cbranch_scc1 {idle}
    ''')
    vm.drain()
    stamp()
    ctx['tr'](3, 13); ctx['tr'](4)
    na = [0]
    def act_upto(n):
        while na[0] <= min(n, 19):
            s_ = na[0]; na[0] += 1
            for tt, sa in enumerate((sA0, sA1)):
                vm.issue(('A', s_), f'buffer_load_dwordx4 {vr(ACT+8*(s_%NR)+4*tt,4)}, v{vL16}, {WS}, s{sa} offen offset:{1024*(s_&3)} {ld}')
            if s_ & 3 == 3: a(f's_add_u32 s{sA0}, s{sA0}, 4096\ns_add_u32 s{sA1}, s{sA1}, 4096')
    act_upto(1)
    cur = [0]
    def rdW(s_):
        off = s_ * 7168
        base = (off // 57344) * 57344
        if base != cur[0]:
            a(f'v_add_u32 v{vW}, {base - cur[0]}, v{vW}'); cur[0] = base
        return [(('R', s_), f'ds_read_b128 {vr(WF[s_&1]+4*t,4)}, v{vW} offset:{off - base + 1024*t}') for t in range(7)]
    for x in rdW(0): lg.issue(*x)
    act_upto(PRE - 1)
    for tt in range(2):
        for h in range(4): vm.issue('S', f'buffer_load_dwordx2 {vr(STT+8*tt+2*h,2)}, v{vT}, {WS}, s{sT} offen offset:{2048*tt + 128*h} {ld}')
    SST = PRE + 1
    assert NR == 9 and PRE <= 6
    UF = ACT + 8 * (20 % NR)
    LAD = opt.get('ladder', 1)
    DE = 16 if opt.get('dearly', 1) else 0
    def stats():
        vm.wait('S')
        for tt in range(2):
            b = STT + 8 * tt
            a(f'''
            v_add_f32 v{b}, v{b}, v{b+2}
            v_add_f32 v{b+1}, v{b+1}, v{b+3}
            v_add_f32 v{b+4}, v{b+4}, v{b+6}
            v_add_f32 v{b+5}, v{b+5}, v{b+7}
            v_add_f32 v{b}, v{b}, v{b+4}
            v_add_f32 v{b+1}, v{b+1}, v{b+5}
            ''')
            for sw in ('32', '16'):
                a(f'''
                v_mov_b32 v{b+2}, v{b}
                v_mov_b32 v{b+3}, v{b+1}
                s_nop 1
                v_permlane{sw}_swap_b32 v{b}, v{b+2}
                v_permlane{sw}_swap_b32 v{b+1}, v{b+3}
                s_nop 0
                v_add_f32 v{b}, v{b}, v{b+2}
                v_add_f32 v{b+1}, v{b+1}, v{b+3}
                ''')
            sd, rl, e = SD + 2 * tt, SD + 2 * tt + 1, EXT + 4 * tt
            a(f'''
            v_mul_f32 v{b}, {hex(f2u(-1/640))}, v{b}
            v_mul_f32 v{b+1}, {hex(f2u(1/640))}, v{b+1}
            v_fma_f32 v{b+1}, -v{b}, v{b}, v{b+1}
            v_max_f32 v{b+1}, 0, v{b+1}
            v_add_f32 v{b+1}, {hex(f2u(1e-5))}, v{b+1}
            v_sqrt_f32 v{sd}, v{b+1}
            v_rsq_f32 v{rl}, v{b+1}
            v_cvt_pk_bf16_f32 v{b+2}, v{b}, v{b}
            v_cvt_pk_bf16_f32 v{b+3}, v{sd}, v{sd}
            v_mul_f32 v{rl}, {hex(f2u(-1.4426950408889634))}, v{rl}
            v_and_b32 v{b+2}, 0xffff0000, v{b+2}
            v_and_b32 v{b+3}, 0xffff0000, v{b+3}
            v_sub_f32 v{b+4}, v{b}, v{b+2}
            v_sub_f32 v{b+5}, v{sd}, v{b+3}
            v_cmp_gt_u32 vcc, 16, v{vLane}
            v_cvt_pk_bf16_f32 v{e}, v{b+2}, v{b+4}
            v_cvt_pk_bf16_f32 v{e+1}, v{b+2}, v{b+3}
            v_cvt_pk_bf16_f32 v{e+2}, v{b+5}, v{b+3}
            v_mov_b32 v{e+3}, 0
            v_cndmask_b32 v{e}, 0, v{e}, vcc
            v_cndmask_b32 v{e+1}, 0, v{e+1}, vcc
            v_cndmask_b32 v{e+2}, 0, v{e+2}, vcc
            ''')
    for s_ in range(20):
        if LAD and s_ % 5 == 0: a(f's_setprio {3 - s_ // 5}')
        nxt = rdW(s_ + 1) if s_ < 19 else []
        wait2(a, vm, [('A', s_)], lg, [('R', s_)])
        if s_ % 2 == 0: ctx['tr'](4)
        if s_ in (0, 5, 10, 15, 19): ctx['tr'](6, 10 + (s_ + 1) // 5)
        for t in range(7):
            for tt in range(2):
                c = vr(ACC + 8 * t + 4 * tt, 4)
                a(f'v_mfma_f32_16x16x32_bf16 {c}, {vr(WF[s_&1]+4*t,4)}, {vr(ACT+8*(s_%NR)+4*tt,4)}, {c if s_ else 0}')
                if tt == 0 and nxt: lg.issue(*nxt[t])
            if t == 3: act_upto(s_ + PRE)
        if s_ == SST: stats()
        if s_ == 10 and DE:
            pd.init(); pd.start(0, 16, 0); n_ = pd.rounds()
            for _ in range(n_): vm.issue('D')
        if s_ == 15:
            a(f'''
            v_min_u32 v{vT}, 1, v{lG}
            v_lshlrev_b32 v{vT}, 30, v{vT}
            v_lshl_add_u32 v{vT}, v{lI}, 4, v{vT}
            s_mul_i32 s{sT}, s{sFb}, 1792
            s_add_u32 s{sT}, s{sT}, {WS_U}
            ''')
            for t in range(7): vm.issue('U', f'buffer_load_dwordx4 {vr(UF+4*t,4)}, v{vT}, {WS}, s{sT} offen offset:{256*t} {ld}')
    vm.wait('U')
    for t in range(7):
        for tt in range(2):
            c = vr(ACC + 8 * t + 4 * tt, 4)
            a(f'v_mfma_f32_16x16x32_bf16 {c}, {vr(UF+4*t,4)}, {vr(EXT+4*tt,4)}, {c}')
    if LAD: a('s_setprio 0')
    D0 = opt.get('d0', 0)
    if D0: a('s_barrier')
    if not DE: pd.init()
    pd.start(DE, 160, 0)
    left = [D0]
    def dma(k):
        k = min(k, left[0]); left[0] -= k
        pd.rounds(k)
    stamp()
    ctx['tr'](4)
    a(f'''
    s_mul_i32 s{sT}, s{sFb}, 7
    s_min_u32 s{sT}, s{sT}, 209
    s_lshl_b32 s{sT}, s{sT}, 8
    s_mul_i32 s{sT2}, s{sTile}, {54*1024}
    s_add_u32 s{sT}, s{sT}, s{sT2}
    s_add_u32 s{sA0}, s{sT}, {WS_HM}
    s_add_u32 s{sA1}, s{sA0}, {54*1024}
    v_lshrrev_b32 v{vT}, 1, v{lG}
    v_lshlrev_b32 v{vT2}, 8, v{vT}
    v_mul_u32_u24 v{vW}, {54*1024}, v{vT}
    v_and_b32 v{vT}, 1, v{lG}
    v_lshlrev_b32 v{vT}, 3, v{vT}
    v_lshl_add_u32 v{vT}, v{lI}, 4, v{vT}
    v_add_u32 v{vT2}, v{vT2}, v{vT}
    v_add_u32 v{vW}, v{vW}, v{vT}
    ''')
    def gate(g, u, n, sd, rl):
        for r in range(n): a(f'v_mul_f32 v{g[r]}, v{g[r]}, v{rl}')
        dma(1)
        for r in range(n): a(f'v_exp_f32 v{g[r]}, v{g[r]}')
        dma(1)
        for r in range(n): a(f'v_fma_f32 v{g[r]}, v{g[r]}, v{sd}, v{sd}')
        for r in range(n): a(f'v_rcp_f32 v{g[r]}, v{g[r]}')
        dma(1)
        for r in range(n): a(f'v_mul_f32 v{g[r]}, v{g[r]}, v{u[r]}')
    P = WF[1]
    for tt in range(2):
        sd, rl = SD + 2 * tt, SD + 2 * tt + 1
        A_ = lambda t: [ACC + 8 * t + 4 * tt + r for r in range(4)]
        g, u = A_(0) + A_(1) + A_(4), A_(2) + A_(3) + A_(5)
        gate(g, u, 12, sd, rl)
        for r in range(6): a(f'v_cvt_pk_bf16_f32 v{P+8*tt+r}, v{g[2*r]}, v{g[2*r+1]}')
        so = sA1 if tt else sA0
        a(f'buffer_store_dwordx4 {vr(P+8*tt,4)}, v{vL16}, {WS}, s{so} offen {st}')
        a(f'buffer_store_dwordx2 {vr(P+8*tt+4,2)}, v{vT2}, {WS}, s{so} offen offset:1024 {st}')
    a(f'v_cmp_gt_u32 vcc, 32, v{vLane}')
    for r in range(4): a(f'v_permlane32_swap_b32 v{ACC+48+r}, v{ACC+52+r}')
    a(f'v_cndmask_b32 v{SD}, v{SD+2}, v{SD}, vcc\nv_cndmask_b32 v{SD+1}, v{SD+3}, v{SD+1}, vcc')
    g, u = [ACC + 48 + r for r in range(4)], [ACC + 52 + r for r in range(4)]
    gate(g, u, 4, SD, SD + 1)
    for r in range(2): a(f'v_cvt_pk_bf16_f32 v{P+16+r}, v{g[2*r]}, v{g[2*r+1]}')
    a(f'''
    buffer_store_dwordx2 {vr(P+16,2)}, v{vW}, {WS}, s{sA0} offen offset:1536 {st}
    ''')
    cnt_sig(a, ctx['sSig'], C_GU, sRb, sFb, sT2)
    if not D0: a('s_barrier')
    ctx['tr'](4)
    ctx['tr'](7, 10)
    d1n = pd.rounds(opt.get('d1', 4))
    d0, d1, d2 = a.label('gu_d0'), a.label('gu_d1'), a.label('gu_d2')
    a(f's_waitcnt vmcnt({d1n})\ns_barrier')
    stamp()
    a(f's_cmp_lg_u32 s{sWave}, 0\ns_cbranch_scc1 {d0}')
    ctx['tr'](7, 7)
    signal(a, ctx, ctx['sSig'], vS, NREP)
    a(f's_branch {d1}\n{idle}:')
    n_done = pd.feed.n
    pd.init(); pd.start(0, n_done, 0); pd.rounds()
    a(f's_cmp_eq_u32 s{sWave}, 0\ns_cbranch_scc1 {d1}\n{d0}:')
    pd.start(n_done, 160, 1); pd.rounds()
    a(f'{d1}:')
    V.release(mv); Sg.release(ms)
```

```python
S, D, H, DH, F = 2048, 640, 32, 20, 1728
ARG_X, ARG_WQKV, ARG_WO, ARG_BX, ARG_WG, ARG_WU, ARG_WD, ARG_C, ARG_WMOD, ARG_OUT, ARG_DBG, ARG_WS = [8*i for i in range(12)]
WS_SIZE = 268435456
def al(x, a=4096): return (x + a - 1) // a * a
WS_EPOCH = 0
WS_MODB = 16384
WS_MODP = 16384 + 20480
MODQ = 3840 * 4
WS_FLAG = 131072
WS_U = WS_FLAG + 589824
WS_ST = WS_U + 262144
QT = 1280
KVT = 10368
KV_K1, KV_K2, KV_V = 0, 4096, 5120
KV_ONE = 10240
WS_Q = WS_ST + 262144
WS_KV = al(WS_Q + H * 64 * QT)
WS_O = al(WS_KV + 8 * 64 * KVT)
WS_X1A = al(WS_O + 128 * 20 * 1024)
WS_X1R = al(WS_X1A + 64 * 40 * 1024)
WS_HM = al(WS_X1R + 256 * 24576)
WS_PQKV = al(WS_HM + 128 * 54 * 1024)
WS_PWO = WS_PQKV + 8 * 15 * 20 * 1024
WS_PWD = WS_PWO + 8 * 20 * 5 * 1024
WS_PGU = WS_PWD + 8 * 54 * 5 * 1024
WS_LN1 = WS_PGU + 31 * 20 * 7 * 1024
WS_END = al(WS_LN1 + S * 8)
WS_STAMP = WS_END
QSCALE = (DH ** -0.5) * 1.4426950408889634
MBIAS = 24.0
```

```python
from asm import *
from layout import *
from attn import f2u
from sync import *
from qkv import qkv_ids, gu_ids

GRP = 40960

class Feed:
    def __init__(self, a, ctx, sSrc, sM, vL16, vm, ld):
        self.a, self.ctx, self.sSrc, self.sM, self.vL16, self.vm, self.ld = a, ctx, sSrc, sM, vL16, vm, ld
    def start(self, sBase, n0, w0, sT, lds0=0):
        a, w = self.a, self.ctx['sWave']
        self.n, self.w0 = n0, w0
        a(f'''
        s_add_u32 s{sT}, s{w}, {n0 - w0}
        s_lshl_b32 s{sT}, s{sT}, 10
        s_add_u32 s{self.sSrc}, s{sBase}, s{sT}
        s_add_u32 s{self.sM}, s{sT}, {lds0}
        ''')
    def round(self, n1, tag, wrap=None):
        a, w, nw = self.a, self.ctx['sWave'], 8 - self.w0
        skip = None
        if self.n + nw > n1:
            skip = a.label('feed_skip')
            a(f's_cmp_ge_u32 s{w}, {self.w0 + n1 - self.n}\ns_cbranch_scc1 {skip}')
        a(f's_mov_b32 m0, s{self.sM}\ns_add_u32 s{self.sM}, s{self.sM}, {1024*nw}')
        a(f'buffer_load_dwordx4 v{self.vL16}, {sr(self.ctx["sWS"],4)}, s{self.sSrc} offen {self.ld} lds')
        a(f's_add_u32 s{self.sSrc}, s{self.sSrc}, {1024*nw}')
        if skip: a(f'{skip}:')
        else: self.vm.issue(tag)
        self.n = min(n1, self.n + nw)

L_COEF = 102400

def gen_proj(a, V, Sg, ctx, kind, RES, GB, opt=None):
    opt = opt or {}
    ws, sWG, sWave, vLane = ctx['sWS'], ctx['sWG'], ctx['sWave'], ctx['vLane']
    st, ld = 'sc1', ctx['ld_flags']
    stamp = ctx.get('stamp', lambda: None)
    WS = sr(ws, 4)
    NS = 20 if kind == 'o' else 54
    ACTB = WS_O if kind == 'o' else WS_HM
    NI = NS // 2
    NG = (NS + 7) // 8
    NSL = 4
    sX = ctx['sX'] if kind == 'o' else ctx['sOut']
    mv, ms = V.mark(), Sg.mark()
    sRb, sCb, sT, sT2, sKh, sTg, sW, sM, sAct, sR, sBase = [Sg() for _ in range(11)]
    vL16, vW0, vW1, vW2, vT, vT2, lI, lG, vTok, vTok2, vL8 = [V() for _ in range(11)]
    vS = V(4, 2)
    ACT = V(4 * NI, 4); WF = [V(20, 4), V(20, 4), V(20, 4)]; ACC = V(20, 4)
    GA, C1 = (V(12, 4), V(12, 4)) if kind == 'o' else (GB, None)
    vm, lg = Cnt(a, 'vmcnt', 63), Cnt(a, 'lgkmcnt', 15)
    qkv_ids(a, sWG, sRb, sCb, sT)
    a(f'''
    s_lshr_b32 s{sKh}, s{sWave}, 2
    s_and_b32 s{sTg}, s{sWave}, 3
    v_lshlrev_b32 v{vL16}, 4, v{vLane}
    v_and_b32 v{lI}, 15, v{vLane}
    v_lshrrev_b32 v{lG}, 4, v{vLane}
    v_lshlrev_b32 v{vT}, 5, v{lG}
    v_lshlrev_b32 v{vT2}, 4, v{lG}
    v_lshlrev_b32 v{vL8}, 8, v{lG}
    v_lshl_add_u32 v{vL8}, v{lI}, 3, v{vL8}
    ''')
    if kind == 'o':
        a(f's_lshl_b32 s{sT}, s{sKh}, 7\ns_add_u32 s{sT}, s{sT}, {L_COEF}\nv_add_u32 v{vT}, s{sT}, v{vT}\nv_add_u32 v{vT2}, {L_COEF + 256}, v{vT2}')
        for v_, d in enumerate((GA, C1, GB)):
            a(f'ds_read_b128 {vr(d,4)}, v{vT} offset:{320*v_}\nds_read_b128 {vr(d+4,4)}, v{vT} offset:{320*v_+16}\nds_read_b128 {vr(d+8,4)}, v{vT2} offset:{320*v_}')
    a(f'''
    s_lshl_b32 s{sR}, s{sRb}, 2
    s_add_u32 s{sR}, s{sR}, s{sTg}
    s_mul_i32 s{sAct}, s{sR}, {16*1280}
    s_mul_i32 s{sM}, s{sCb}, 160
    s_add_u32 s{sAct}, s{sAct}, s{sM}
    v_mul_u32_u24 v{vTok}, 1280, v{lI}
    v_add_u32 v{vTok}, s{sAct}, v{vTok}
    v_lshl_add_u32 v{vTok2}, v{lG}, 3, v{vTok}
    v_add_u32 v{vTok2}, 128, v{vTok2}
    v_lshl_add_u32 v{vTok}, v{lG}, 4, v{vTok}
    s_lshl_b32 s{sM}, s{sKh}, 6
    v_add_u32 v{vTok}, s{sM}, v{vTok}
    ''')
    a(f'''
    s_mul_i32 s{sAct}, s{sR}, {NS}
    s_add_u32 s{sAct}, s{sAct}, s{sKh}
    s_lshl_b32 s{sAct}, s{sAct}, 10
    s_add_u32 s{sAct}, s{sAct}, {ACTB}
    s_mul_i32 s{sT}, s{sKh}, {5120 + 2048}
    v_add_u32 v{vW0}, s{sT}, v{vL16}
    s_mul_i32 s{sT}, s{sKh}, {5120 - 2048}
    s_add_u32 s{sT}, s{sT}, 2048
    v_add_u32 v{vW1}, s{sT}, v{vL16}
    s_mul_i32 s{sT}, s{sKh}, 5120
    s_add_u32 s{sT}, s{sT}, 4096
    v_add_u32 v{vW2}, s{sT}, v{vL16}
    ''')
    np_ = a.label('proj_nopoll')
    if kind == 'o':
        pg = ctx['gu_prefetch']; pg.init()
        w0 = a.label('proj_w0')
        a(f's_cmp_eq_u32 s{sWave}, 0\ns_cbranch_scc1 {w0}')
        GE = opt.get('gearly', 56)
        if GE and not opt.get('ginloop'): pg.start(140 - GE, 140, 1); pg.rounds()
        a(f's_branch {np_}\n{w0}:')
    a(f'''
    s_cmp_lg_u32 s{sWave}, 0
    s_cbranch_scc1 {np_}
    s_lshr_b32 s{sT}, s{sRb}, 2
    ''')
    cnt_poll(a, sT, C_ATT if kind == 'o' else C_GU, sT, sT2)
    if kind == 'o':
        gu_ids(a, sWG, sT2, sBase, sW)
        a(f's_cmp_ge_u32 s{sBase}, 31\ns_cselect_b32 s{sM}, 0, {0 if opt.get("nohelp") else 7}\ns_lshl_b32 s{sW}, s{sBase}, 8\ns_add_u32 s{sW}, s{sW}, {C_PG}')
        poll(a, ctx, sT, NSH, 4, vS, sT2, extra=(sW, f's{sM}'))
    else:
        poll(a, ctx, sT, NSH, 4, vS, sT2, last=3)
    ctx['tr'](7, 4 if kind == 'o' else 8)
    if kind == 'o': ctx['epoch'](vS)
    pb = a.label('proj_bar')
    a(f's_branch {pb}\n{np_}:\ns_waitcnt vmcnt(0)\n{pb}:\ns_waitcnt lgkmcnt(0)\ns_barrier')
    stamp()
    PH = 3 if kind == 'o' else 5
    ctx['tr'](PH)
    feed = Feed(a, ctx, sW, sM, vL16, vm, ld)
    if kind == 'd':
        a(f's_mul_i32 s{sBase}, s{sCb}, {NS*5120}\ns_add_u32 s{sBase}, s{sBase}, {WS_PWD}')
    na = [0]
    def act_upto(n):
        while na[0] < min(NI, n):
            i = na[0]; na[0] += 1
            if kind == 'o' and i >= 8:
                for h in range(2): vm.issue(('A', i), f'buffer_load_dwordx2 {vr(ACT+4*i+2*h,2)}, v{vL8}, {WS}, s{sAct} offen offset:{2048*(i&1) + 128*h} {ld}')
            else: vm.issue(('A', i), f'buffer_load_dwordx4 {vr(ACT+4*i,4)}, v{vL16}, {WS}, s{sAct} offen offset:{2048*(i&1)} {ld}')
            if i & 1: a(f's_add_u32 s{sAct}, s{sAct}, 4096')
    cur = [0]
    def rdW(i):
        G = i // 4
        off = (G % NSL) * GRP + (i % 4) * 10240
        base = off // 51200 * 51200
        if base != cur[0]:
            for v_ in (vW0, vW1, vW2): a(f'v_add_u32 v{v_}, {(base - cur[0]) & 0xffffffff}, v{v_}')
            cur[0] = base
        off -= base
        return [(('R', i), f'ds_read_b128 {vr(WF[i%3]+4*t,4)}, v{v_} offset:{off + o}')
                for t, (v_, o) in enumerate(((vW0, 0), (vW0, 1024), (vW1, 0), (vW1, 1024), (vW2, 0)))]
    APRE = opt.get('apre_' + kind, 10 if kind == 'o' else 6)
    act_upto(APRE)
    if kind == 'o':
        vm.issue('E', f'buffer_load_dwordx4 {vr(RES+4,4)}, v{vTok}, {sr(sX,4)}, 0 offen')
        vm.issue('E', f'buffer_load_dwordx2 {vr(RES+10,2)}, v{vTok2}, {sr(sX,4)}, 0 offen')
    if kind == 'o' and GE and opt.get('ginloop'):
        pg.start(140 - GE, 140, 0)
        for _ in range(pg.rounds()): vm.issue('G')
    for x in rdW(0) + rdW(1): lg.issue(*x)
    for i in range(NI):
        G = i // 4
        newgrp = kind == 'd' and i % 4 == 2 and i + 2 < NI
        late = newgrp and G + 1 >= NSL
        nxt = rdW(i + 2) if (i + 2 < NI and not late) else []
        wait2(a, vm, [('A', i)], lg, [('R', i + 1 if newgrp else i)])
        if i % (2 if kind == 'o' else 4) == 0: ctx['tr'](PH)
        if newgrp:
            if late: vm.wait(('W', G + 1))
            a('s_barrier')
            if late: nxt = rdW(i + 2)
        for t in range(5):
            c = vr(ACC + 4 * t, 4)
            a(f'v_mfma_f32_16x16x32_bf16 {c}, {vr(WF[i%3]+4*t,4)}, {vr(ACT+4*i,4)}, {c if i else 0}')
            if nxt: lg.issue(*nxt[t])
        if newgrp and G + NSL < NG:
            n0 = 40 * (G + NSL); n1 = min(NS * 5, n0 + 40)
            feed.start(sBase, n0, 0, sT, lds0=((G % NSL) * GRP - n0 * 1024) & 0xffffffff)
            while feed.n < n1: feed.round(n1, ('W', G + NSL))
        act_upto(i + 1 + (APRE if i < opt.get('aramp', 10) else opt.get('apre2', APRE)))
    stamp()
    ctx['tr'](PH)
    k1, k2, k3 = a.label('proj_k1'), a.label('proj_k2'), a.label('proj_k3')
    xch = 0
    a('s_barrier')
    a(f'''
    s_lshl_b32 s{sT}, s{sTg}, 11
    s_mul_i32 s{sT2}, s{sTg}, 3072
    s_add_u32 s{sT2}, s{sT2}, 8192
    s_cmp_eq_u32 s{sKh}, 0
    s_cselect_b32 s{sM}, s{sT}, s{sT2}
    s_cselect_b32 s{sW}, s{sT2}, s{sT}
    v_add_u32 v{vW0}, s{sM}, v{vL16}
    v_add_u32 v{vW1}, s{sW}, v{vL16}
    ds_write_b128 v{vW0}, {vr(ACC+8,4)}
    ds_write_b128 v{vW0}, {vr(ACC+12,4)} offset:1024
    s_cbranch_scc1 {k2}
    ds_write_b128 v{vW0}, {vr(ACC+16,4)} offset:2048
    {k2}:
    ''')
    if kind == 'o':
        vm.wait('E')
        for r in range(4): a(f'v_lshlrev_b32 v{RES+2*r}, 16, v{RES+4+r}\nv_and_b32 v{RES+2*r+1}, 0xffff0000, v{RES+4+r}')
        for r in range(2): a(f'v_lshlrev_b32 v{RES+8+2*r}, 16, v{RES+10+r}\nv_and_b32 v{RES+8+2*r+1}, 0xffff0000, v{RES+10+r}')
    a('s_waitcnt lgkmcnt(0)\ns_barrier')
    ctx['tr'](PH)
    for r in range(3): a(f'ds_read_b128 {vr(WF[0]+4*r,4)}, v{vW1} offset:{1024*r}')
    if kind == 'o':
        pg.start(0, 140 - GE, 0); pg.rounds(opt.get('g0', 2))
    src = [ACC + r for r in range(8)] + [ACC + 16 + r for r in range(4)]
    P = WF[1]
    a('s_waitcnt lgkmcnt(1)')
    for r in range(8): a(f'v_add_f32 v{src[r]}, v{src[r]}, v{WF[0]+r}')
    for r in range(8): a(f'v_fma_f32 v{RES+r}, v{src[r]}, v{GA+r}, v{RES+r}')
    if kind == 'o':
        for r in range(8): a(f'v_mul_f32 v{C1+r}, v{C1+r}, v{RES+r}')
        for r in range(4): a(f'v_cvt_pk_bf16_f32 v{P+r}, v{C1+2*r}, v{C1+2*r+1}')
        s1, s2, t1, t2 = GA, GA + 1, GA + 2, GA + 3
        a(f'''
        s_mul_i32 s{sT}, s{sR}, 20480
        s_mul_i32 s{sT2}, s{sCb}, 2560
        s_add_u32 s{sT}, s{sT}, s{sT2}
        s_add_u32 s{sT}, s{sT}, {WS_X1A}
        s_lshl_b32 s{sT2}, s{sKh}, 10
        s_add_u32 s{sT2}, s{sT2}, s{sT}
        buffer_store_dwordx4 {vr(P,4)}, v{vL16}, {WS}, s{sT2} offen {st}
        v_mul_f32 v{s2}, v{RES}, v{RES}
        v_add_f32 v{s1}, v{RES}, v{RES+1}
        v_fmac_f32 v{s2}, v{RES+1}, v{RES+1}
        ''')
        for r in range(2, 8): a(f'v_add_f32 v{s1}, v{s1}, v{RES+r}\nv_fmac_f32 v{s2}, v{RES+r}, v{RES+r}')
        a(f's_cmp_lg_u32 s{sKh}, 0\ns_cbranch_scc1 {k1}\ns_waitcnt lgkmcnt(0)')
        for r in range(8, 12): a(f'v_add_f32 v{src[r]}, v{src[r]}, v{WF[0]+r}')
        for r in range(8, 12): a(f'v_fma_f32 v{RES+r}, v{src[r]}, v{GA+r}, v{RES+r}')
        for r in range(8, 12): a(f'v_mul_f32 v{C1+r}, v{C1+r}, v{RES+r}')
        for r in range(4, 6): a(f'v_cvt_pk_bf16_f32 v{P+r}, v{C1+2*r}, v{C1+2*r+1}')
        a(f'''
        v_lshrrev_b32 v{vT}, 1, v{lG}
        v_lshlrev_b32 v{vT}, 8, v{vT}
        v_lshl_add_u32 v{vT}, v{lI}, 4, v{vT}
        v_and_b32 v{vT2}, 1, v{lG}
        v_lshl_add_u32 v{vT}, v{vT2}, 3, v{vT}
        buffer_store_dwordx2 {vr(P+4,2)}, v{vT}, {WS}, s{sT} offen offset:2048 {st}
        ''')
        for r in range(8, 12): a(f'v_add_f32 v{s1}, v{s1}, v{RES+r}\nv_fmac_f32 v{s2}, v{RES+r}, v{RES+r}')
        a(f'{k1}:')
        for sw in ('32', '16'):
            a(f'''
            v_mov_b32 v{t1}, v{s1}
            v_mov_b32 v{t2}, v{s2}
            s_nop 1
            v_permlane{sw}_swap_b32 v{s1}, v{t1}
            v_permlane{sw}_swap_b32 v{s2}, v{t2}
            s_nop 0
            v_add_f32 v{s1}, v{s1}, v{t1}
            v_add_f32 v{s2}, v{s2}, v{t2}
            ''')
        a(f'''
        s_lshl_b32 s{sT}, s{sCb}, 8
        s_lshl_b32 s{sT2}, s{sKh}, 7
        s_add_u32 s{sT}, s{sT}, s{sT2}
        s_lshl_b32 s{sT2}, s{sR}, 11
        s_add_u32 s{sT}, s{sT}, s{sT2}
        s_add_u32 s{sT}, s{sT}, {WS_ST}
        v_lshlrev_b32 v{vT}, 3, v{lI}
        s_mov_b64 exec, 0xffff
        buffer_store_dwordx2 {vr(s1,2)}, v{vT}, {WS}, s{sT} offen {st}
        s_mov_b64 exec, -1
        s_waitcnt lgkmcnt(0)
        ''')
        a(f's_lshr_b32 s{sT}, s{sRb}, 2')
        cnt_sig(a, ctx['sSig'], C_OP, sT, sCb, sT2)
    else:
        for r in range(4): a(f'v_cvt_pk_bf16_f32 v{P+r}, v{RES+2*r}, v{RES+2*r+1}')
        a(f'''
        buffer_store_dwordx4 {vr(P,4)}, v{vTok}, {sr(sX,4)}, 0 offen
        s_cmp_lg_u32 s{sKh}, 0
        s_cbranch_scc1 {k1}
        s_waitcnt lgkmcnt(0)
        ''')
        for r in range(8, 12): a(f'v_add_f32 v{src[r]}, v{src[r]}, v{WF[0]+r}')
        for r in range(8, 12): a(f'v_fma_f32 v{RES+r}, v{src[r]}, v{GA+r}, v{RES+r}')
        for r in range(4, 6): a(f'v_cvt_pk_bf16_f32 v{P+r}, v{RES+2*r}, v{RES+2*r+1}')
        a(f'buffer_store_dwordx2 {vr(P+4,2)}, v{vTok2}, {sr(sX,4)}, 0 offen\n{k1}:')
    ctx['tr'](PH)
    V.release(mv); Sg.release(ms)
```

```python
from asm import *
from layout import *
from attn import f2u
from build import srd
from pack import *
from sync import *

QKV_H, QKV_C = 0, 81920
QKV_LDS = QKV_C + 6144

def qkv_ids(a, sWG, sRb, sCb, sT):
    a(f'''
    s_bfe_u32 s{sRb}, s{sWG}, 0x20001
    s_lshl_b32 s{sRb}, s{sRb}, 3
    s_lshr_b32 s{sT}, s{sWG}, 5
    s_add_u32 s{sRb}, s{sRb}, s{sT}
    s_and_b32 s{sCb}, s{sWG}, 1
    s_lshl_b32 s{sCb}, s{sCb}, 2
    s_bfe_u32 s{sT}, s{sWG}, 0x20003
    s_add_u32 s{sCb}, s{sCb}, s{sT}
    ''')

def gu_ids(a, sWG, sRb, sFb, sT):
    a(f'''
    s_bfe_u32 s{sRb}, s{sWG}, 0x10002
    s_lshl_b32 s{sRb}, s{sRb}, 2
    s_bfe_u32 s{sT}, s{sWG}, 0x20003
    s_add_u32 s{sRb}, s{sRb}, s{sT}
    s_and_b32 s{sFb}, s{sWG}, 3
    s_lshl_b32 s{sFb}, s{sFb}, 3
    s_lshr_b32 s{sT}, s{sWG}, 5
    s_add_u32 s{sFb}, s{sFb}, s{sT}
    ''')

L_TAB, L_STAT, L_SPART, L_W0, L_GO, L_MCNT, L_MPART, L_PSTAGE = 81920, 87040, 87552, 140032, 140036, 140040, 140288, 97024

def lds_wait(a, v, sCnt, addr, sleep=1, thr=1):
    lp, out = a.label('spin'), a.label('spin_out')
    a(f"""
    v_mov_b32 v{v}, {addr}
    s_mov_b32 s{sCnt}, {SPIN * 8}
    {lp}:
    ds_read_b32 v{v+1}, v{v}
    s_sub_u32 s{sCnt}, s{sCnt}, 1
    s_cbranch_scc1 {out}
    s_waitcnt lgkmcnt(0)
    v_cmp_gt_u32 vcc, {thr}, v{v+1}
    s_sleep {sleep}
    s_cbranch_vccnz {lp}
    {out}:
    s_waitcnt lgkmcnt(0)
    """)

def gen_qkv(a, V, Sg, ctx, opt=None):
    opt = opt or {}
    ws, sWG, sWave, vLane = ctx['sWS'], ctx['sWG'], ctx['sWave'], ctx['vLane']
    st, ld = 'sc1', ctx['ld_flags']
    stamp = ctx.get('stamp', lambda: None)
    tr = lambda i: ctx['tr'](1, i)
    WS = sr(ws, 4)
    sX, sNonce = ctx['sX'], ctx['sNonce']
    mv, ms = V.mark(), Sg.mark()
    sP, sQ = Sg(4), Sg(4)
    sRb, sCb, sT, sT2, sK_, sW0, sW1, sA, sB, sI2, sTg, sJ, sL, sSeg, sDst, sRole = [Sg() for _ in range(16)]
    sK = sWG
    vT, vT2, vT3, vH0, vH1, vL16 = [V() for _ in range(6)]
    NW = 10
    WF = V(8 * NW, 4)
    m2 = V.mark()
    X = V(40, 4); XF = V(80, 4); PR = V(6, 2)
    vXa, vX1, vH2, vSa, vSb, vPa, vPb = [V() for _ in range(7)]
    CB = [X, X + 16]
    Scr = Regs('v', WF, WF + 8 * NW)
    vS = Scr(4, 2)
    wmod, wpack, wconst, xload, nomod = [a.label(x) for x in ('p0_mod', 'p0_pack', 'p0_const', 'p0_x', 'p0_nomod')]
    a(f"""
    s_load_dwordx4 s[{sP}:{sP+3}], s[0:1], {ARG_C}
    s_load_dwordx2 s[{sQ}:{sQ+1}], s[0:1], {ARG_WQKV}
    v_mov_b32 v{vS}, {L_W0}
    v_mov_b32 v{vS+2}, 0
    v_mov_b32 v{vS+3}, 0
    ds_write_b64 v{vS}, {vr(vS+2,2)}
    ds_write_b32 v{vS}, v{vS+2} offset:8
    """)
    qkv_ids(a, sWG, sRb, sCb, sT)
    a(f"""
    v_lshrrev_b32 v{vT}, 3, v{vLane}
    v_and_b32 v{vT2}, 7, v{vLane}
    v_mul_u32_u24 v{vXa}, 1280, v{vT}
    v_lshl_add_u32 v{vXa}, v{vT2}, 4, v{vXa}
    v_lshlrev_b32 v{vL16}, 4, v{vLane}
    s_mul_i32 s{sT}, s{sRb}, {64*1280}
    s_lshl_b32 s{sT2}, s{sWave}, 7
    s_add_u32 s{sA}, s{sT}, s{sT2}
    s_lshr_b32 s{sI2}, s{sWave}, 2
    s_add_u32 s{sI2}, s{sI2}, 8
    s_and_b32 s{sTg}, s{sWave}, 3
    s_lshl_b32 s{sTg}, s{sTg}, 1
    s_mul_i32 s{sB}, s{sTg}, {8*1280}
    s_add_u32 s{sB}, s{sB}, s{sT}
    s_lshl_b32 s{sT2}, s{sI2}, 7
    s_add_u32 s{sB}, s{sB}, s{sT2}
    s_waitcnt lgkmcnt(0)
    s_load_dword s{sNonce}, s[{ws}:{ws+1}], {WS_EPOCH}
    s_barrier
    """)
    srd(a, sX, sX, S * 1280)
    tr(1)
    def ldX_all():
        for n in range(10):
            if n == 8: a(f's_mov_b32 s{sA}, s{sB}')
            a(f'buffer_load_dwordx4 {vr(X+4*n,4)}, v{vXa}, {sr(sX,4)}, s{sA} offen')
            if n < 9: a(f's_add_u32 s{sA}, s{sA}, {8*1280}')
    def addr_setup():
        vA0, vA1 = XF, XF + 1
        a(f"""
        v_and_b32 v{vA0}, 3, v{vT2}
        v_lshrrev_b32 v{vA1}, 2, v{vT2}
        v_mul_u32_u24 v{vT3}, 12, v{vA1}
        v_add_u32 v{vT3}, v{vT3}, v{vA0}
        v_xor_b32 v{vT3}, v{vT3}, v{vT}
        v_lshlrev_b32 v{vT3}, 4, v{vT3}
        v_lshl_add_u32 v{vT3}, v{vA0}, 8, v{vT3}
        v_lshl_add_u32 v{vT3}, v{vA1}, 12, v{vT3}
        s_lshl_b32 s{sT}, s{sWave}, 13
        v_add_u32 v{vH1}, s{sT}, v{vT3}
        s_lshl_b32 s{sT}, s{sI2}, 13
        s_lshl_b32 s{sT2}, s{sTg}, 9
        s_add_u32 s{sT}, s{sT}, s{sT2}
        v_add_u32 v{vT3}, s{sT}, v{vT3}
        v_lshlrev_b32 v{vA0}, 5, v{vT2}
        s_lshl_b32 s{sT}, s{sWave}, 8
        s_add_u32 s{sT}, s{sT}, {L_TAB}
        v_add_u32 v{vX1}, s{sT}, v{vA0}
        s_lshl_b32 s{sT}, s{sI2}, 8
        s_add_u32 s{sT}, s{sT}, {L_TAB}
        v_add_u32 v{vH2}, s{sT}, v{vA0}
        v_lshlrev_b32 v{vSa}, 3, v{vT}
        v_add_u32 v{vSa}, {L_STAT}, v{vSa}
        s_lshl_b32 s{sT}, s{sTg}, 6
        v_add_u32 v{vSb}, s{sT}, v{vSa}
        v_xor_b32 v{vH0}, 128, v{vH1}
        v_mul_u32_u24 v{vA0}, 80, v{vT}
        s_lshl_b32 s{sT}, s{sWave}, 3
        s_add_u32 s{sT}, s{sT}, {L_SPART}
        v_add_u32 v{vPa}, s{sT}, v{vA0}
        s_mul_i32 s{sT}, s{sTg}, 640
        s_lshl_b32 s{sT2}, s{sI2}, 3
        s_add_u32 s{sT}, s{sT}, s{sT2}
        s_add_u32 s{sT}, s{sT}, {L_SPART}
        v_add_u32 v{vPb}, s{sT}, v{vA0}
        """)
    def x_stats():
        a(f's_mov_b32 s{sT}, 0x3f803f80')
        for n in range(10):
            p = XF + 2 * n
            a(f'v_dot2_f32_bf16 v{p}, v{X+4*n}, s{sT}, 0\nv_dot2_f32_bf16 v{p+1}, v{X+4*n}, v{X+4*n}, 0')
            for r in range(1, 4):
                a(f'v_dot2_f32_bf16 v{p}, v{X+4*n+r}, s{sT}, v{p}\nv_dot2_f32_bf16 v{p+1}, v{X+4*n+r}, v{X+4*n+r}, v{p+1}')
        a('s_nop 0')
        for dpp in ('quad_perm:[1,0,3,2]', 'quad_perm:[2,3,0,1]', 'row_half_mirror'):
            for e in range(20): a(f'v_add_f32_dpp v{XF+e}, v{XF+e}, v{XF+e} {dpp} row_mask:0xf bank_mask:0xf')
        a('s_mov_b32 exec_lo, 0x01010101\ns_mov_b32 exec_hi, 0x01010101')
        for n in range(10): a(f'ds_write_b64 v{vPa if n < 8 else vPb}, {vr(XF+2*n,2)} offset:{640*(n&7)}')
        a('s_mov_b64 exec, -1')
    L = lambda *n: [a.label('p0_' + x) for x in n]
    b1, mod2, pack2, const2, late2, none2, stats_, flag3, xgo, b2, const1 = L('b1', 'mod2', 'pack2', 'const2', 'late2', 'none2', 'stats', 'flag3', 'xgo', 'b2', 'const1')
    a(f"""
    s_mov_b32 s{sRole}, 3
    s_cmp_eq_u32 s{sWave}, 7
    s_cbranch_scc1 {wconst}
    s_cmp_ge_u32 s{sWave}, 5
    s_cbranch_scc1 {wpack}
    s_cmp_eq_u32 s{sWave}, 4
    s_cbranch_scc1 {xload}
    """)
    NR = 5
    MP = opt.get('mpos', 2)
    acc = Scr(8); vM = Scr(); acc0, vM0 = acc, vM
    if MP == 1: Scr.release(WF + 48)
    W = [Scr(4) for _ in range(NR)]; C = [Scr() for _ in range(NR)]; vR, vO = Scr(), Scr(); Cl = [Scr() for _ in range(NR)]
    def mod_loads():
        for i in range(NR):
            a(f'buffer_load_ushort v{C[i]}, v{vR}, {sr(sP,4)}, 0 offen offset:{16*i}')
        for i in range(NR):
            a(f'buffer_load_dwordx4 {vr(W[i],4)}, v{vO}, {sr(sQ,4)}, s{sJ} offen')
            if i < NR - 1: a(f's_add_u32 s{sJ}, s{sJ}, {8*7680}')
    def mod_fma(younger, acc=acc, vM=vM):
        a(f's_waitcnt vmcnt({NR + younger})')
        for i in range(NR): a(f'v_lshlrev_b32 v{C[i]}, 16, v{C[i]}')
        for i in range(NR): a(f'v_mul_f32 v{acc+i}, {hex(f2u(-1.4426950408889634))}, v{C[i]}')
        for i in range(NR): a(f'v_exp_f32 v{acc+i}, v{acc+i}')
        for i in range(NR): a(f'v_add_f32 v{acc+i}, 1.0, v{acc+i}')
        for i in range(NR): a(f'v_rcp_f32 v{acc+i}, v{acc+i}')
        for i in range(NR): a(f'v_mul_f32 v{C[i]}, v{C[i]}, v{acc+i}')
        for i in range(NR): a(f'v_cvt_pk_bf16_f32 v{C[i]}, v{C[i]}, v{C[i]}')
        for i in range(NR): a(f'v_and_b32 v{Cl[i]}, 0xffff, v{C[i]}\nv_and_b32 v{C[i]}, 0xffff0000, v{C[i]}')
        for i in range(NR):
            a(f's_waitcnt vmcnt({NR-1-i + younger})')
            for r in range(4):
                a(f'v_dot2_f32_bf16 v{acc+2*r}, v{W[i]+r}, v{Cl[i]}, {"v" + str(acc+2*r) if i else 0}')
                a(f'v_dot2_f32_bf16 v{acc+2*r+1}, v{W[i]+r}, v{C[i]}, {"v" + str(acc+2*r+1) if i else 0}')
        a('s_nop 0')
    def mod_partial(younger, acc, vM, sWave=sWave):
        mod_fma(younger, acc, vM)
        for e in range(8): a(f'v_add_f32_dpp v{acc+e}, v{acc+e}, v{acc+e} row_ror:8 row_mask:0xf bank_mask:0xf')
        a(f"""
        v_lshrrev_b32 v{vM}, 4, v{vLane}
        v_lshlrev_b32 v{vM}, 8, v{vM}
        v_and_b32 v{vR}, 7, v{vLane}
        v_lshl_add_u32 v{vM}, v{vR}, 5, v{vM}
        s_lshl_b32 s{sT}, s{sWave}, 10
        s_add_u32 s{sT}, s{sT}, {L_MPART}
        v_add_u32 v{vM}, s{sT}, v{vM}
        s_mov_b32 exec_lo, 0x00ff00ff
        s_mov_b32 exec_hi, 0x00ff00ff
        ds_write_b128 v{vM}, {vr(acc,4)}
        ds_write_b128 v{vM}, {vr(acc+4,4)} offset:16
        s_mov_b64 exec, -1
        """)
    def mod_final(R, vM, vR):
        a(f'v_lshlrev_b32 v{vM}, 2, v{vLane}\nv_add_u32 v{vR}, {L_MPART}, v{vM}')
        for i in range(16): a(f'ds_read_b32 v{R+i}, v{vR} offset:{256*i}')
        a(f"""
        s_and_b32 s{sT}, s{sK}, 3
        s_lshr_b32 s{sT2}, s{sK}, 2
        s_mul_i32 s{sJ}, s{sT2}, 26
        s_lshr_b32 s{sJ}, s{sJ}, 8
        s_bitcmp1_b32 0x12, s{sJ}
        s_cselect_b32 s{sJ}, 1.0, 0
        s_cmp_eq_u32 s{sT}, 0
        s_cselect_b32 s{sJ}, s{sJ}, 0
        s_mul_i32 s{sL}, s{sT}, {MODQ}
        s_lshl_b32 s{sSeg}, s{sT2}, 8
        s_add_u32 s{sL}, s{sL}, s{sSeg}
        s_add_u32 s{sL}, s{sL}, {WS_MODP}
        s_waitcnt lgkmcnt(0)
        """)
        for d in (8, 4, 2, 1):
            for i in range(d): a(f'v_add_f32 v{R+i}, v{R+i}, v{R+i+d}')
        a(f'v_add_f32 v{R}, s{sJ}, v{R}\nbuffer_store_dword v{R}, v{vM}, {WS}, s{sL} offen sc1')
    def modb_store(acc, vM, vR):
        nob = a.label('qkv_nob')
        a(f"""
        s_sub_u32 s{sJ}, s{sT2}, 30
        s_cmp_ge_u32 s{sJ}, 20
        s_cbranch_scc1 {nob}
        s_cmp_ge_u32 s{sJ}, 10
        s_cselect_b32 s{sL}, 10, 0
        s_cselect_b32 s{sSeg}, 0, 128
        s_sub_u32 s{sJ}, s{sJ}, s{sL}
        s_lshl_b32 s{sJ}, s{sJ}, 11
        s_add_u32 s{sJ}, s{sJ}, s{sSeg}
        s_lshl_b32 s{sT}, s{sT}, 5
        s_add_u32 s{sJ}, s{sJ}, s{sT}
        s_add_u32 s{sJ}, s{sJ}, {WS_MODB}
        v_cvt_pk_bf16_f32 v{acc+1}, v{acc}, v{acc}
        v_lshrrev_b32 v{vM}, 3, v{vLane}
        v_and_b32 v{vR}, 7, v{vLane}
        v_and_b32 v{acc+2}, 0xffff0000, v{acc+1}
        v_lshlrev_b32 v{vM}, 8, v{vM}
        v_sub_f32 v{acc+2}, v{acc}, v{acc+2}
        v_lshl_add_u32 v{vM}, v{vR}, 1, v{vM}
        v_cvt_pk_bf16_f32 v{acc+2}, v{acc+2}, v{acc+2}
        buffer_store_short v{acc+1}, v{vM}, {WS}, s{sJ} offen sc1
        buffer_store_short v{acc+2}, v{vM}, {WS}, s{sJ} offen offset:16 sc1
        {nob}:
        """)
    a(f"""
    s_mov_b32 s{sQ}, s{sP+2}
    s_mov_b32 s{sQ+1}, s{sP+3}
    """)
    srd(a, sQ, sQ, 640 * 7680); srd(a, sP, sP, 1280)
    def mod_addr(sWave=sWave):
        a(f"""
        s_and_b32 s{sT}, s{sK}, 3
        s_mul_i32 s{sT}, s{sT}, 160
        s_mul_i32 s{sT2}, s{sWave}, 40
        s_add_u32 s{sT}, s{sT}, s{sT2}
        v_lshrrev_b32 v{vR}, 3, v{vLane}
        v_add_u32 v{vR}, s{sT}, v{vR}
        v_mul_u32_u24 v{vO}, 7680, v{vR}
        v_and_b32 v{C[0]}, 7, v{vLane}
        v_lshl_add_u32 v{vO}, v{C[0]}, 4, v{vO}
        v_lshlrev_b32 v{vR}, 1, v{vR}
        s_lshr_b32 s{sJ}, s{sK}, 2
        s_lshl_b32 s{sJ}, s{sJ}, 7
        """)
    a(f"""
    s_cmp_ge_u32 s{sK}, 240
    s_cbranch_scc1 {xload}
    s_mov_b32 s{sRole}, {4 if MP == 1 else 3}
    s_cmp_ge_u32 s{sK}, {240 if MP == 2 else 80}
    s_cbranch_scc1 {xload}
    """)
    mod_addr(); mod_loads()
    a(f's_mov_b32 s{sRole}, 0\ns_branch {xload}\n{mod2}:')
    mod_partial(0, acc, vM)
    per = 32
    assert 80 * per >= N_CNT
    a(f"""
    s_mov_b64 exec, 1
    v_mov_b32 v{vS}, {L_MCNT}
    v_mov_b32 v{vS+1}, 1
    s_waitcnt lgkmcnt(0)
    ds_add_u32 v{vS}, v{vS+1}
    s_mov_b64 exec, -1
    """)
    tr(2)
    a(f"""
    s_mov_b32 s{sRole}, 3
    s_cmp_lg_u32 s{sWave}, 0
    s_cbranch_scc1 {xgo}
    v_lshrrev_b32 v{vO}, 3, v{vLane}
    v_lshlrev_b32 v{vO}, 7, v{vO}
    v_add_u32 v{vO}, v{vO}, v{vL16}
    s_mul_i32 s{sT}, s{sK}, {per * 256}
    s_min_u32 s{sT}, s{sT}, {(N_CNT - per) * 256}
    s_add_u32 s{sT}, s{sT}, {WS_FLAG}
    s_cmp_ge_u32 s{sK}, 80
    s_cselect_b32 s{sT}, 0x40000000, s{sT}
    """)
    for r in range(4): a(f'v_mov_b32 v{W[4]+r}, 0')
    for i in range(per // 8):
        a(f'buffer_store_dwordx4 {vr(W[4],4)}, v{vO}, {WS}, s{sT} offen offset:{2048*(i&1)} sc1')
        if i == 1: a(f's_add_u32 s{sT}, s{sT}, 4096')
    lds_wait(a, vS, sT, L_MCNT, thr=4)
    mod_final(W[0], vM, vO)
    if MP == 2: modb_store(W[0], vM, vO)
    a(f"""
    s_lshl_b32 s{sW1}, s{sK}, 2
    s_add_u32 s{sW1}, s{sW1}, {F_MOD}
    s_mov_b32 s{sW0}, 0xff
    s_branch {flag3}
    """)
    pv, pst = L('pv', 'pst')
    a(f"""
    {wpack}:
    s_lshr_b32 s{sJ}, s{sWG}, 1
    s_lshl_b32 s{sJ}, s{sJ}, 1
    s_add_u32 s{sJ}, s{sJ}, s{sWave}
    s_sub_u32 s{sJ}, s{sJ}, 5
    s_cmp_ge_u32 s{sJ}, 240
    s_cbranch_scc1 {xload}
    s_setprio 3
    s_mul_i32 s{sT}, s{sJ}, 1093
    s_lshr_b32 s{sT}, s{sT}, 16
    s_mul_i32 s{sT2}, s{sT}, 60
    s_sub_u32 s{sJ}, s{sJ}, s{sT2}
    s_and_b32 s{sL}, s{sWG}, 1
    s_lshl_b32 s{sL}, s{sL}, 2
    s_add_u32 s{sL}, s{sL}, s{sT}
    s_lshl_b32 s{sW1}, s{sL}, 6
    s_add_u32 s{sW1}, s{sW1}, s{sJ}
    s_lshl_b32 s{sW1}, s{sW1}, 2
    s_add_u32 s{sW1}, s{sW1}, {F_PK}
    s_mul_i32 s{sSeg}, s{sJ}, 3277
    s_lshr_b32 s{sSeg}, s{sSeg}, 16
    s_mul_i32 s{sT2}, s{sSeg}, 20
    s_sub_u32 s{sJ}, s{sJ}, s{sT2}
    s_mul_i32 s{sW0}, s{sJ}, {32*3840}
    s_mul_i32 s{sT2}, s{sSeg}, 1280
    s_add_u32 s{sW0}, s{sW0}, s{sT2}
    s_mul_i32 s{sT2}, s{sL}, 160
    s_add_u32 s{sW0}, s{sW0}, s{sT2}
    s_mul_i32 s{sDst}, s{sL}, 15
    s_mul_i32 s{sT2}, s{sSeg}, 5
    s_add_u32 s{sDst}, s{sDst}, s{sT2}
    s_mul_i32 s{sDst}, s{sDst}, 20
    s_add_u32 s{sDst}, s{sDst}, s{sJ}
    s_lshl_b32 s{sDst}, s{sDst}, 10
    s_add_u32 s{sDst}, s{sDst}, {WS_PQKV}
    s_sub_u32 s{sL}, s{sWave}, 5
    s_mul_i32 s{sL}, s{sL}, {PACK5_LDS}
    s_add_u32 s{sL}, s{sL}, {L_PSTAGE}
    """)
    srd(a, sQ, sQ, 640 * 3840)
    mk = Scr.mark(); Scr.release(vS + 4)
    vD, vDt = Scr(), Scr()
    pack5_addr(a, vD, vLane, 3840, vDt)
    pack5_load(a, vD, sQ, sW0, sL, sT, sT2, lambda sD, g, jh: a(f's_mov_b32 s{sD}, {(8*g + 4*jh) * 3840}'))
    a(f's_mov_b32 s{sRole}, 1\ns_mov_b32 s{sW0}, 1\ns_branch {xload}\n{pack2}:')
    a(f's_cmp_eq_u32 s{sSeg}, 2\ns_cbranch_scc1 {pv}')
    pack5_store(a, Scr, vLane, ws, sL, 'qk', sDst, 20480, st)
    a(f's_branch {pst}\n{pv}:')
    pack5_store(a, Scr, vLane, ws, sL, 'natural', sDst, 20480, st)
    a(f'{pst}:')
    a(f'{flag3}:')
    tr(8)
    a(f"""
    s_add_u32 s{sT}, s{sNonce}, 1
    v_mov_b32 v{vS+1}, s{sT}
    v_lshlrev_b32 v{vS}, 10, v{vLane}
    s_waitcnt vmcnt(0)
    s_mov_b32 exec_lo, s{sW0}
    s_mov_b32 exec_hi, 0
    buffer_store_dword v{vS+1}, v{vS}, {WS}, s{sW1} offen sc1
    s_mov_b64 exec, -1
    """)
    tr(3)
    a(f's_setprio 0\ns_mov_b32 s{sRole}, 3\ns_branch {xgo}')
    a(f'{wconst}:\ns_mov_b32 s{sRole}, 2')
    if not opt.get('noftouch'):
        a(f'''
        v_lshlrev_b32 v{vS}, 7, v{vLane}
        s_and_b32 s{sT}, s{sWG}, 7
        s_lshl_b32 s{sT}, s{sT}, 10
        s_add_u32 s{sT}, s{sT}, {F_MOD}
        s_lshl_b32 s{sT2}, s{sCb}, 8
        s_add_u32 s{sT2}, s{sT2}, {F_PK}
        s_mov_b64 exec, 0xff
        buffer_load_dword v{vS+1}, v{vS}, {WS}, s{sT} offen sc1
        s_mov_b64 exec, 3
        buffer_load_dword v{vS+2}, v{vS}, {WS}, s{sT2} offen sc1
        s_mov_b64 exec, -1
        ''')
    a(f's_branch {xload}\n{const2}:')
    one = Scr(4, 4); vK = Scr()
    for r in range(4): a(f'v_mov_b32 v{one+r}, 0x3f803f80')
    a(f"""
    v_lshrrev_b32 v{vK}, 3, v{vLane}
    v_mul_u32_u24 v{vK}, {KVT - 128}, v{vK}
    v_add_u32 v{vK}, v{vK}, v{vL16}
    s_lshl_b32 s{sT}, s{sCb}, 6
    s_lshl_b32 s{sT2}, s{sRb}, 1
    s_add_u32 s{sT}, s{sT}, s{sT2}
    s_mul_i32 s{sT}, s{sT}, {KVT}
    s_add_u32 s{sT}, s{sT}, {WS_KV + KV_ONE}
    s_mov_b64 exec, 0xffff
    buffer_store_dwordx4 {vr(one,4)}, v{vK}, {WS}, s{sT} offen sc1
    s_mov_b64 exec, -1
    """)
    npf = ctx['code_prefetch'](Scr, sP, sT)
    a(f"""
    s_waitcnt vmcnt({1 + npf})
    s_branch {stats_}
    {xload}:
    """)
    if not opt.get('noba'): a('s_barrier')
    tr(11)
    a(f"""
    s_cmp_eq_u32 s{sRole}, 0
    s_cbranch_scc1 {mod2}
    s_cmp_eq_u32 s{sRole}, 1
    s_cbranch_scc1 {pack2}
    {xgo}:
    """)
    tr(12)
    XD = opt.get('xdma', 0)
    if XD:
        nx, lx = L('nox', 'lx')
        a(f"""
        s_cmp_eq_u32 s{sWave}, 4
        s_cselect_b32 s{sT}, 0, 5
        s_cmp_lt_u32 s{sWave}, 4
        s_cbranch_scc1 {nx}
        s_bitcmp1_b32 0x60, s{sWave}
        s_cbranch_scc1 {nx}
        s_mul_i32 s{sA}, s{sRb}, {64*1280}
        s_lshl_b32 s{sT2}, s{sT}, 7
        s_add_u32 s{sA}, s{sA}, s{sT2}
        s_lshl_b32 s{sT}, s{sT}, 13
        s_mov_b32 s{sB}, 5
        {lx}:
        """)
        for n in range(8):
            a(f's_mov_b32 m0, s{sT}\ns_add_u32 s{sT}, s{sT}, 1024\nbuffer_load_dwordx4 v{vXa}, {sr(sX,4)}, s{sA} offen lds\ns_add_u32 s{sA}, s{sA}, {8*1280 if n < 7 else (128 - 7*8*1280) & 0xffffffff}')
        a(f's_sub_u32 s{sB}, s{sB}, 1\ns_cmp_lg_u32 s{sB}, 0\ns_cbranch_scc1 {lx}\n{nx}:')
    else: ldX_all()
    addr_setup()
    if 'early' in ctx: ctx['early']()
    tr(13)
    a(f"""
    s_cmp_eq_u32 s{sRole}, 2
    s_cbranch_scc1 {const2}
    s_waitcnt vmcnt(0)
    {stats_}:
    """)
    if XD:
        a(f"""
        s_lshl_b32 s{sT}, s{sWave}, 13
        v_add_u32 v{XF}, s{sT}, v{vL16}
        s_lshl_b32 s{sT}, s{sI2}, 13
        s_lshl_b32 s{sT2}, s{sTg}, 10
        s_add_u32 s{sT}, s{sT}, s{sT2}
        v_add_u32 v{XF+1}, s{sT}, v{vL16}
        s_barrier
        """)
        for n in range(10): a(f'ds_read_b128 {vr(X+4*n,4)}, v{XF + (n >> 3)} offset:{1024*(n&7)}')
        a('s_waitcnt lgkmcnt(0)')
    tr(10)
    if MP == 1:
        a(f's_cmp_lg_u32 s{sRole}, 4\ns_cbranch_scc1 {late2}')
        mod_addr(); mod_loads()
        a(f'{late2}:')
    x_stats()
    a(f"""
    {b1}:
    s_waitcnt lgkmcnt(0)
    s_barrier
    """)
    tr(4)
    a(f's_cmp_lg_u32 s{sWave}, 4\ns_cbranch_scc1 {b2}')
    sp = XF + 20
    a(f'v_mul_u32_u24 v{vM}, 80, v{vLane}\nv_add_u32 v{vM}, {L_SPART}, v{vM}')
    for i in range(5): a(f'ds_read_b128 {vr(sp+4*i,4)}, v{vM} offset:{16*i}')
    a(f'v_lshlrev_b32 v{vM}, 3, v{vLane}\nv_add_u32 v{vM}, {L_STAT}, v{vM}\ns_waitcnt lgkmcnt(0)')
    for i in range(1, 10): a(f'v_add_f32 v{sp}, v{sp}, v{sp+2*i}\nv_add_f32 v{sp+1}, v{sp+1}, v{sp+2*i+1}')
    a(f"""
    v_mul_f32 v{sp+2}, {hex(f2u(1/640))}, v{sp}
    v_mul_f32 v{sp+1}, {hex(f2u(1/640))}, v{sp+1}
    v_fma_f32 v{sp+1}, -v{sp+2}, v{sp+2}, v{sp+1}
    v_max_f32 v{sp+1}, 0, v{sp+1}
    v_add_f32 v{sp+1}, {hex(f2u(1e-5))}, v{sp+1}
    v_rsq_f32 v{sp}, v{sp+1}
    s_nop 0
    v_mul_f32_e64 v{sp+1}, -v{sp+2}, v{sp}
    ds_write_b64 v{vM}, {vr(sp,2)}
    {b2}:
    s_waitcnt lgkmcnt(0)
    s_barrier
    s_add_u32 s{sNonce}, s{sNonce}, 1
    """)
    tr(5)
    def normalise():
        def rdS(n):
            a(f'ds_read_b64 {vr(PR+2*(n%3),2)}, v{vSa if n < 8 else vSb} offset:{64*(n&7)}')
        rdS(0); rdS(1)
        for n in range(10):
            pr = PR + 2 * (n % 3)
            for r in range(4):
                a(f'v_lshlrev_b32 v{XF+8*n+2*r}, 16, v{X+4*n+r}\nv_and_b32 v{XF+8*n+2*r+1}, 0xffff0000, v{X+4*n+r}')
            a(f's_waitcnt lgkmcnt({1 if n < 9 else 0})')
            for r in range(4):
                a(f'v_pk_fma_f32 {vr(XF+8*n+2*r,2)}, {vr(XF+8*n+2*r,2)}, {vr(pr,2)}, {vr(pr,2)} op_sel:[0,0,1] op_sel_hi:[1,0,1]')
            if n < 8: rdS(n + 2)
    if opt.get('normfirst', 0): normalise()
    a(f"""
    s_lshl_b32 s{sT2}, s{sWave}, 2
    s_lshr_b32 s{sW0}, 0xeca47520, s{sT2}
    s_and_b32 s{sW0}, s{sW0}, 15
    s_lshr_b32 s{sW1}, 0xedb98631, s{sT2}
    s_and_b32 s{sW1}, s{sW1}, 15
    s_mul_i32 s{sT2}, s{sCb}, 15
    s_add_u32 s{sW0}, s{sW0}, s{sT2}
    s_add_u32 s{sW1}, s{sW1}, s{sT2}
    s_mul_i32 s{sW0}, s{sW0}, 20480
    s_mul_i32 s{sW1}, s{sW1}, 20480
    s_add_u32 s{sW0}, s{sW0}, {WS_PQKV}
    s_add_u32 s{sW1}, s{sW1}, {WS_PQKV}
    s_cmp_eq_u32 s{sWave}, 7
    s_cselect_b32 s{sW1}, 0x40000000, s{sW1}
    """)
    vm = Cnt(a, 'vmcnt', 63)
    def ldW(s_):
        vm.issue(('W', s_), f'buffer_load_dwordx4 {vr(WF+8*(s_%NW),4)}, v{vL16}, {WS}, s{sW0} offen offset:{1024*(s_&3)} {ld}')
        vm.issue(('W', s_), f'buffer_load_dwordx4 {vr(WF+8*(s_%NW)+4,4)}, v{vL16}, {WS}, s{sW1} offen offset:{1024*(s_&3)} {ld}')
        if s_ & 3 == 3 and s_ < 19: a(f's_add_u32 s{sW0}, s{sW0}, 4096\ns_add_u32 s{sW1}, s{sW1}, 4096')
    NPRE = opt.get('npre', 6 if MP == 1 else 8); NP0 = opt.get('np0', 4)
    w7, b3 = a.label('p0_w7'), a.label('p0_b3')
    tr(14)
    a(f's_cmp_eq_u32 s{sWave}, 7\ns_cbranch_scc1 {w7}')
    lds_wait(a, PR, sT, L_GO)
    a(f's_branch {b3}\n{w7}:')
    F = PR
    lp, out = a.label('p0_fp'), a.label('p0_fpo')
    a(f"""
    v_lshlrev_b32 v{vPa}, 2, v{vLane}
    v_min_u32 v{vPb}, 15, v{vLane}
    v_lshlrev_b32 v{vPb}, 2, v{vPb}
    v_min_u32 v{vXa}, 59, v{vLane}
    v_lshlrev_b32 v{vXa}, 2, v{vXa}
    s_and_b32 s{sT}, s{sWG}, 7
    s_lshl_b32 s{sT}, s{sT}, 10
    s_add_u32 s{sT}, s{sT}, {F_MOD}
    s_lshl_b32 s{sT2}, s{sCb}, 8
    s_add_u32 s{sT2}, s{sT2}, {F_PK}
    s_mov_b32 s{sJ}, {SPIN}
    {lp}:
    buffer_load_dword v{F}, v{vPa}, {WS}, s{sT} offen sc1
    buffer_load_dword v{F+1}, v{vPb}, {WS}, s{sT} offen offset:256 sc1
    buffer_load_dword v{F+2}, v{vXa}, {WS}, s{sT2} offen sc1
    s_sub_u32 s{sJ}, s{sJ}, 1
    s_cbranch_scc1 {out}
    s_waitcnt vmcnt(0)
    v_xor_b32 v{F}, s{sNonce}, v{F}
    v_xor_b32 v{F+1}, s{sNonce}, v{F+1}
    v_xor_b32 v{F+2}, s{sNonce}, v{F+2}
    v_or3_b32 v{F}, v{F}, v{F+1}, v{F+2}
    v_cmp_ne_u32 vcc, 0, v{F}
    s_nop 0
    s_cbranch_vccnz {lp}
    {out}:
    s_waitcnt vmcnt(0)
    v_mov_b32 v{F}, {L_GO}
    v_mov_b32 v{F+1}, 1
    ds_write_b32 v{F}, v{F+1}
    {b3}:
    """)
    tr(6)
    nt_ = a.label('p0_notab')
    TP = WF + 8 * NP0
    a(f's_cmp_ge_u32 s{sWave}, 5\ns_cselect_b32 s{sT}, 0x40000000, {WS_MODP}\ns_lshl_b32 s{sT2}, s{sWave}, 10\ns_add_u32 s{sT}, s{sT}, s{sT2}')
    for i in range(4):
        a(f'buffer_load_dwordx4 {vr(TP+4*i,4)}, v{vL16}, {WS}, s{sT} offen {ld}')
        if i < 3: a(f's_add_u32 s{sT}, s{sT}, {MODQ}')
    for s_ in range(NP0): ldW(s_)
    if not opt.get('normfirst', 0): normalise()
    a(f'''
    s_add_u32 s{sT2}, s{sT2}, {L_TAB}
    v_add_u32 v{PR}, s{sT2}, v{vL16}
    s_cmp_ge_u32 s{sWave}, 5
    s_cbranch_scc1 {nt_}
    s_waitcnt vmcnt({2*NP0})
    ''')
    for r in range(4): a(f'v_add_f32 v{TP+r}, v{TP+r}, v{TP+4+r}\nv_add_f32 v{TP+8+r}, v{TP+8+r}, v{TP+12+r}')
    for r in range(4): a(f'v_add_f32 v{TP+r}, v{TP+r}, v{TP+8+r}')
    a(f'ds_write_b128 v{PR}, {vr(TP,4)}\n{nt_}:\ns_waitcnt vmcnt({2*NP0}) lgkmcnt(0)\ns_barrier')
    stamp()
    tr(7)
    for b, ad in ((0, vX1), (1, vH2)):
        for h in range(2):
            a(f'ds_read_b128 {vr(CB[b]+4*h,4)}, v{ad} offset:{2560 + 16*h}')
            a(f'ds_read_b128 {vr(CB[b]+8+4*h,4)}, v{ad} offset:{16*h}')
    for n in range(10):
        c = CB[n >> 3]
        if n == 0: a('s_waitcnt lgkmcnt(4)')
        if n == 8: a('s_waitcnt lgkmcnt(8)')
        if NP0 + n < NPRE: ldW(NP0 + n)
        for r in range(4):
            a(f'v_pk_fma_f32 {vr(XF+8*n+2*r,2)}, {vr(XF+8*n+2*r,2)}, {vr(c+2*r,2)}, {vr(c+8+2*r,2)}')
        for r in range(4):
            a(f'v_cvt_pk_bf16_f32 v{XF+8*n+r}, v{XF+8*n+2*r}, v{XF+8*n+2*r+1}')
        if n == 8: a(f'v_mov_b32 v{vH1}, v{vT3}\nv_xor_b32 v{vH0}, 128, v{vT3}')
        a(f'ds_write_b128 v{vH0 if n & 1 else vH1}, {vr(XF+8*n,4)} offset:{1024*((n&7)>>1)}')
    V.release(m2)
    ACT = [V(16, 4), V(16, 4), V(16, 4)]; ACC = V(32, 4)
    lI, lG = V(), V()
    a(f'''
    v_and_b32 v{lI}, 15, v{vLane}
    v_lshrrev_b32 v{lG}, 4, v{vLane}
    v_xor_b32 v{vH0}, v{lI}, v{lG}
    v_lshlrev_b32 v{vH0}, 4, v{vH0}
    v_lshl_add_u32 v{vH0}, v{lG}, 8, v{vH0}
    v_xor_b32 v{vH1}, {12*16}, v{vH0}
    s_waitcnt lgkmcnt(0)
    s_barrier
    ''')
    stamp()
    if MP == 1:
        assert NPRE <= 6
        nl = a.label('p0_nolate')
        a(f's_cmp_lg_u32 s{sRole}, 4\ns_cbranch_scc1 {nl}')
        mod_partial(len(vm.q), ACC, vT3)
        a(f'{nl}:')
    q0 = list(vm.q)
    lv, lv1, fin = [a.label(x) for x in ('qkv_v', 'qkv_v1', 'qkv_fin')]
    def loop(swap, nt):
        def rd(s_):
            vh = vH1 if s_ & 1 else vH0
            return [f'ds_read_b128 {vr(ACT[s_%3]+4*tt,4)}, v{vh} offset:{(s_&15)*4096 + tt*1024}' for tt in range(4)]
        a('\n'.join(rd(0) + rd(1)))
        vm.q = list(q0)
        for s_ in range(20):
            if opt.get('ladder', 1) and s_ % 5 == 0: a(f's_setprio {3 - s_ // 5}')
            n_ = vm.need(('W', s_))
            a(f's_waitcnt {"" if n_ is None else f"vmcnt({n_})"} lgkmcnt({4 if s_ < 19 else 0})')
            if s_ == 14: a(f'v_add_u32 v{vH0}, 65536, v{vH0}')
            if s_ == 15: a(f'v_add_u32 v{vH1}, 65536, v{vH1}')
            R_ = rd(s_ + 2) if s_ < 18 else []
            if nt == 1 and s_ == opt.get('mtouch', -1):
                a(f'''
                s_mov_b32 s{sQ}, s{sP+2}
                s_mov_b32 s{sQ+1}, s{sP+3}
                s_mov_b32 s{sQ+2}, {640 * 7680}
                s_mov_b32 s{sQ+3}, 0x20000
                s_and_b32 s{sT}, s{sK}, 3
                s_mul_i32 s{sT}, s{sT}, {160 * 7680}
                s_lshr_b32 s{sT2}, s{sK}, 2
                s_lshl_b32 s{sT2}, s{sT2}, 7
                s_add_u32 s{sT}, s{sT}, s{sT2}
                s_sub_u32 s{sT2}, s{sK}, 80
                s_cmp_ge_u32 s{sT2}, 160
                s_cselect_b32 s{sT}, 0x40000000, s{sT}
                v_lshrrev_b32 v{vT}, 1, v{vLane}
                v_mul_u32_u24 v{vT}, 7680, v{vT}
                v_and_b32 v{vT2}, 1, v{vLane}
                v_lshl_add_u32 v{vT}, v{vT2}, 6, v{vT}
                ''')
                for i in range(5):
                    vm.issue('M', f'buffer_load_dword v{vT3}, v{vT}, {sr(sQ,4)}, s{sT} offen')
                    if i < 4: a(f's_add_u32 s{sT}, s{sT}, {32 * 7680}')
            for tt in range(4):
                for t in range(nt):
                    A_, B_ = vr(WF + 8*(s_%NW) + 4*t, 4), vr(ACT[s_%3] + 4*tt, 4)
                    if swap: A_, B_ = B_, A_
                    c = vr(ACC + 16*t + 4*tt, 4)
                    a(f'v_mfma_f32_16x16x32_bf16 {c}, {A_}, {B_}, {c if s_ else 0}')
                    if t == 0 and R_: a(R_[tt])
                    if t == nt - 1 and tt == 1 and s_ + NPRE < 20: ldW(s_ + NPRE)
        a('s_nop 6')
        if 'stamp' in ctx: stamp.at(3)
    a(f's_cmp_ge_u32 s{sWave}, 5\ns_cbranch_scc1 {lv}')
    loop(False, 2)
    lk, lleft = a.label('qkv_st_k'), a.label('qkv_st_left')
    def kv_base(sD, off):
        a(f's_lshl_b32 s{sD}, s{sCb}, 6\ns_lshl_b32 s{sT2}, s{sRb}, 1\ns_add_u32 s{sD}, s{sD}, s{sT2}\ns_mul_i32 s{sD}, s{sD}, {KVT}\ns_add_u32 s{sD}, s{sD}, {WS_KV + off}')
    def cvt(tt):
        d = ACT[0] + 4 * tt
        for t in range(2):
            for r in range(2): a(f'v_cvt_pk_bf16_f32 v{d+2*t+r}, v{ACC+16*t+4*tt+2*r}, v{ACC+16*t+4*tt+2*r+1}')
        return d
    a(f'''
    v_bfe_u32 v{vT2}, v{lI}, 2, 2
    v_and_b32 v{vT3}, 3, v{lI}
    v_lshl_add_u32 v{vT2}, v{vT2}, 3, v{vT3}
    v_lshrrev_b32 v{vT}, 1, v{lG}
    v_lshl_add_u32 v{vT2}, v{vT}, 2, v{vT2}
    v_and_b32 v{vT3}, 1, v{lG}
    s_lshl_b32 s{sT}, s{sCb}, 8
    s_lshl_b32 s{sT2}, s{sRb}, 1
    s_add_u32 s{sT}, s{sT}, s{sT2}
    s_cmp_eq_u32 s{sWave}, 4
    s_cbranch_scc1 {lleft}
    s_cmp_ge_u32 s{sWave}, 2
    s_cbranch_scc1 {lk}
    s_lshl_b32 s{sT2}, s{sWave}, 7
    s_add_u32 s{sT}, s{sT}, s{sT2}
    s_mul_i32 s{sT}, s{sT}, {QT}
    s_add_u32 s{sT}, s{sT}, {WS_Q}
    v_mul_u32_u24 v{vT}, {64*QT}, v{vT}
    v_lshl_add_u32 v{vT}, v{vT3}, 9, v{vT}
    v_lshl_add_u32 v{vT}, v{lI}, 4, v{vT}
    s_mov_b32 s{sT2}, {hex(f2u(QSCALE))}
    ''')
    for r in range(32): a(f'v_mul_f32 v{ACC+r}, s{sT2}, v{ACC+r}')
    for tt in range(4):
        d = cvt(tt)
        a(f'buffer_store_dwordx4 {vr(d,4)}, v{vT}, {WS}, s{sT} offen offset:{(tt>>1)*QT + (tt&1)*256} {st}')
    a(f's_branch {fin}\n{lk}:')
    kv_base(sT, KV_K1)
    a(f'''
    s_and_b32 s{sT2}, s{sWave}, 1
    s_lshl_b32 s{sT2}, s{sT2}, 11
    s_add_u32 s{sT}, s{sT}, s{sT2}
    v_lshlrev_b32 v{vT}, 9, v{vT3}
    v_lshl_add_u32 v{vT}, v{vT2}, 4, v{vT}
    ''')
    for kt in range(2):
        d0, d1 = cvt(2 * kt), cvt(2 * kt + 1)
        a('s_nop 0')
        for r in range(4): a(f'v_permlane32_swap_b32 v{d0+r}, v{d1+r}')
        a(f'buffer_store_dwordx4 {vr(d0,4)}, v{vT}, {WS}, s{sT} offen {st}\nbuffer_store_dwordx4 {vr(d1,4)}, v{vT}, {WS}, s{sT} offen offset:1024 {st}')
        if kt == 0: a(f's_add_u32 s{sT}, s{sT}, {KVT}')
    a(f's_branch {fin}\n{lleft}:')
    kv_base(sL, KV_K2)
    a(f'''
    s_mul_i32 s{sT}, s{sT}, {QT}
    s_add_u32 s{sT}, s{sT}, {WS_Q + 1024}
    v_mul_u32_u24 v{vT}, {64*QT}, v{lG}
    v_lshl_add_u32 v{vT}, v{lI}, 3, v{vT}
    v_lshlrev_b32 v{vT3}, 8, v{vT3}
    v_lshl_add_u32 v{vT3}, v{vT2}, 3, v{vT3}
    s_mov_b32 s{sT2}, {hex(f2u(QSCALE))}
    ''')
    for r in range(16): a(f'v_mul_f32 v{ACC+r}, s{sT2}, v{ACC+r}')
    for kt in range(2):
        d0, d1 = cvt(2 * kt), cvt(2 * kt + 1)
        for h, d in enumerate((d0, d1)): a(f'buffer_store_dwordx2 {vr(d,2)}, v{vT}, {WS}, s{sT} offen offset:{kt*QT + h*128} {st}')
        for r in range(2, 4): a(f'v_permlane32_swap_b32 v{d0+r}, v{d1+r}')
        for h, d in enumerate((d0, d1)): a(f'buffer_store_dwordx2 {vr(d+2,2)}, v{vT3}, {WS}, s{sL} offen offset:{h*512} {st}')
        if kt == 0: a(f's_add_u32 s{sL}, s{sL}, {KVT}')
    a(f's_branch {fin}')
    def st_v(nt):
        kv_base(sT, KV_V)
        a(f'''
        s_sub_u32 s{sT2}, s{sWave}, 5
        s_lshl_b32 s{sT2}, s{sT2}, 9
        s_add_u32 s{sT}, s{sT}, s{sT2}
        s_add_u32 s{sL}, s{sT}, {KVT}
        v_mul_u32_u24 v{vT}, 1280, v{lG}
        v_lshl_add_u32 v{vT}, v{lI}, 4, v{vT}
        ''')
        for t in range(nt):
            for kt in range(2):
                d = ACT[0] + 8 * t + 4 * kt
                for h in range(2):
                    for r in range(2): a(f'v_cvt_pk_bf16_f32 v{d+2*h+r}, v{ACC+16*t+4*(2*kt+h)+2*r}, v{ACC+16*t+4*(2*kt+h)+2*r+1}')
                a(f'buffer_store_dwordx4 {vr(d,4)}, v{vT}, {WS}, s{sL if kt else sT} offen offset:{256*t} {st}')
    a(f'''
    {lv}:
    s_cmp_eq_u32 s{sWave}, 7
    s_cbranch_scc1 {lv1}
    ''')
    loop(True, 2); st_v(2)
    a(f's_branch {fin}\n{lv1}:')
    loop(True, 1); st_v(1)
    a(f'{fin}:')
    def deferred(gate):
        if MP == 2: return
        nf = a.label('qkv_nofin')
        a(f"""
        s_cmp_lt_u32 s{sK}, 80
        s_cbranch_scc1 {nf}
        s_cmp_ge_u32 s{sK}, 240
        s_cbranch_scc1 {nf}
        """)
        if MP == 1: a(f's_cmp_lg_u32 s{sWave}, 4\ns_cbranch_scc1 {nf}')
        else:
            a(f"""
            s_load_dwordx4 s[{sP}:{sP+3}], s[0:1], {ARG_C}
            s_sub_u32 s{sW0}, s{sWave}, 4
            s_waitcnt lgkmcnt(0)
            s_mov_b32 s{sQ}, s{sP+2}
            s_mov_b32 s{sQ+1}, s{sP+3}
            """)
            srd(a, sQ, sQ, 640 * 7680); srd(a, sP, sP, 1280)
            mod_addr(sW0)
            gate(vS, sT2, sT)
            mod_loads()
            mod_partial(0, acc0, vM0, sW0)
            a(f"""
            s_mov_b64 exec, 1
            v_mov_b32 v{vS}, {L_MCNT}
            v_mov_b32 v{vS+1}, 1
            s_waitcnt lgkmcnt(0)
            ds_add_u32 v{vS}, v{vS+1}
            s_mov_b64 exec, -1
            s_cmp_lg_u32 s{sWave}, 4
            s_cbranch_scc1 {nf}
            """)
            lds_wait(a, vS, sT, L_MCNT, thr=4, sleep=2)
        acc, vM, vR = WF + 4, WF + 20, WF + 21
        mod_final(acc, vM, vR)
        modb_store(acc, vM, vR)
        a(f"""
        s_lshl_b32 s{ctx['sSig']}, s{sK}, 2
        s_add_u32 s{ctx['sSig']}, s{ctx['sSig']}, {F_MOD}
        s_mov_b64 exec, 0xff
        v_lshlrev_b32 v{vM}, 10, v{vLane}
        v_mov_b32 v{vR}, s{sNonce}
        s_waitcnt vmcnt(0)
        buffer_store_dword v{vR}, v{vM}, {WS}, s{ctx['sSig']} offen sc1
        s_mov_b64 exec, -1
        {nf}:
        """)
    ctx['deferred'].append(deferred)
    V.release(mv); Sg.release(ms)
```

```python
from build import *
from attn import *
from qkv import *
from helpers import *
from proj import *
from gateup import *
from sync import *

L_STAGE = 106496
L_PART = L_STAGE + ATTN_LDS
L_WORD = L_PART + HLP_P
MEGA_LDS = 163840

def k_main(opt, code_bytes):
    k = Kernel(NAME + '_kernel', 256, 512, MEGA_LDS)
    a, V, Sg = k.a, k.V, k.S
    ctx = prologue(k, 256)
    ctx['sX'], ctx['sOut'], ctx['sSig'], ctx['sNonce'] = Sg(4), Sg(4), Sg(), Sg()
    sWave = ctx['sWave']
    a(f's_load_dwordx2 {sr(ctx["sX"],2)}, s[0:1], {ARG_X}\ns_load_dwordx2 {sr(ctx["sOut"],2)}, s[0:1], {ARG_OUT}')
    srd(a, ctx['sOut'], ctx['sOut'], S * 1280)
    ctx['st_flags'] = 'sc1'
    if 'dbg' in opt: ctx['stamp_dbg'] = opt['dbg']; ctx['dbg_cyc'] = opt.get('cyc', 0)
    ctx['warm'] = opt.get('warm', 0)
    ctx['hthr'] = opt.get('hthr', 4)
    for x in opt:
        if x.startswith('x_') or x in ('hprio', 'polldepth', 'pollgap'): ctx[x] = opt[x]
    ctx['ld_flags'] = 'sc1' if opt.get('sc1ld') else ''
    if opt.get('stamp'): ctx['stamp'] = Stamps(k, ctx, 1, 16); ctx['stamp']()
    stamp = ctx.get('stamp', lambda: None)
    if opt.get('trace'):
        tr = Stamps(k, ctx, 1, 16); tr()
        ctx['trace_phase'] = opt['trace']; ctx['trobj'] = tr
        ctx['tr'] = lambda ph, i=None: (tr() if i is None else tr.at(i)) if ph == opt['trace'] and (i is not None or tr.i < 15) else None
    else: ctx['tr'] = lambda ph, i=None: None
    def code_prefetch(R, s, sT):
        if opt.get('nopf'): return 0
        per = -(-code_bytes // (32 * 1024))
        v = R(); d = R(4, 4)
        a(f'''
        s_getpc_b64 s[{s}:{s+1}]
        L_pc:
        s_sub_u32 s{s}, s{s}, L_pc-{k.name}
        s_subb_u32 s{s+1}, s{s+1}, 0
        s_lshr_b32 s{sT}, s2, 3
        s_mul_i32 s{sT}, s{sT}, {per*1024}
        v_lshlrev_b32 v{v}, 4, v{ctx['vLane']}
        v_add_u32 v{v}, s{sT}, v{v}
        v_min_u32 v{v}, {code_bytes - (per-1)*1024 - 16}, v{v}
        ''')
        for i in range(per): a(f'global_load_dwordx4 {vr(d,4)}, v{v}, s[{s}:{s+1}] offset:{1024*i}')
        return per
    ctx['code_prefetch'] = code_prefetch
    m, ms = V.mark(), Sg.mark()
    vS = V(4, 2); sT, sT2, sT3 = Sg(), Sg(), Sg()
    hl, nw0, go, p3 = a.label('helpers'), a.label('m_nw0'), a.label('m_go'), a.label('m_p3')
    mA = V.mark()
    H = Helpers(a, V, Sg, ctx, L_PART, L_COEF, L_WORD + 4)
    mt = (V.mark(), Sg.mark())
    tv, ts = V(), Sg(11, 4)
    def early():
        H.setup(tv, ts)
    later = []
    gen_qkv(a, V, Sg, dict(ctx, early=early, deferred=later), opt)
    V.release(mt[0]); Sg.release(mt[1])
    a(f'''
    v_mov_b32 v{vS}, {L_WORD}
    v_mov_b32 v{vS+2}, 0
    v_mov_b32 v{vS+3}, 0
    ds_write_b64 v{vS}, {vr(vS+2,2)}
    s_waitcnt vmcnt(0) lgkmcnt(0)
    s_barrier
    ''')
    if 'stamp' in ctx: stamp.at(4)
    a(f's_cmp_ge_u32 s{sWave}, 4\ns_cbranch_scc1 {hl}')
    def wait_qkv():
        a(f's_cmp_lg_u32 s{sWave}, 0\ns_cbranch_scc1 {nw0}')
        qkv_ids(a, 2, sT2, sT, sT3)
        cnt_sig(a, sT, C_QKV, sT, sT2, sT3)
        ctx['tr'](7, 1)
        signal(a, ctx, sT, vS, NREP)
        a(f's_and_b32 s{sT}, s2, 7')
        cnt_poll(a, sT, C_QKV, sT, sT2)
        poll(a, ctx, sT, NSH, 4, vS, sT2)
        ctx['tr'](7, 2)
        a(f'''
        v_mov_b32 v{vS}, {L_WORD}
        v_mov_b32 v{vS+1}, 1
        ds_write_b32 v{vS}, v{vS+1}
        s_branch {go}
        {nw0}:
        ''')
        lds_spin(vS, sT2)
        a(f'{go}:\ns_waitcnt lgkmcnt(0)')
    def lds_spin(v, s, thr='1', sleep=1):
        lp, out = a.label('m_spin'), a.label('m_spin_out')
        a(f'''
        v_mov_b32 v{v}, {L_WORD}
        s_mov_b32 s{s}, {SPIN * 8}
        {lp}:
        ds_read_b32 v{v+1}, v{v}
        s_sub_u32 s{s}, s{s}, 1
        s_cbranch_scc1 {out}
        s_waitcnt lgkmcnt(0)
        v_cmp_gt_u32 vcc, {thr}, v{v+1}
        s_sleep {sleep}
        s_cbranch_vccnz {lp}
        {out}:
        s_waitcnt lgkmcnt(0)
        ''')
    def helper_gate(v, s, sThr, sHw, job):
        base, per, perw = {'L': (opt.get('gL', 2), opt.get('gLp', 4), opt.get('gLw', 1)), 'B': (0, 0, 0), 'W': (opt.get('gW', 12), opt.get('gWp', 1), opt.get('gWw', 1))}[job]
        if base == 0: return
        if job == 'L':
            a(f's_lshl_b32 s{sThr}, s{sHw}, 2\ns_lshr_b32 s{sThr}, 0x3102, s{sThr}\ns_and_b32 s{sThr}, s{sThr}, 3\ns_mul_i32 s{sThr}, s{sThr}, {per}')
        else: a(f's_mul_i32 s{sThr}, s{sHw}, {per}')
        a(f's_bfe_u32 s{s}, s2, 0x20003\ns_mul_i32 s{s}, s{s}, {perw}\ns_add_u32 s{sThr}, s{sThr}, s{s}\ns_add_u32 s{sThr}, s{sThr}, {base}')
        lds_spin(v, s, f's{sThr}', 4)
    mh = V.mark(); V.release(mA)
    vP = V(2)
    a(f'v_mov_b32 v{vP}, 0x40000\nv_mov_b32 v{vP+1}, 1\ns_cmp_eq_u32 s{sWave}, 0\ns_cselect_b32 s{sT}, {L_WORD}, 0\ns_cselect_b32 s{sT2}, 0, 1\ns_lshl_b32 s{sT2}, s{sT2}, 18\ns_or_b32 s{sT}, s{sT}, s{sT2}\nv_writelane_b32 v{vP}, s{sT}, 0')
    c2 = dict(ctx, wait_inputs=wait_qkv, lds_base=L_STAGE, progress=vP)
    if 'stamp' in ctx: stamp.i = 5
    cold = gen_attn(a, V, Sg, c2, opt)
    V.release(mh)
    a(f's_branch {p3}\n{hl}:')
    a('s_setprio 2')
    def gateM(v, s, sThr):
        a(f's_bfe_u32 s{sThr}, s2, 0x30003\ns_mul_i32 s{sThr}, s{sThr}, {opt.get("gMw", 0)}\ns_add_u32 s{sThr}, s{sThr}, {opt.get("gM", 1)}')
        lds_spin(v, s, f's{sThr}', 4)
    later[0](gateM)
    if opt.get('nohelp'): a(f's_barrier\ns_branch {p3}')
    H.rest(helper_gate)
    a('s_barrier')
    a(f'{p3}:\ns_waitcnt vmcnt(0)')
    ctx['tr'](2, 13)
    a('s_barrier')
    ctx['tr'](2, 14)
    if 'stamp' in ctx: stamp.at(8)
    ns = a.label('m_nosig')
    a(f'''
    s_cmp_lg_u32 s{sWave}, 0
    s_cbranch_scc1 {ns}
    s_lshr_b32 s{sT}, s2, 5
    ''')
    cnt_sig(a, sT, C_ATT, sT, 2, sT2)
    ctx['tr'](7, 3)
    signal(a, ctx, sT, vS, NREP)
    a(f'{ns}:')
    def epoch(v):
        sk = a.label('m_noepoch')
        a(f'''
        s_cmp_lg_u32 s2, 0
        s_cbranch_scc1 {sk}
        s_mov_b64 exec, 1
        v_mov_b32 v{v}, {WS_EPOCH}
        v_mov_b32 v{v+1}, s{ctx['sNonce']}
        buffer_store_dword v{v+1}, v{v}, {sr(ctx['sWS'],4)}, 0 offen sc1
        s_mov_b64 exec, -1
        {sk}:
        ''')
    ctx['epoch'] = epoch
    V.release(m); Sg.release(ms)
    RES, GB = V(12, 4), V(12, 4)
    def gu_base(sB, sT, sT2):
        gu_ids(a, 2, sT, sB, sT2)
        a(f's_cmp_ge_u32 s{sB}, 31\ns_mul_i32 s{sB}, s{sB}, {140*1024}\ns_cselect_b32 s{sT}, 0x40000000, {WS_PGU}\ns_add_u32 s{sB}, s{sB}, s{sT}')
    def d_base(sB, sT, sT2):
        qkv_ids(a, 2, sT, sB, sT2)
        a(f's_mul_i32 s{sB}, s{sB}, {54*5120}\ns_add_u32 s{sB}, s{sB}, {WS_PWD}')
    ctx['gu_prefetch'] = Prefetch(a, V, Sg, ctx, GU_BASE, gu_base)
    ctx['d_prefetch'] = Prefetch(a, V, Sg, ctx, 0, d_base)
    gen_proj(a, V, Sg, ctx, 'o', RES, GB, opt)
    gen_gateup(a, V, Sg, ctx, opt)
    if 'stamp' in ctx: stamp.i = 14
    c5 = dict(ctx)
    if 'stamp' in ctx:
        n = [0]
        def st5():
            n[0] += 1
            if n[0] == 1: stamp()
        c5['stamp'] = st5
    gen_proj(a, V, Sg, c5, 'd', RES, GB, opt)
    if opt.get('probe'):
        t = Sg()
        a(f's_lshl_b32 s{t}, s2, 3\ns_add_u32 s{t}, s{t}, s{sWave}\ns_lshl_b32 s{t}, s{t}, 15\ns_add_u32 s{t}, s{t}, {opt["probe"] << 20}\nv_lshlrev_b32 v0, 4, v{ctx["vLane"]}')
        for i in range(32): a(f'buffer_load_dwordx4 v[{16+4*i}:{19+4*i}], v0, {sr(ctx["sWS"],4)}, s{t} offen\ns_add_u32 s{t}, s{t}, 1024')
        a('s_waitcnt vmcnt(0)')
    if 'stamp' in ctx: stamp.flush()
    if opt.get('trace'): tr.i = 15; tr.flush()
    a('s_endpgm'); cold()
    epilogue(k, ctx); return k

def code_size(main):
    import subprocess, os
    open('sz.s', 'w').write('.amdgcn_target "amdgcn-amd-amdhsa--gfx950"\n.text\n' + main.name + ':\n' + main.a.text() + 's_endpgm\n')
    subprocess.run(['clang', '-x', 'assembler', '-target', 'amdgcn-amd-amdhsa', '-mcpu=gfx950', '-c', 'sz.s', '-o', 'sz.o'], check=True)
    subprocess.run(['llvm-objcopy', '-O', 'binary', '-j', '.text', 'sz.o', 'sz.bin'], check=True)
    return os.path.getsize('sz.bin') // 16 * 16

if __name__ == '__main__':
    opt = dict((x.split('=')[0], int(x.split('=')[1]) if '=' in x else 1) for x in sys.argv[2:])
    n = code_size(k_main(opt, 40000)) - 64
    main = k_main(opt, n)
    assert code_size(main) >= n
    print('main kernel code bytes', n, 'vgprs', main.V.hi, 'sgprs', main.S.hi)
    open(sys.argv[1], 'w').write(assemble([main], single=not opt.get('list')))
```
